```python
import torch

def _softmax(x, axis=-1):
    return torch.softmax(x, dim=axis)
def _gelu(x):
    return torch.nn.functional.gelu(x, approximate="tanh")
def _silu(x):
    return torch.nn.functional.silu(x)
def _sigmoid(x):
    return torch.sigmoid(x)
def _layernorm(x, axis=-1, eps=1e-5):
    m = x.mean(dim=axis, keepdim=True)
    v = x.var(dim=axis, keepdim=True, unbiased=False)
    return (x - m) / torch.sqrt(v + eps)
def _scatter_add(tgt, idx, src, axis=0):
    return tgt.clone().index_add_(axis, idx, src)
def _segment_sum(src, seg, n):
    out = torch.zeros((n,) + src.shape[1:], dtype=src.dtype)
    return out.index_add_(0, seg, src)
def _pad(x, pw):
    flat = tuple(v for pair in reversed(pw) for v in pair)
    return torch.nn.functional.pad(x, flat)

kernel_name = 'interleave_layers__spectral_gfnet__ssm_conv_s4__prompt'

def setup_inputs():

    _w = (lambda a: (lambda t: t.to(torch.bfloat16) if t.is_floating_point() else t)(torch.as_tensor(a)))
    def _A_setup():
        B, S, D = 1, 2048, 512
        Df = D // 2 + 1
        return {
            "x": _w((lambda *s: torch.randn(*s, dtype=torch.bfloat16) * 0.05)(B, S, D)),
            "w_r": _w((lambda *s: torch.randn(*s, dtype=torch.bfloat16) * 1.6)(S, Df) * 0.02),
            "w_i": _w((lambda *s: torch.randn(*s, dtype=torch.bfloat16) * 1.6)(S, Df) * 0.02),
        }
    _A_in = _A_setup()

    def _B_setup():
        B, L, D, N = 1, 2048, 512, 128
        A_re = -(lambda _x: torch.exp(torch.as_tensor(_x)))((lambda *s: torch.randn(*s, dtype=torch.bfloat16) * 6.4)(D, N))
        A_im = torch.pi * (lambda *s: torch.randn(*s, dtype=torch.bfloat16) * 0.05)(D, N)
        B_re = (lambda *s: torch.randn(*s, dtype=torch.bfloat16) * 0.05)(D, N)
        B_im = (lambda *s: torch.randn(*s, dtype=torch.bfloat16) * 0.05)(D, N)
        C_re = (lambda *s: torch.randn(*s, dtype=torch.bfloat16) * 0.05)(D, N)
        C_im = (lambda *s: torch.randn(*s, dtype=torch.bfloat16) * 0.05)(D, N)
        log_dt = (lambda *s: torch.randn(*s, dtype=torch.bfloat16) * 0.05)(D) * 0.5 - 4.0
        Dskip = (lambda *s: torch.randn(*s, dtype=torch.bfloat16) * 0.05)(D)
        return {
            "u": _w((lambda *s: torch.randn(*s, dtype=torch.bfloat16) * 0.05)(B, L, D)),
            "A_re": _w(A_re),
            "A_im": _w(A_im),
            "B_re": _w(B_re),
            "B_im": _w(B_im),
            "C_re": _w(C_re),
            "C_im": _w(C_im),
            "log_dt": _w(log_dt),
            "Dskip": _w(Dskip),
        }
    _B_in = _B_setup()

    return {
        "A_x": _A_in["x"],
        "A_w_r": _A_in["w_r"],
        "A_w_i": _A_in["w_i"],
        "B_u": _B_in["u"],
        "B_A_re": _B_in["A_re"],
        "B_A_im": _B_in["A_im"],
        "B_B_re": _B_in["B_re"],
        "B_B_im": _B_in["B_im"],
        "B_C_re": _B_in["C_re"],
        "B_C_im": _B_in["C_im"],
        "B_log_dt": _B_in["log_dt"],
        "B_Dskip": _B_in["Dskip"],
    }

def reference(A_x, A_w_r, A_w_i, B_u, B_A_re, B_A_im, B_B_re, B_B_im, B_C_re, B_C_im, B_log_dt, B_Dskip):
    def _A_ref(x, w_r, w_i):
        B, S, D = x.shape
        X = (lambda x, axes=(-2,-1): torch.fft.rfft2(x.float(), dim=axes))(x, axes=(-2, -1))
        W = w_r + 1j * w_i
        X = X * W
        y = (lambda x, s, axes=(-2,-1): torch.fft.irfft2(x, s=s, dim=axes).to(torch.bfloat16))(X, (S, D), axes=(-2, -1))
        return y

    def _B_ref(u, A_re, A_im, B_re, B_im, C_re, C_im, log_dt, Dskip):
        Bsz, L, D = u.shape
        dt = torch.exp(log_dt)[:, None]
        A = A_re + 1j * A_im
        Bc = B_re + 1j * B_im
        Cc = C_re + 1j * C_im
        logdA = dt * A
        dB = dt * Bc
        l = (lambda x, dt: x.to(dt))(torch.arange(L), A_re.dtype)
        P = torch.exp(logdA[:, :, None] * l[None, None, :])
        K = torch.einsum("dn,dnl,dn->dl", Cc, P, dB).real
        L2 = 2 * L
        Kp = _pad(K, ((0, 0), (0, L)))
        up = (lambda x, *d: x.permute(*d))(u, 0, 2, 1)
        up = _pad(up, ((0, 0), (0, 0), (0, L)))
        Kf = (lambda x, axes=(-2,-1): torch.fft.rfft2(x.float(), dim=axes))(Kp[:, None, :], axes=(-2, -1))
        Uf = (lambda x, axes=(-2,-1): torch.fft.rfft2(x.float(), dim=axes))(up[:, :, None, :], axes=(-2, -1))
        Yf = Uf * Kf[None, :, :, :]
        y = (lambda x, s, axes=(-2,-1): torch.fft.irfft2(x, s=s, dim=axes).to(torch.bfloat16))(Yf, (1, L2), axes=(-2, -1))[:, :, 0, :L]
        y = (lambda x, *d: x.permute(*d))(y, 0, 2, 1) + u * Dskip[None, None, :]
        return y

    x = A_x
    x = x + _A_ref(_layernorm(x, axis=-1), A_w_r, A_w_i)
    x = x + _B_ref(_layernorm(x, axis=-1), B_A_re, B_A_im, B_B_re, B_B_im, B_C_re, B_C_im, B_log_dt, B_Dskip)
    x = x + _A_ref(_layernorm(x, axis=-1), A_w_r, A_w_i)
    x = x + _B_ref(_layernorm(x, axis=-1), B_A_re, B_A_im, B_B_re, B_B_im, B_C_re, B_C_im, B_log_dt, B_Dskip)
    return x
```

```python
import re

REG_RE = re.compile(r'^(-|abs\()?([vsa])(\d+)\)?$')
RNG_RE = re.compile(r'^(-|abs\()?([vsa])\[(\d+):(\d+)\]\)?$')

TRANS = ('v_exp_f32', 'v_log_f32', 'v_rcp_f32', 'v_rsq_f32', 'v_sqrt_f32', 'v_sin_f32', 'v_cos_f32',
         'v_rcp_iflag_f32')
RMW_DST = ('v_fmac_f32', 'v_dot2c_f32_bf16', 'v_pk_fmac_f16', 'v_writelane_b32', 'v_fmac_f32_e32',
           'v_dot2c_f32_bf16_e32')
NO_DST_S = ('s_cmp', 's_waitcnt', 's_barrier', 's_nop', 's_branch', 's_cbranch', 's_setprio', 's_endpgm',
            's_sleep', 's_setreg', 's_bitcmp', 's_sethalt', 's_setpc')


def regs_of(tok):
    tok = tok.strip()
    m = REG_RE.match(tok)
    if m:
        return {(m.group(2), int(m.group(3)))}
    m = RNG_RE.match(tok)
    if m:
        return {(m.group(2), i) for i in range(int(m.group(3)), int(m.group(4)) + 1)}
    if tok == 'vcc':
        return {('s', 106), ('s', 107)}
    if tok == 'vcc_lo':
        return {('s', 106)}
    if tok == 'vcc_hi':
        return {('s', 107)}
    if tok == 'exec':
        return {('s', 126), ('s', 127)}
    if tok == 'exec_lo':
        return {('s', 126)}
    if tok == 'exec_hi':
        return {('s', 127)}
    if tok == 'm0':
        return {('s', 124)}
    return set()


def split_ops(s):
    out, depth, cur = [], 0, ''
    for ch in s:
        if ch in '[(':
            depth += 1
        if ch in '])':
            depth -= 1
        if ch == ',' and depth == 0:
            out.append(cur.strip())
            cur = ''
        else:
            cur += ch
    if cur.strip():
        out.append(cur.strip())
    return out


class Ins:
    __slots__ = ('text', 'mn', 'ops', 'mods', 'kind', 'R', 'W', 'srcA', 'srcB', 'srcC', 'passes', 'dpp',
                 'trans', 'wide_store', 'lds_dma', 'manual')

    def __init__(self, text, manual=False):
        self.text = text
        self.manual = manual
        t = text.split(';')[0].strip()
        self.R, self.W = set(), set()
        self.srcA = self.srcB = self.srcC = set()
        self.passes = 0
        self.dpp = self.trans = self.wide_store = self.lds_dma = False
        if t.endswith(':'):
            self.kind, self.mn, self.ops, self.mods = 'label', t, [], ''
            return
        if t.startswith('.') or not t:
            self.kind, self.mn, self.ops, self.mods = 'dir', t, [], ''
            return
        parts = t.split(None, 1)
        mn = parts[0]
        self.mn = mn
        rest = parts[1] if len(parts) > 1 else ''
        ops = split_ops(rest)
        mods = ''
        if ops:
            last = ops[-1].split(None, 1)
            if len(last) > 1 and not last[0].startswith('vmcnt') and not last[0].startswith('lgkmcnt'):
                ops[-1], mods = last[0], last[1]
        self.ops, self.mods = ops, mods
        base = re.sub(r'_(e32|e64|dpp|sdwa)$', '', mn)
        rg = [regs_of(o) for o in ops]

        def U(idx):
            s = set()
            for i in idx:
                if i < len(rg):
                    s |= rg[i]
            return s
        n = len(ops)
        if base.startswith('v_mfma'):
            self.kind = 'mfma'
            self.W = rg[0]
            self.srcA, self.srcB, self.srcC = rg[1], rg[2], rg[3]
            self.R = rg[1] | rg[2] | rg[3]
            if '16x16x32' in base or '16x16x16' in base:
                self.passes = 4
            elif '32x32x16' in base or '32x32x8' in base:
                self.passes = 8
            else:
                raise ValueError('unmodelled mfma ' + base)
        elif base.startswith('v_'):
            self.kind = 'valu'
            self.trans = base in TRANS
            self.dpp = mn.endswith('_dpp') or any(k in mods for k in ('row_', 'quad_perm', 'wave_'))
            if base.startswith('v_permlane') and 'swap' in base:
                self.W = U([0, 1])
                self.R = U([0, 1])
            elif base.startswith('v_cmp'):
                self.W = rg[0]
                self.R = U(range(1, n))
            elif base in ('v_add_co_u32', 'v_sub_co_u32', 'v_addc_co_u32', 'v_subb_co_u32', 'v_subrev_co_u32'):
                self.W = U([0, 1])
                self.R = U(range(2, n))
            elif base == 'v_cndmask_b32':
                self.W = rg[0]
                self.R = U(range(1, n))
                if n == 3:
                    self.R |= regs_of('vcc')
            else:
                self.W = rg[0]
                self.R = U(range(1, n))
                if base in RMW_DST or self.dpp:
                    self.R |= rg[0]
            if base == 'v_nop':
                self.W, self.R = set(), set()
        elif base.startswith('ds_'):
            self.kind = 'ds'
            if base.startswith('ds_read') or base.startswith('ds_bpermute') or base.startswith('ds_swizzle') \
                    or base.startswith('ds_permute'):
                self.W = rg[0]
                self.R = U(range(1, n))
                if 'd16' in base:
                    self.R |= rg[0]
            else:
                self.R = U(range(n))
        elif base.startswith('buffer_') or base.startswith('global_'):
            self.kind = 'vmem'
            words = mods.split()
            if base in ('buffer_wbl2', 'buffer_inv'):
                pass
            elif 'lds' in words or '_lds_' in base:
                self.lds_dma = True
                self.R = U(range(n)) | regs_of('m0')
            elif '_load' in base:
                self.W = rg[0]
                self.R = U(range(1, n))
                if 'd16' in base:
                    self.R |= rg[0]
            elif '_atomic' in base:
                self.R = U(range(n))
                if 'sc0' in words:
                    self.W = rg[0]
            else:
                self.R = U(range(n))
                self.wide_store = 'x4' in base or 'x3' in base
                if self.wide_store:
                    self.srcA = rg[0] if base.startswith('buffer_') else rg[1]
        elif base.startswith('s_load') or base.startswith('s_buffer_load') or base in ('s_memtime', 's_memrealtime'):
            self.kind = 'smem'
            self.W = rg[0]
            self.R = U(range(1, n))
        elif base.startswith('s_'):
            self.kind = 'salu'
            if any(base.startswith(p) for p in NO_DST_S):
                self.R = U(range(n))
                if base in ('s_cbranch_vccz', 's_cbranch_vccnz'):
                    self.R |= regs_of('vcc')
                if base in ('s_cbranch_execz', 's_cbranch_execnz'):
                    self.R |= regs_of('exec')
            else:
                self.W = rg[0]
                self.R = U(range(1, n))
                if 'saveexec' in base:
                    self.W |= regs_of('exec')
                    self.R |= regs_of('exec')
                if base in ('s_addk_i32', 's_mulk_i32'):
                    self.R |= rg[0]
        else:
            raise ValueError('unmodelled instruction: ' + text)

    @property
    def is_branch(self):
        return self.kind == 'salu' and (self.mn.startswith('s_branch') or self.mn.startswith('s_cbranch')
                                        or self.mn.startswith('s_endpgm') or self.mn.startswith('s_setpc'))


def is_vgpr(r):
    return r[0] in ('v', 'a')


def wait_text(vm, lg):
    parts = []
    if vm is not None:
        parts.append('vmcnt(%d)' % min(vm, 63))
    if lg is not None:
        parts.append('lgkmcnt(%d)' % min(lg, 15))
    return 's_waitcnt ' + ' '.join(parts)


class Asm:
    def __init__(self):
        self.ins = []

    def __call__(self, text, manual=False):
        for line in text.split('\n'):
            line = line.strip()
            if not line or line.startswith(';'):
                continue
            self.ins.append(Ins(line, manual))

    def label(self, name):
        self.ins.append(Ins(name + ':'))

    def insert_waits(self):
        out = []
        vm = []
        lg = []
        for i in self.ins:
            if i.kind == 'dir':
                out.append(i)
                continue
            touched = i.R | i.W
            need_vm = need_lg = None
            boundary = i.kind == 'label' or i.is_branch
            if boundary and not i.manual:
                idx = [k for k, d in enumerate(vm) if d]
                if idx:
                    need_vm = len(vm) - 1 - max(idx)
                if any(d for _, d in lg):
                    need_lg = 0
            else:
                for k, d in enumerate(vm):
                    if d & touched:
                        c = len(vm) - 1 - k
                        need_vm = c if need_vm is None else min(need_vm, c)
                smem_out = any(kd == 'smem' for kd, _ in lg)
                for k, (kd, d) in enumerate(lg):
                    if d & touched:
                        c = 0 if smem_out else len(lg) - 1 - k
                        need_lg = c if need_lg is None else min(need_lg, c)
                if i.mn == 's_barrier' and lg:
                    need_lg = 0
            if i.mn == 's_waitcnt':
                m = re.search(r'vmcnt\((\d+)\)', i.text)
                if m:
                    c = int(m.group(1))
                    vm = vm[len(vm) - c:] if c < len(vm) else vm
                    if c == 0:
                        vm = []
                m = re.search(r'lgkmcnt\((\d+)\)', i.text)
                if m:
                    c = int(m.group(1))
                    if c == 0:
                        lg = []
                    elif not any(kd == 'smem' for kd, _ in lg):
                        lg = lg[len(lg) - c:] if c < len(lg) else lg
                out.append(i)
                continue
            if need_vm is not None or need_lg is not None:
                if need_vm is not None:
                    need_vm = min(need_vm, 63)
                if need_lg is not None:
                    need_lg = min(need_lg, 15)
                out.append(Ins(wait_text(need_vm, need_lg)))
                if need_vm is not None:
                    vm = vm[len(vm) - need_vm:] if need_vm > 0 else []
                if need_lg is not None:
                    lg = lg[len(lg) - need_lg:] if need_lg > 0 else []
            out.append(i)
            if i.kind == 'vmem':
                vm.append(set(i.W))
            elif i.kind == 'ds':
                lg.append(('ds', set(i.W)))
            elif i.kind == 'smem':
                lg.append(('smem', set(i.W)))
            if boundary and not i.manual:
                vm = [set() for _ in vm]
                lg = [('smem', set())] if lg else []
        self.ins = out

    @staticmethod
    def required(p, c):
        need = 0
        cw_v = {r for r in c.W if is_vgpr(r)}
        cr_v = {r for r in c.R if is_vgpr(r)}
        pw_v = {r for r in p.W if is_vgpr(r)}
        pw_s = {r for r in p.W if r[0] == 's'}
        cr_s = {r for r in c.R if r[0] == 's'}
        if p.kind == 'valu':
            if c.kind == 'mfma' and pw_v & c.R:
                need = max(need, 2)
            if c.kind == 'valu':
                if p.trans and pw_v & cr_v:
                    need = max(need, 1)
                if c.dpp and pw_v & cr_v:
                    need = max(need, 2)
                if c.mn.startswith('v_permlane') and pw_v & cr_v:
                    need = max(need, 2)
                if (c.mn.startswith('v_readlane') or c.mn.startswith('v_readfirstlane')) and pw_v & cr_v:
                    need = max(need, 1)
                if pw_s & cr_s:
                    need = max(need, 4 if (c.mn.startswith('v_readlane') or c.mn.startswith('v_writelane')) else 2)
                if ('op_sel' in p.mods and not p.mn.startswith('v_pk_')) or 'dst_sel' in p.mods:
                    if pw_v & (cr_v | cw_v):
                        need = max(need, 1)
            if c.kind == 'vmem' and pw_s & cr_s:
                need = max(need, 5)
            if c.kind in ('salu', 'smem') and pw_s & cr_s:
                need = max(need, 4)
            if p.trans and c.kind in ('vmem', 'ds') and pw_v & cr_v:
                need = max(need, 1)
        if p.kind == 'mfma':
            n = p.passes
            if c.kind == 'mfma':
                if p.W & (c.srcA | c.srcB):
                    need = max(need, {4: 8, 8: 12}[n])
                if p.W & c.srcC:
                    if not (p.W == c.srcC and p.passes == c.passes):
                        need = max(need, {4: 6, 8: 10}[n])
                elif p.W & c.W:
                    need = max(need, {4: 8, 8: 12}[n])
            elif c.kind in ('valu', 'vmem', 'ds'):
                if p.W & (cr_v | cw_v):
                    need = max(need, {4: 8, 8: 12}[n])
                if p.srcC & cw_v:
                    need = max(need, {4: 3, 8: 7}[n])
        if p.kind == 'vmem' and p.wide_store and c.kind in ('valu', 'mfma', 'ds', 'vmem'):
            if p.srcA & cw_v:
                need = max(need, 2)
        if p.kind == 'salu' and ('s', 124) in p.W and (c.lds_dma or 'addtid' in c.mn):
            need = max(need, 1)
        if p.kind == 'salu' and pw_s & regs_of('exec') and c.kind == 'valu' and c.dpp:
            need = max(need, 1)
        return need

    @staticmethod
    def residual(p):
        if p.kind == 'mfma':
            return {4: 8, 8: 12}[p.passes]
        if p.kind == 'valu':
            if any(r[0] == 's' for r in p.W):
                return 5
            return 2 if p.W else 0
        if p.kind == 'vmem' and p.wide_store:
            return 2
        if p.kind == 'salu' and ('s', 124) in p.W:
            return 1
        return 0

    def insert_nops(self):
        out = []
        hist = []
        for i in self.ins:
            if i.kind == 'dir':
                out.append(i)
                continue
            need = 0
            if i.kind == 'label' or (i.is_branch and not i.mn.startswith('s_endpgm')):
                extra = 1 if i.kind != 'label' else 0
                for p, d in hist:
                    need = max(need, self.residual(p) - d - extra)
            else:
                for p, d in hist:
                    need = max(need, self.required(p, i) - d)
            while need > 0:
                k = min(need, 16)
                out.append(Ins('s_nop %d' % (k - 1)))
                hist = [(p, d + k) for p, d in hist]
                need -= k
            out.append(i)
            if i.kind == 'label':
                hist = []
                continue
            step = 1
            if i.mn == 's_nop':
                step = int(i.ops[0]) + 1
            hist = [(p, d + step) for p, d in hist if d + step < 24]
            hist.append((i, 0))
        self.ins = out

    def finish(self):
        self.insert_waits()
        self.insert_nops()
        lines = []
        for i in self.ins:
            lines.append(i.text if i.kind in ('label', 'dir') else '    ' + i.text)
        return '\n'.join(lines) + '\n'

    def count(self):
        return sum(1 for i in self.ins if i.kind not in ('label', 'dir'))


class Regs:
    def __init__(self, prefix, first, limit):
        self.p, self.limit = prefix, limit
        self.used = set(range(first))
        self.hi = first

    def alloc(self, n=1, align=None):
        if align is None:
            align = 1 if n == 1 else (2 if self.p == 'v' else (2 if n == 2 else 4))
        b = 0
        while True:
            b = (b + align - 1) // align * align
            if all((b + k) not in self.used for k in range(n)):
                break
            b += 1
        if b + n > self.limit:
            raise RuntimeError('out of %s registers' % self.p)
        self.used |= set(range(b, b + n))
        self.hi = max(self.hi, b + n)
        return Reg(self.p, b, n)

    def free(self, *rs):
        for r in rs:
            self.used -= set(range(r.b, r.b + r.n))


class Reg:
    def __init__(self, p, b, n):
        self.p, self.b, self.n = p, b, n

    def __str__(self):
        return '%s%d' % (self.p, self.b) if self.n == 1 else '%s[%d:%d]' % (self.p, self.b, self.b + self.n - 1)

    def __getitem__(self, k):
        if isinstance(k, slice):
            st = k.start or 0
            en = self.n if k.stop is None else k.stop
            assert 0 <= st < en <= self.n, (st, en, self.n)
            return Reg(self.p, self.b + st, en - st)
        assert 0 <= k < self.n, (k, self.n)
        return Reg(self.p, self.b + k, 1)

    def __format__(self, spec):
        return str(self)
```

```python
from asmgen import Asm, Regs, Reg
HDR = [l for l in open('interleave_layers__spectral_gfnet__ssm_conv_s4__prompt.s.ref').read().split('\n') if l.startswith('; Kernarg') or l.startswith(';   offset')]
KN = 'interleave_layers__spectral_gfnet__ssm_conv_s4__prompt_kernel'
KA = dict(A_x=0, A_w_r=8, A_w_i=16, B_u=24, B_A_re=32, B_A_im=40, B_B_re=48, B_B_im=56, B_C_re=64, B_C_im=72,
          B_log_dt=80, B_Dskip=88, out=96, debug=104, ws=112)

def kernel_text(name, body):
    return (f".globl {name}\n.p2align 8\n.type {name},@function\n{name}:\n" + body)

def descriptor(name, vgpr, sgpr, accum=None):
    if accum is None:
        accum = (vgpr + 3) // 4 * 4
    return (f".p2align 6\n.amdhsa_kernel {name}\n  .amdhsa_next_free_vgpr {vgpr}\n  .amdhsa_next_free_sgpr {sgpr}\n"
            f"  .amdhsa_accum_offset {accum}\n  .amdhsa_group_segment_fixed_size 0\n  .amdhsa_kernarg_size 120\n"
            f"  .amdhsa_user_sgpr_count 2\n  .amdhsa_user_sgpr_kernarg_segment_ptr 1\n"
            f"  .amdhsa_system_sgpr_workgroup_id_x 1\n  .amdhsa_float_denorm_mode_32 3\n.end_amdhsa_kernel\n")

def make_file(kernels, launches, single=False):
    out = list(HDR)
    if single:
        n, g, b, l = launches[0]
        out.append(f"; @launch grid=({g},1,1) block=({b},1,1) lds={l}")
    else:
        for n, g, b, l in launches:
            out.append(f"; @launch kernel={n} grid=({g},1,1) block=({b},1,1) lds={l}")
    out.append('.amdgcn_target "amdgcn-amd-amdhsa--gfx950"')
    out.append('.text')
    txt = '\n'.join(out) + '\n'
    for name, body, v, s in kernels:
        txt += kernel_text(name, body)
    txt += '.section .rodata,"a"\n'
    for name, body, v, s in kernels:
        txt += descriptor(name, v, s)
    return txt
```

```python
import struct
import sys
from common import *

X1_OFF, X1_SZ = 0x0000000, 257 * 8192
Z_OFF, Z_SZ = 0x0400000, 257 * 8192
WT_OFF, WT_SZ = 0x0800000, 257 * 8192
UX_OFF, UX_SZ = 0x0C00000, 256 * 16384
X2_OFF, X2_SZ = 0x1000000, 256 * 8192
KF_OFF, KF_SZ = 0x1400000, 512 * 8192
OOB = 0x7FFFFFF0


def fhex(x):
    return '0x%08x' % struct.unpack('<I', struct.pack('<f', x))[0]


class K:
    def __init__(self, name, nwg, vlimit=256):
        self.name, self.nwg = name, nwg
        self.a = Asm()
        self.V = Regs('v', 1, vlimit)
        self.S = Regs('s', 4, 100)
        self.lds = 0
        self.uid = 0

    def __call__(self, t, **kw):
        self.a(t, **kw)

    def v(self, n=1, align=None):
        return self.V.alloc(n, align)

    def s(self, n=1, align=None):
        return self.S.alloc(n, align)

    def prologue(self, ptrs):
        self(f"s_cmp_ge_u32 s2, {self.nwg}")
        self(f"s_cbranch_scc1 L_{self.name}_end")
        out = {}
        for p in ptrs:
            r = self.s(2)
            self(f"s_load_dwordx2 {r}, s[0:1], {KA[p]}")
            out[p] = r
        self.lane = self.v()
        self.n16 = self.v()
        self.g4 = self.v()
        self.wv = self.s()
        t = self.v()
        self(f"v_lshrrev_b32 {t}, 6, v0")
        self(f"v_and_b32 {self.lane}, 63, v0")
        self(f"v_readfirstlane_b32 {self.wv}, {t}")
        self(f"v_and_b32 {self.n16}, 15, v0")
        self(f"v_lshrrev_b32 {self.g4}, 4, {self.lane}")
        self.V.free(t)
        return out

    def srd(self, ptr, off, size):
        r = self.s(4)
        if off:
            self(f"s_add_u32 {r[0]}, {ptr[0]}, {hex(off)}")
            self(f"s_addc_u32 {r[1]}, {ptr[1]}, 0")
        else:
            self(f"s_mov_b32 {r[0]}, {ptr[0]}")
            self(f"s_mov_b32 {r[1]}, {ptr[1]}")
        self(f"s_mov_b32 {r[2]}, {hex(size)}")
        self(f"s_mov_b32 {r[3]}, 0x20000")
        return r

    def end(self):
        self(f"L_{self.name}_end:")
        self("s_endpgm")

    def text(self):
        return (self.name, self.a.finish(), max(self.V.hi, 8), max(self.S.hi, 16))

    def cvtf(self, dst, src):
        self(f"v_cvt_f32_u32 {dst}, {src}")

    def cossin(self, c, s, ang):
        if c is not None:
            self(f"v_cos_f32 {c}, {ang}")
        if s is not None:
            self(f"v_sin_f32 {s}, {ang}")

    def pk(self, dst, lo, hi):
        self(f"v_cvt_pk_bf16_f32 {dst}, {lo}, {hi}")

    def mfma(self, d, A, B, c=None):
        self(f"v_mfma_f32_16x16x32_bf16 {d}, {A}, {B}, {c if c is not None else 0}")

    def round_bf16(self, dst, src, tmp):
        self(f"v_cvt_pk_bf16_f32 {tmp}, {src}, {src}")
        self(f"v_lshlrev_b32 {dst}, 16, {tmp}")

    def cmul(self, dr, di, ar, ai, c, s, conj):
        self(f"v_mul_f32 {dr}, {ar}, {c}")
        self(f"v_mul_f32 {di}, {ai}, {c}")
        if not conj:
            self(f"v_fma_f32 {dr}, {ai}, {s}, {dr}")
            self(f"v_fma_f32 {di}, -{ar}, {s}, {di}")
        else:
            self(f"v_fma_f32 {dr}, -{ai}, {s}, {dr}")
            self(f"v_fma_f32 {di}, {ar}, {s}, {di}")

    def reduce4(self, q):
        q0, q1, q2, q3 = q
        self(f"v_permlane32_swap_b32 {q0}, {q1}")
        self(f"v_permlane32_swap_b32 {q2}, {q3}")
        self(f"v_add_f32 {q0}, {q0}, {q1}")
        self(f"v_add_f32 {q2}, {q2}, {q3}")
        self(f"v_permlane16_swap_b32 {q0}, {q2}")
        self(f"v_add_f32 {q0}, {q0}, {q2}")
        self(f"v_add_f32_dpp {q0}, {q0}, {q0} row_ror:8 row_mask:0xf bank_mask:0xf")
        self(f"v_add_f32_dpp {q0}, {q0}, {q0} row_ror:4 row_mask:0xf bank_mask:0xf")
        self(f"v_add_f32_dpp {q0}, {q0}, {q0} quad_perm:[2,3,0,1] row_mask:0xf bank_mask:0xf")
        return q0

    def ln_finish(self, S, Q, tmp):
        mean, t = S, tmp
        self(f"v_mul_f32 {mean}, {fhex(1 / 512)}, {S}")
        self(f"v_mul_f32 {Q}, {fhex(1 / 512)}, {Q}")
        self(f"v_fma_f32 {Q}, -{mean}, {mean}, {Q}")
        self(f"v_max_f32 {Q}, 0, {Q}")
        self.round_bf16(mean, mean, t)
        self.round_bf16(Q, Q, t)
        self(f"v_add_f32 {Q}, {fhex(1e-5)}, {Q}")
        self.round_bf16(Q, Q, t)
        self(f"v_sqrt_f32 {Q}, {Q}")
        self.round_bf16(Q, Q, t)
        self(f"v_rcp_f32 {Q}, {Q}")
        return mean, Q


ROWLANE = [0, 32, 16, 48]


def gen_wt(name='wt_kernel'):
    k = K(name, 256)
    P = k.prologue(['A_w_r', 'A_w_i', 'ws'])
    k1, kb = k.s(), k.s()
    k(f"s_and_b32 {k1}, s2, 63")
    k(f"s_lshr_b32 {kb}, s2, 6")
    base = k.s()
    t = k.s()
    k(f"s_lshl_b32 {t}, {kb}, 9")
    k(f"s_add_u32 {base}, {t}, {k1}")
    k(f"s_mul_i32 {base}, {base}, 514")
    obase = k.s()
    k(f"s_lshl_b32 {obase}, {k1}, 7")
    k(f"s_lshl_b32 {t}, {kb}, 5")
    k(f"s_add_u32 {obase}, {obase}, {t}")
    k("s_waitcnt lgkmcnt(0)")
    sr = k.srd(P['A_w_r'], 0, 2048 * 257 * 2)
    si = k.srd(P['A_w_i'], 0, 2048 * 257 * 2)
    so = k.srd(P['ws'], WT_OFF, WT_SZ)
    soff = [k.s() for _ in range(8)]
    for rho in range(8):
        k(f"s_add_u32 {soff[rho]}, {base}, {rho * 64 * 514}")
    for part in range(2):
        vin, vout = k.v(), k.v()
        d = k.v(8, 4)
        if part == 0:
            k(f"v_lshlrev_b32 {vin}, 1, v0")
            k(f"v_lshlrev_b32 {vout}, 13, v0")
        else:
            k(f"v_cmp_eq_u32 vcc, 0, v0")
            k(f"v_mov_b32 {vin}, {hex(OOB)}")
            k(f"v_mov_b32 {vout}, {hex(OOB)}")
            tmp = k.v()
            k(f"v_mov_b32 {tmp}, 512")
            k(f"v_cndmask_b32 {vin}, {vin}, {tmp}, vcc")
            k(f"v_mov_b32 {tmp}, {256 * 8192}")
            k(f"v_cndmask_b32 {vout}, {vout}, {tmp}, vcc")
        raw = [[k.v() for _ in range(2)] for _ in range(8)]
        for rho in range(8):
            for c, srd in ((0, sr), (1, si)):
                k(f"buffer_load_ushort {raw[rho][c]}, {vin}, {srd}, {soff[rho]} offen")
        for rho in range(0, 8, 2):
            for c in range(2):
                reg = d[(rho >> 2) * 4 + c * 2 + ((rho & 3) >> 1)]
                k(f"v_lshl_or_b32 {reg}, {raw[rho + 1][c]}, 16, {raw[rho][c]}")
        k(f"buffer_store_dwordx4 {d[0:4]}, {vout}, {so}, {obase} offen")
        k(f"buffer_store_dwordx4 {d[4:8]}, {vout}, {so}, {obase} offen offset:16")
    k.end()
    return k


def gen_rf(name, first):
    k = K(name, 256)
    P = k.prologue(['A_x', 'ws'] if first else ['ws'])
    n, g, lane, wv = k.n16, k.g4, k.lane, k.wv
    bs, a8, rg, kt = k.s(), k.s(), k.s(), k.s()
    k(f"s_and_b32 {bs}, s2, 31")
    k(f"s_lshr_b32 {a8}, s2, 5")
    k(f"s_lshr_b32 {rg}, {wv}, 1")
    k(f"s_and_b32 {kt}, {wv}, 1")
    k("s_waitcnt lgkmcnt(0)")
    so = k.srd(P['ws'], X1_OFF, X1_SZ)
    t0, t1 = k.s(), k.s()
    A = [k.v(4, 2) for _ in range(4)]
    if first:
        k.lds = 16384
        sx = k.srd(P['A_x'], 0, 2048 * 512 * 2)
        k(f"s_lshl_b32 {t0}, {a8}, 8")
        k(f"s_add_u32 {t0}, {t0}, {bs}")
        k(f"s_lshl_b32 {t1}, {rg}, 7")
        k(f"s_add_u32 {t0}, {t0}, {t1}")
        k(f"s_lshl_b32 {t0}, {t0}, 10")
        va = k.v()
        k(f"v_lshlrev_b32 {va}, 4, {lane}")
        lb = k.s()
        k(f"s_lshl_b32 {lb}, {wv}, 12")
        for rho in range(4):
            k(f"s_add_u32 m0, {lb}, {rho * 1024}")
            k(f"s_add_u32 {t1}, {t0}, {rho * 32 * 1024}")
            k(f"buffer_load_dwordx4 {va}, {sx}, {t1} offen lds")
    else:
        k.lds = 8192
        sx = k.srd(P['ws'], X2_OFF, X2_SZ)
        va, vb = k.v(), k.v()
        k(f"v_lshrrev_b32 {va}, 1, v0")
        k(f"v_lshlrev_b32 {va}, 13, {va}")
        k(f"v_and_b32 {vb}, 1, v0")
        k(f"v_lshl_add_u32 {va}, {vb}, 4, {va}")
        k(f"s_lshl_b32 {t0}, {bs}, 8")
        k(f"s_lshl_b32 {t1}, {a8}, 5")
        k(f"s_add_u32 {t0}, {t0}, {t1}")
        lb = k.s()
        k(f"s_lshl_b32 {lb}, {wv}, 10")
        for i in range(2):
            k(f"s_add_u32 m0, {lb}, {i * 4096}")
            k(f"s_add_u32 {t1}, {t0}, {i * 128 * 8192}")
            k(f"buffer_load_dwordx4 {va}, {sx}, {t1} offen lds")
        k.V.free(vb)
    nf, gf, k1f = k.v(), k.v(), k.v()
    k.cvtf(nf, n)
    k.cvtf(gf, g)
    ktf = k.v()
    k(f"s_lshl_b32 {t1}, {kt}, 4")
    k(f"v_add_u32 {ktf}, {t1}, {n}")
    k.cvtf(k1f, ktf)
    B1r, B1i = k.v(4, 2), k.v(4, 2)
    ang = [k.v() for _ in range(2)]
    cs = [k.v() for _ in range(4)]
    u = k.v()
    k(f"v_mul_f32 {u}, {fhex(1 / 32)}, {k1f}")
    base = k.v()
    k(f"v_mul_f32 {base}, 4.0, {gf}")
    for jp in range(4):
        for e in range(2):
            j = 2 * jp + e
            off = j if j < 4 else 16 + j - 4
            k(f"v_add_f32 {ang[e]}, {fhex(off)}, {base}")
            k(f"v_mul_f32 {ang[e]}, {ang[e]}, {u}")
            k(f"v_cos_f32 {cs[e]}, {ang[e]}")
            k(f"v_sin_f32 {cs[2 + e]}, -{ang[e]}")
        k.pk(B1r[jp], cs[0], cs[1])
        k.pk(B1i[jp], cs[2], cs[3])
    twc, tws = k.v(4, 2), k.v(4, 2)
    k(f"v_mul_f32 {u}, {fhex(1 / 512)}, {k1f}")
    for r in range(4):
        k(f"v_add_f32 {ang[0]}, {fhex(r)}, {base}")
        k(f"v_mul_f32 {ang[0]}, {ang[0]}, {u}")
        k.cossin(twc[r], tws[r], ang[0])
    A2 = k.v(4, 2)
    k2f, cq = k.v(), k.v()
    k(f"v_lshrrev_b32 {k2f}, 1, {n}")
    k.cvtf(k2f, k2f)
    k(f"v_mul_f32 {k2f}, {fhex(1 / 16)}, {k2f}")
    k(f"v_and_b32 {cq}, 1, {n}")
    k.cvtf(cq, cq)
    k(f"v_mul_f32 {cq}, 0.25e0, {cq}".replace('0.25e0', fhex(0.25)))
    for jp in range(2):
        for e in range(2):
            k(f"v_add_f32 {ang[e]}, {fhex(2 * jp + e)}, {base}")
            k(f"v_fma_f32 {ang[e]}, {ang[e]}, {k2f}, {cq}")
            k(f"v_cos_f32 {cs[e]}, {ang[e]}")
            k(f"v_sin_f32 {cs[2 + e]}, {ang[e]}")
        k.pk(A2[jp], cs[0], cs[1])
        k.pk(A2[2 + jp], cs[2], cs[3])
    dcm = k.v()
    k(f"v_lshl_add_u32 {dcm}, {ktf}, 2, {g}")
    k(f"v_cmp_eq_u32 vcc, 0, {dcm}")
    k(f"v_cndmask_b32 {dcm}, 0, 1.0, vcc")
    vo = k.v()
    k(f"v_lshl_add_u32 {vo}, {g}, 6, {ktf}")
    k(f"v_lshlrev_b32 {vo}, 13, {vo}")
    ob = k.s()
    k(f"s_lshl_b32 {ob}, {bs}, 8")
    k(f"s_lshl_b32 {t0}, {a8}, 5")
    k(f"s_add_u32 {ob}, {ob}, {t0}")
    k(f"s_lshl_b32 {t0}, {rg}, 4")
    k(f"s_add_u32 {ob}, {ob}, {t0}")
    ob1 = k.s()
    k(f"s_add_u32 {ob1}, {ob}, {32 * 8192}")
    k.V.free(nf, gf, k1f, u, base, k2f, cq, *ang)
    vr = k.v()
    if first:
        k(f"v_lshlrev_b32 {vr}, 3, {lane}")
        k(f"v_add_u32 {vr}, {lb}, {vr}")
        k("s_waitcnt vmcnt(0)")
        for rho in range(4):
            k(f"ds_read_b64_tr_b16 {A[rho][0:2]}, {vr} offset:{rho * 1024}")
            k(f"ds_read_b64_tr_b16 {A[rho][2:4]}, {vr} offset:{rho * 1024 + 512}")
    else:
        k(f"v_lshlrev_b32 {vr}, 10, {g}")
        k(f"v_lshl_add_u32 {vr}, {n}, 4, {vr}")
        k(f"s_lshl_b32 {t0}, {rg}, 3")
        k(f"v_add_u32 {vr}, {t0}, {vr}")
        k("s_waitcnt vmcnt(0)")
        k("s_barrier")
        L = [k.v(2, 2) for _ in range(8)]
        for j in range(8):
            dh = j if j < 4 else 16 + j - 4
            k(f"ds_read_b64 {L[j]}, {vr} offset:{dh * 256}")
        slo, shi = k.s(), k.s()
        k(f"s_mov_b32 {slo}, 0x05040100")
        k(f"s_mov_b32 {shi}, 0x07060302")
        for rho in range(4):
            for jp in range(4):
                k(f"v_perm_b32 {A[rho][jp]}, {L[2 * jp + 1][rho >> 1]}, {L[2 * jp][rho >> 1]}, {shi if rho & 1 else slo}")
        k.V.free(*L)
    Dr = [k.v(4, 2) for _ in range(4)]
    Di = [k.v(4, 2) for _ in range(4)]
    for rho in range(4):
        k.mfma(Dr[rho], A[rho], B1r)
        k.mfma(Di[rho], A[rho], B1i)
    ones = k.s()
    k(f"s_mov_b32 {ones}, 0x3f803f80")
    Sx = [k.v() for _ in range(4)]
    Qx = [k.v() for _ in range(4)]
    for rho in range(4):
        k(f"v_dot2_f32_bf16 {Sx[rho]}, {A[rho][0]}, {ones}, 0")
        k(f"v_dot2_f32_bf16 {Qx[rho]}, {A[rho][0]}, {A[rho][0]}, 0")
    for jp in range(1, 4):
        for rho in range(4):
            k(f"v_dot2c_f32_bf16 {Sx[rho]}, {ones}, {A[rho][jp]}")
            k(f"v_dot2c_f32_bf16 {Qx[rho]}, {A[rho][jp]}, {A[rho][jp]}")
    Sr = k.reduce4(Sx)
    Qr = k.reduce4(Qx)
    oth, alt = Sx[1], Sx[2]
    k(f"v_mov_b32_dpp {oth}, {Sr} quad_perm:[1,0,3,2] row_mask:0xf bank_mask:0xf")
    k(f"v_add_f32_dpp {Qr}, {Qr}, {Qr} quad_perm:[1,0,3,2] row_mask:0xf bank_mask:0xf")
    k(f"v_sub_f32 {alt}, {Sr}, {oth}")
    k(f"v_add_f32 {Sr}, {Sr}, {oth}")
    mbf, rstd = k.ln_finish(Sr, Qr, Sx[3])
    k(f"v_mul_f32 {mbf}, {fhex(512.0)}, {mbf}")
    k(f"v_mul_f32 {alt}, {alt}, {rstd}")
    s_r = [k.s() for _ in range(4)]
    s_m = [k.s() for _ in range(4)]
    s_a = [k.s() for _ in range(4)]
    for rho in range(4):
        k(f"v_readlane_b32 {s_r[rho]}, {rstd}, {ROWLANE[rho]}")
        k(f"v_readlane_b32 {s_m[rho]}, {mbf}, {ROWLANE[rho]}")
        k(f"v_readlane_b32 {s_a[rho]}, {alt}, {ROWLANE[rho]}")
    D2 = [k.v(4, 2) for _ in range(4)]
    tr, ti = k.v(4, 2), k.v(4, 2)
    B2 = [k.v(4, 2) for _ in range(2)]
    for rho in range(4):
        for r in range(4):
            k.cmul(tr[r], ti[r], Dr[rho][r], Di[rho][r], twc[r], tws[r], False)
        b = B2[rho & 1]
        k.pk(b[0], tr[0], tr[1])
        k.pk(b[1], tr[2], tr[3])
        k.pk(b[2], ti[0], ti[1])
        k.pk(b[3], ti[2], ti[3])
        k.mfma(D2[rho], A2, b)
    for rho in range(4):
        k(f"v_fma_f32 {D2[rho][0]}, -{dcm}, {s_m[rho]}, {D2[rho][0]}")
        for r in range(4):
            k(f"v_mul_f32 {D2[rho][r]}, {s_r[rho]}, {D2[rho][r]}")
    O = [k.v(4, 2) for _ in range(2)]
    for e in range(2):
        k.pk(O[e][0], D2[0][2 * e], D2[1][2 * e])
        k.pk(O[e][1], D2[2][2 * e], D2[3][2 * e])
        k.pk(O[e][2], D2[0][2 * e + 1], D2[1][2 * e + 1])
        k.pk(O[e][3], D2[2][2 * e + 1], D2[3][2 * e + 1])
        k(f"buffer_store_dwordx4 {O[e]}, {vo}, {so}, {ob if e == 0 else ob1} offen")
    N4 = k.v(4, 2)
    tt = k.v()
    k(f"v_mov_b32 {tt}, {s_a[0]}")
    k(f"v_cvt_pk_bf16_f32 {N4[0]}, {tt}, {s_a[1]}")
    k(f"v_mov_b32 {tt}, {s_a[2]}")
    k(f"v_cvt_pk_bf16_f32 {N4[1]}, {tt}, {s_a[3]}")
    k(f"v_mov_b32 {N4[2]}, 0")
    k(f"v_mov_b32 {N4[3]}, 0")
    vn = k.v()
    k(f"v_cmp_lt_f32 vcc, 0.5, {dcm}")
    k(f"v_mov_b32 {vn}, {hex(OOB)}")
    k(f"v_mov_b32 {tt}, {256 * 8192}")
    k(f"v_cndmask_b32 {vn}, {vn}, {tt}, vcc")
    k(f"buffer_store_dwordx4 {N4}, {vn}, {so}, {ob} offen")
    k.end()
    return k


def cs_blocks(k, blk, lanef, slot0, scale, shift_lane=0.0, shift_slot=0.0, tmp=None):
    ang, c0, c1, s0, s1 = tmp
    cs = [(c0, s0), (c1, s1)]
    for jp in range(2):
        for e in range(2):
            k(f"v_add_f32 {ang}, {fhex(2 * jp + e + shift_slot)}, {slot0}")
            k(f"v_mul_f32 {ang}, {ang}, {lanef}")
            k.cossin(cs[e][0], cs[e][1], ang)
        k.pk(blk[jp], c0, c1)
        k.pk(blk[2 + jp], s0, s1)
    for jp in range(2):
        k(f"v_mov_b32 {blk[4 + jp]}, {blk[jp]}")
        k(f"v_xor_b32 {blk[6 + jp]}, 0x80008000, {blk[2 + jp]}")
        k(f"v_mov_b32 {blk[8 + jp]}, {blk[jp]}")


def op_CS(blk):
    return blk[0:4]


def op_SC(blk):
    return blk[2:6]


def op_CnS(blk):
    return blk[4:8]


def op_nSC(blk):
    return blk[6:10]


def pack4(k, dst, re, im):
    k.pk(dst[0], re[0], re[1])
    k.pk(dst[1], re[2], re[3])
    k.pk(dst[2], im[0], im[1])
    k.pk(dst[3], im[2], im[3])


def gen_g32(k, n, g, tmp):
    G = [[k.v(10, 2) for _ in range(2)] for _ in range(2)]
    lf, sf = k.v(), k.v()
    for t in range(2):
        k(f"v_add_u32 {lf}, {16 * t}, {n}")
        k.cvtf(lf, lf)
        k(f"v_mul_f32 {lf}, {fhex(1 / 32)}, {lf}")
        for q in range(2):
            k(f"v_lshlrev_b32 {sf}, 2, {g}")
            k(f"v_add_u32 {sf}, {16 * q}, {sf}")
            k.cvtf(sf, sf)
            cs_blocks(k, G[t][q], lf, sf, None, tmp=tmp)
    k.V.free(lf, sf)
    return G


def gen_twiddles(k, n, g, wv, shift, tmp):
    fc = [k.v(4, 2) for _ in range(2)]
    fs = [k.v(4, 2) for _ in range(2)]
    ic = [k.v(4, 2) for _ in range(2)]
    is_ = [k.v(4, 2) for _ in range(2)]
    ang = tmp[0]
    w16 = k.s()
    k(f"s_lshl_b32 {w16}, {wv}, 4")
    lf, sf = k.v(), k.v()
    k(f"v_add_u32 {lf}, {w16}, {n}")
    k.cvtf(lf, lf)
    if shift:
        k(f"v_add_f32 {lf}, {fhex(-shift)}, {lf}")
    k(f"v_mul_f32 {lf}, {fhex(1 / 2048)}, {lf}")
    k(f"v_lshlrev_b32 {sf}, 2, {g}")
    k.cvtf(sf, sf)
    for mt in range(2):
        for r in range(4):
            k(f"v_add_f32 {ang}, {fhex(16 * mt + r)}, {sf}")
            k(f"v_mul_f32 {ang}, {ang}, {lf}")
            k.cossin(fc[mt][r], fs[mt][r], ang)
    k(f"v_lshlrev_b32 {sf}, 2, {g}")
    k(f"v_add_u32 {sf}, {w16}, {sf}")
    k.cvtf(sf, sf)
    for nt in range(2):
        k(f"v_add_u32 {lf}, {16 * nt}, {n}")
        k.cvtf(lf, lf)
        k(f"v_mul_f32 {lf}, {fhex(1 / 2048)}, {lf}")
        for r in range(4):
            k(f"v_add_f32 {ang}, {fhex(r - shift)}, {sf}")
            k(f"v_mul_f32 {ang}, {ang}, {lf}")
            k.cossin(ic[nt][r], is_[nt][r], ang)
    k.V.free(lf, sf)
    k.S.free(w16)
    return fc, fs, ic, is_


def mid_pipeline(k, Dr, Di, G, fc, fs, spec, ic, is_, XO, scale):
    tr, ti = k.v(4, 2), k.v(4, 2)
    B = [k.v(4, 2) for _ in range(2)]
    for mt in range(2):
        for r in range(4):
            k.cmul(tr[r], ti[r], Dr[mt][r], Di[mt][r], fc[mt][r], fs[mt][r], False)
        pack4(k, B[mt], tr, ti)
    Er = [k.v(4, 2) for _ in range(2)]
    Ei = [k.v(4, 2) for _ in range(2)]
    for m2 in range(2):
        for q in range(2):
            k.mfma(Er[m2], op_CS(G[m2][q]), B[q], Er[m2] if q else None)
            k.mfma(Ei[m2], op_nSC(G[m2][q]), B[q], Ei[m2] if q else None)
    if spec is None:
        k.V.free(tr, ti, *B)
        return Er, Ei
    wr, wi = k.v(4, 2), k.v(4, 2)
    for m2 in range(2):
        for r in range(4):
            sh = r & 1
            for dst, src in ((wr[r], spec[m2][r >> 1]), (wi[r], spec[m2][2 + (r >> 1)])):
                if sh:
                    k(f"v_and_b32 {dst}, 0xffff0000, {src}")
                else:
                    k(f"v_lshlrev_b32 {dst}, 16, {src}")
        if scale is not None:
            for r in range(4):
                k(f"v_mul_f32 {wr[r]}, {scale}, {wr[r]}")
                k(f"v_mul_f32 {wi[r]}, {scale}, {wi[r]}")
        for r in range(4):
            k.cmul(tr[r], ti[r], Er[m2][r], Ei[m2][r], wr[r], wi[r], True)
        pack4(k, B[m2], tr, ti)
    k.V.free(wr, wi)
    for nt in range(2):
        for q in range(2):
            k.mfma(Er[nt], B[q], op_CnS(G[nt][q]), Er[nt] if q else None)
            k.mfma(Ei[nt], B[q], op_SC(G[nt][q]), Ei[nt] if q else None)
    for nt in range(2):
        for r in range(4):
            k.cmul(tr[r], ti[r], Er[nt][r], Ei[nt][r], ic[nt][r], is_[nt][r], True)
        pack4(k, XO[nt], tr, ti)
    k.V.free(tr, ti, *B, *Er, *Ei)
    return None


def gen_ca(name):
    k = K(name, 257)
    P = k.prologue(['ws'])
    n, g, lane, wv = k.n16, k.g4, k.lane, k.wv
    k("s_waitcnt lgkmcnt(0)")
    sx = k.srd(P['ws'], X1_OFF, X1_SZ)
    sw = k.srd(P['ws'], WT_OFF, WT_SZ)
    so = k.srd(P['ws'], Z_OFF, Z_SZ)
    cb = k.s()
    k(f"s_lshl_b32 {cb}, s2, 13")
    k.lds = 8192
    va = k.v()
    k(f"v_lshlrev_b32 {va}, 8, {n}")
    k(f"v_lshl_add_u32 {va}, {g}, 4, {va}")
    X = [[k.v(4, 2) for _ in range(4)] for _ in range(2)]
    cb1 = k.s()
    k(f"s_add_u32 {cb1}, {cb}, 4096")
    for mt in range(2):
        for q in range(4):
            k(f"buffer_load_dwordx4 {X[mt][q]}, {va}, {sx}, {cb1 if mt else cb} offen offset:{q * 64}")
    vw = k.v()
    t0 = k.s()
    k(f"s_lshl_b32 {t0}, {wv}, 11")
    k(f"s_add_u32 {t0}, {t0}, {cb}")
    k(f"v_lshlrev_b32 {vw}, 7, {n}")
    k(f"v_lshl_add_u32 {vw}, {g}, 4, {vw}")
    W = [k.v(4, 2) for _ in range(2)]
    for m2 in range(2):
        k(f"buffer_load_dwordx4 {W[m2]}, {vw}, {sw}, {t0} offen offset:{m2 * 64}")
    k.V.free(vw)
    sc = k.s()
    k(f"s_mov_b32 {sc}, {fhex(2.0 / (2048 * 512))}")
    k(f"s_and_b32 {t0}, s2, 255")
    k(f"s_cmp_eq_u32 {t0}, 0")
    k(f"s_cselect_b32 {sc}, {fhex(1.0 / (2048 * 512))}, {sc}")
    tmp = [k.v() for _ in range(5)]
    F = [k.v(10, 2) for _ in range(4)]
    lf, sf = k.v(), k.v()
    w16 = k.s()
    k(f"s_lshl_b32 {w16}, {wv}, 4")
    k(f"v_add_u32 {lf}, {w16}, {n}")
    k.cvtf(lf, lf)
    k(f"v_mul_f32 {lf}, {fhex(1 / 64)}, {lf}")
    for q in range(4):
        k(f"v_lshlrev_b32 {sf}, 2, {g}")
        k(f"v_add_u32 {sf}, {16 * q}, {sf}")
        k.cvtf(sf, sf)
        cs_blocks(k, F[q], lf, sf, None, tmp=tmp)
    k.V.free(lf, sf)
    G = gen_g32(k, n, g, tmp)
    fc, fs, ic, is_ = gen_twiddles(k, n, g, wv, 0.0, tmp)
    k.V.free(*tmp)
    Dr = [k.v(4, 2) for _ in range(2)]
    Di = [k.v(4, 2) for _ in range(2)]
    for mt in range(2):
        for q in range(4):
            k.mfma(Dr[mt], X[mt][q], op_CS(F[q]), Dr[mt] if q else None)
            k.mfma(Di[mt], X[mt][q], op_nSC(F[q]), Di[mt] if q else None)
    XO = [X[0][0], X[0][1]]
    mid_pipeline(k, Dr, Di, G, fc, fs, W, ic, is_, XO, sc)
    vl, vr = k.v(), k.v()
    k(f"s_lshl_b32 {t0}, {wv}, 11")
    k(f"v_lshlrev_b32 {vr}, 4, {lane}")
    k(f"v_add_u32 {vl}, {t0}, {vr}")
    for nt in range(2):
        k(f"ds_write_b128 {vl}, {XO[nt]} offset:{nt * 1024}")
    k("s_barrier")
    Y = [[X[nt][kq] for kq in range(4)] for nt in range(2)]
    for kq in range(4):
        for nt in range(2):
            k(f"ds_read_b128 {Y[nt][kq]}, {vr} offset:{kq * 2048 + nt * 1024}")
    for nt in range(2):
        for kq in range(4):
            k.mfma(Dr[nt], op_CnS(F[kq]), Y[nt][kq], Dr[nt] if kq else None)
            k.mfma(Di[nt], op_SC(F[kq]), Y[nt][kq], Di[nt] if kq else None)
    k(f"s_lshl_b32 {t0}, {wv}, 6")
    k(f"s_add_u32 {t0}, {t0}, {cb}")
    t1 = k.s()
    k(f"s_add_u32 {t1}, {t0}, 4096")
    O = [W[0], W[1]]
    for nt in range(2):
        k.pk(O[nt][0], Dr[nt][0], Dr[nt][1])
        k.pk(O[nt][1], Di[nt][0], Di[nt][1])
        k.pk(O[nt][2], Dr[nt][2], Dr[nt][3])
        k.pk(O[nt][3], Di[nt][2], Di[nt][3])
        k(f"buffer_store_dwordx4 {O[nt]}, {va}, {so}, {t1 if nt else t0} offen")
    k.end()
    return k


def unpack2(k, pair, dw):
    k(f"v_lshlrev_b32 {pair[0]}, 16, {dw}")
    k(f"v_and_b32 {pair[1]}, 0xffff0000, {dw}")


def gen_ri(name, first):
    k = K(name, 256)
    P = k.prologue(['A_x', 'ws'] if first else ['ws'])
    n, g, lane, wv = k.n16, k.g4, k.lane, k.wv
    bs, a8 = k.s(), k.s()
    k(f"s_and_b32 {bs}, s2, 31")
    k(f"s_lshr_b32 {a8}, s2, 5")
    k("s_waitcnt lgkmcnt(0)")
    sz = k.srd(P['ws'], Z_OFF, Z_SZ)
    so = k.srd(P['ws'], UX_OFF, UX_SZ)
    t0, t1 = k.s(), k.s()
    zb = k.s()
    k(f"s_lshl_b32 {zb}, {bs}, 8")
    k(f"s_lshl_b32 {t0}, {a8}, 5")
    k(f"s_add_u32 {zb}, {zb}, {t0}")
    k(f"s_lshl_b32 {t0}, {wv}, 3")
    k(f"s_add_u32 {zb}, {zb}, {t0}")
    vz = k.v()
    k(f"v_lshl_add_u32 {vz}, {g}, 6, {n}")
    k(f"v_lshlrev_b32 {vz}, 13, {vz}")
    L = [k.v(2, 2) for _ in range(4)]
    zo = [k.s() for _ in range(4)]
    for e in range(4):
        k(f"s_add_u32 {zo[e]}, {zb}, {e * 16 * 8192}")
        k(f"buffer_load_dwordx2 {L[e]}, {vz}, {sz}, {zo[e]} offen")
    z256 = k.v()
    k(f"v_mov_b32 {vz}, {256 * 8192}")
    k(f"buffer_load_dword {z256}, {vz}, {sz}, {zb} offen")
    k.V.free(vz)
    LDS_X = 16384
    k.lds = 16384 + 8192
    va = k.v()
    lb = k.s()
    if first:
        sx = k.srd(P['A_x'], 0, 2048 * 512 * 2)
        k(f"s_lshl_b32 {t0}, {a8}, 8")
        k(f"s_add_u32 {t0}, {t0}, {bs}")
        k(f"s_lshl_b32 {t1}, {wv}, 6")
        k(f"s_add_u32 {t0}, {t0}, {t1}")
        k(f"s_lshl_b32 {t0}, {t0}, 10")
        k(f"v_lshlrev_b32 {va}, 4, {lane}")
        k(f"s_lshl_b32 {lb}, {wv}, 11")
        k(f"s_add_u32 {lb}, {lb}, {LDS_X}")
        for e in range(2):
            k(f"s_add_u32 m0, {lb}, {e * 1024}")
            k(f"s_add_u32 {t1}, {t0}, {e * 32 * 1024}")
            k(f"buffer_load_dwordx4 {va}, {sx}, {t1} offen lds")
    else:
        sx = k.srd(P['ws'], X2_OFF, X2_SZ)
        vb = k.v()
        k(f"v_lshrrev_b32 {va}, 1, v0")
        k(f"v_lshlrev_b32 {va}, 13, {va}")
        k(f"v_and_b32 {vb}, 1, v0")
        k(f"v_lshl_add_u32 {va}, {vb}, 4, {va}")
        k(f"s_lshl_b32 {t0}, {bs}, 8")
        k(f"s_lshl_b32 {t1}, {a8}, 5")
        k(f"s_add_u32 {t0}, {t0}, {t1}")
        k(f"s_lshl_b32 {lb}, {wv}, 10")
        k(f"s_add_u32 {lb}, {lb}, {LDS_X}")
        for i in range(2):
            k(f"s_add_u32 m0, {lb}, {i * 4096}")
            k(f"s_add_u32 {t1}, {t0}, {i * 128 * 8192}")
            k(f"buffer_load_dwordx4 {va}, {sx}, {t1} offen lds")
        k.V.free(vb)
    tmp = [k.v() for _ in range(5)]
    ang = tmp[0]
    H = [k.v(10, 2) for _ in range(2)]
    lf, sf = k.v(), k.v()
    k(f"v_lshlrev_b32 {sf}, 2, {g}")
    k.cvtf(sf, sf)
    twc = [k.v(4, 2) for _ in range(2)]
    tws = [k.v(4, 2) for _ in range(2)]
    for nt in range(2):
        k(f"v_add_u32 {lf}, {16 * nt}, {n}")
        k.cvtf(lf, lf)
        k(f"v_mul_f32 {lf}, {fhex(1 / 32)}, {lf}")
        cs_blocks(k, H[nt], lf, sf, None, tmp=tmp)
        k(f"v_mul_f32 {lf}, {fhex(1 / 16)}, {lf}")
        for r in range(4):
            k(f"v_add_f32 {ang}, {fhex(r)}, {sf}")
            k(f"v_mul_f32 {ang}, {ang}, {lf}")
            k.cossin(twc[nt][r], tws[nt][r], ang)
    A2 = k.v(4, 2)
    k.cvtf(lf, n)
    k(f"v_mul_f32 {lf}, {fhex(1 / 16)}, {lf}")
    for jp in range(2):
        for e in range(2):
            k(f"v_add_f32 {ang}, {fhex(2 * jp + e)}, {sf}")
            k(f"v_mul_f32 {ang}, {ang}, {lf}")
            k(f"v_cos_f32 {tmp[1 + e]}, {ang}")
            k(f"v_sin_f32 {tmp[3 + e]}, -{ang}")
        k.pk(A2[jp], tmp[1], tmp[2])
        k.pk(A2[2 + jp], tmp[3], tmp[4])
    sgn = k.v()
    k(f"v_lshlrev_b32 {sgn}, 31, {n}")
    k.V.free(lf, sf, *tmp)
    slo, shi = k.s(), k.s()
    k(f"s_mov_b32 {slo}, 0x05040100")
    k(f"s_mov_b32 {shi}, 0x07060302")
    A = [k.v(4, 2) for _ in range(2)]
    for e in range(2):
        sel = shi if e else slo
        k(f"v_perm_b32 {A[e][0]}, {L[1][0]}, {L[0][0]}, {sel}")
        k(f"v_perm_b32 {A[e][1]}, {L[3][0]}, {L[2][0]}, {sel}")
        k(f"v_perm_b32 {A[e][2]}, {L[1][1]}, {L[0][1]}, {sel}")
        k(f"v_perm_b32 {A[e][3]}, {L[3][1]}, {L[2][1]}, {sel}")
    k.V.free(*L)
    Vr = [[k.v(4, 2) for _ in range(2)] for _ in range(2)]
    Vi = [[k.v(4, 2) for _ in range(2)] for _ in range(2)]
    for e in range(2):
        for nt in range(2):
            k.mfma(Vr[e][nt], A[e], op_CnS(H[nt]))
            k.mfma(Vi[e][nt], A[e], op_SC(H[nt]))
    Ci = [k.v(4, 2) for _ in range(2)]
    zz = k.v(2, 2)
    unpack2(k, zz, z256)
    for e in range(2):
        k(f"v_xor_b32 {Ci[e][0]}, {sgn}, {zz[e]}")
        for r in range(1, 4):
            k(f"v_mov_b32 {Ci[e][r]}, {Ci[e][0]}")
    k.V.free(zz, z256, sgn)
    D = [[k.v(4, 2) for _ in range(2)] for _ in range(2)]
    tr, ti = k.v(4, 2), k.v(4, 2)
    B = [k.v(4, 2) for _ in range(2)]
    for e in range(2):
        for nt in range(2):
            for r in range(4):
                k.cmul(tr[r], ti[r], Vr[e][nt][r], Vi[e][nt][r], twc[nt][r], tws[nt][r], True)
            pack4(k, B[nt], tr, ti)
            k.mfma(D[e][nt], A2, B[nt], Ci[e])
    k.V.free(tr, ti, *B, *Ci, A2, *H, *twc, *tws, *A, *Vr[0], *Vr[1], *Vi[0], *Vi[1])
    X = [k.v(4, 2) for _ in range(2)]
    vr = k.v()
    tv = k.v()
    if first:
        k(f"v_lshrrev_b32 {tv}, 2, {n}")
        k(f"v_and_b32 {vr}, 1, {tv}")
        k(f"v_lshlrev_b32 {vr}, 10, {vr}")
        k(f"v_lshrrev_b32 {tv}, 1, {tv}")
        k(f"v_lshl_add_u32 {vr}, {tv}, 6, {vr}")
        k(f"v_and_b32 {tv}, 3, {n}")
        k(f"v_lshl_add_u32 {vr}, {tv}, 3, {vr}")
        k(f"v_lshl_add_u32 {vr}, {g}, 8, {vr}")
        k(f"v_add_u32 {vr}, {lb}, {vr}")
        k("s_waitcnt vmcnt(0)")
        for nt in range(2):
            for r in (0, 2):
                k(f"ds_read_b64_tr_b16 {X[nt][r:r + 2]}, {vr} offset:{nt * 32 + r * 64}")
    else:
        k(f"v_lshlrev_b32 {vr}, 11, {g}")
        k(f"v_lshl_add_u32 {vr}, {n}, 4, {vr}")
        k(f"s_lshl_b32 {t0}, {wv}, 2")
        k(f"s_add_u32 {t0}, {t0}, {LDS_X}")
        k(f"v_add_u32 {vr}, {t0}, {vr}")
        k("s_waitcnt vmcnt(0)")
        k("s_barrier")
        for nt in range(2):
            for r in range(4):
                k(f"ds_read_b32 {X[nt][r]}, {vr} offset:{nt * 256 + r * 512}")
    Sp, Qp = k.v(2, 2), k.v(2, 2)
    XF = [[k.v(2, 2) for _ in range(4)] for _ in range(2)]
    yp, xp = k.v(2, 2), k.v(2, 2)
    for nt in range(2):
        for r in range(4):
            k.pk(tv, D[0][nt][r], D[1][nt][r])
            unpack2(k, yp, tv)
            unpack2(k, xp, X[nt][r])
            k(f"v_pk_add_f32 {yp}, {yp}, {xp}")
            k.pk(X[nt][r], yp[0], yp[1])
            unpack2(k, XF[nt][r], X[nt][r])
            if nt == 0 and r == 0:
                k(f"v_pk_mul_f32 {Qp}, {XF[nt][r]}, {XF[nt][r]}")
                k(f"v_mov_b32 {Sp[0]}, {XF[nt][r][0]}")
                k(f"v_mov_b32 {Sp[1]}, {XF[nt][r][1]}")
            else:
                k(f"v_pk_fma_f32 {Qp}, {XF[nt][r]}, {XF[nt][r]}, {Qp}")
                k(f"v_pk_add_f32 {Sp}, {Sp}, {XF[nt][r]}")
    k.V.free(*D[0], *D[1])
    R = k.reduce4([Sp[0], Sp[1], Qp[0], Qp[1]])
    k(f"v_add_f32_dpp {R}, {R}, {R} quad_perm:[1,0,3,2] row_mask:0xf bank_mask:0xf")
    R2 = Qp[1]
    k(f"v_mov_b32 {R2}, {R}")
    k(f"v_permlane16_swap_b32 {R}, {R2}")
    mbf, rstd = k.ln_finish(R, R2, tv)
    sm, sr = k.s(2), k.s(2)
    for e in range(2):
        k(f"v_readlane_b32 {sm[e]}, {mbf}, {32 * e}")
        k(f"v_readlane_b32 {sr[e]}, {rstd}, {32 * e}")
    vw = k.v()
    k(f"v_lshlrev_b32 {vw}, 11, {g}")
    k(f"v_lshl_add_u32 {vw}, {n}, 4, {vw}")
    k(f"s_lshl_b32 {t0}, {wv}, 2")
    k(f"v_add_u32 {vw}, {t0}, {vw}")
    for nt in range(2):
        for r in range(4):
            k(f"v_pk_add_f32 {yp}, {XF[nt][r]}, {sm} neg_lo:[0,1] neg_hi:[0,1]")
            k.pk(tv, yp[0], yp[1])
            unpack2(k, yp, tv)
            k(f"v_pk_mul_f32 {yp}, {yp}, {sr}")
            k.pk(tv, yp[0], yp[1])
            k(f"ds_write_b32 {vw}, {tv} offset:{nt * 256 + r * 512}")
            k(f"ds_write_b32 {vw}, {X[nt][r]} offset:{8192 + nt * 256 + r * 512}")
    k("s_barrier")
    vl, vg = k.v(), k.v()
    k(f"v_lshrrev_b32 {tv}, 2, v0")
    k(f"v_lshlrev_b32 {vl}, 5, {tv}")
    k(f"v_lshlrev_b32 {vg}, 14, {tv}")
    k(f"v_and_b32 {tv}, 1, v0")
    k(f"v_lshl_add_u32 {vl}, {tv}, 4, {vl}")
    k(f"v_bfe_u32 {tv}, v0, 1, 1")
    k(f"v_lshl_add_u32 {vl}, {tv}, 13, {vl}")
    k(f"v_and_b32 {tv}, 3, v0")
    k(f"v_lshl_add_u32 {vg}, {tv}, 4, {vg}")
    k(f"s_lshl_b32 {t0}, {bs}, 9")
    k(f"s_lshl_b32 {t1}, {a8}, 6")
    k(f"s_add_u32 {t0}, {t0}, {t1}")
    O = [k.v(4, 2) for _ in range(4)]
    for i in range(4):
        k(f"ds_read_b128 {O[i]}, {vl} offset:{i * 2048}")
    for i in range(4):
        k(f"s_add_u32 {zo[i]}, {t0}, {i * 64 * 16384}")
        k(f"buffer_store_dwordx4 {O[i]}, {vg}, {so}, {zo[i]} offen")
    k.end()
    return k


def gen_f1_shift(k, n, g, wv, tmp):
    C = [k.v(4, 2) for _ in range(2)]
    S = [k.v(4, 2) for _ in range(2)]
    ang, c0, c1, s0, s1 = tmp
    lf, sf = k.v(), k.v()
    w16 = k.s()
    k(f"s_lshl_b32 {w16}, {wv}, 4")
    k(f"v_add_u32 {lf}, {w16}, {n}")
    k.cvtf(lf, lf)
    k(f"v_add_f32 {lf}, {fhex(-0.25)}, {lf}")
    k(f"v_mul_f32 {lf}, {fhex(1 / 64)}, {lf}")
    k(f"v_lshlrev_b32 {sf}, 3, {g}")
    k.cvtf(sf, sf)
    cs = [(c0, s0), (c1, s1)]
    for q in range(2):
        for jp in range(4):
            for e in range(2):
                k(f"v_add_f32 {ang}, {fhex(32 * q + 2 * jp + e)}, {sf}")
                k(f"v_mul_f32 {ang}, {ang}, {lf}")
                k(f"v_cos_f32 {cs[e][0]}, {ang}")
                k(f"v_sin_f32 {cs[e][1]}, -{ang}")
            k.pk(C[q][jp], c0, c1)
            k.pk(S[q][jp], s0, s1)
    k.V.free(lf, sf)
    k.S.free(w16)
    return C, S


def gen_i2_shift(k, n, g, wv, tmp):
    A = [k.v(4, 2) for _ in range(4)]
    ang, c0, c1, s0, s1 = tmp
    lf, sf = k.v(), k.v()
    w16 = k.s()
    k(f"s_lshl_b32 {w16}, {wv}, 4")
    k(f"v_add_u32 {lf}, {w16}, {n}")
    k.cvtf(lf, lf)
    k(f"v_mul_f32 {lf}, {fhex(1 / 64)}, {lf}")
    k(f"v_lshlrev_b32 {sf}, 2, {g}")
    k.cvtf(sf, sf)
    cs = [(c0, s0), (c1, s1)]
    for kq in range(4):
        for jp in range(2):
            for e in range(2):
                k(f"v_add_f32 {ang}, {fhex(16 * kq + 2 * jp + e - 0.25)}, {sf}")
                k(f"v_mul_f32 {ang}, {ang}, {lf}")
                k(f"v_cos_f32 {cs[e][0]}, {ang}")
                k(f"v_sin_f32 {cs[e][1]}, -{ang}")
            k.pk(A[kq][jp], c0, c1)
            k.pk(A[kq][2 + jp], s0, s1)
    k.V.free(lf, sf)
    k.S.free(w16)
    return A


def xcd_pair(k):
    p, t = k.s(), k.s()
    k(f"s_and_b32 {p}, s2, 7")
    k(f"s_lshl_b32 {p}, {p}, 5")
    k(f"s_lshr_b32 {t}, s2, 3")
    k(f"s_add_u32 {p}, {p}, {t}")
    k.S.free(t)
    return p


KG_ROW = 528
KG_CH = 96 * KG_ROW
KG_KX = 2 * KG_CH
KG_OP = KG_KX + 4096
KG_LDS = KG_OP + 8192


def gen_kg(name):
    k = K(name, 256)
    P = k.prologue(['B_A_re', 'B_A_im', 'B_B_re', 'B_B_im', 'B_C_re', 'B_C_im', 'B_log_dt', 'ws'])
    n, g, lane, wv = k.n16, k.g4, k.lane, k.wv
    k.lds = KG_LDS
    p = xcd_pair(k)
    k("s_waitcnt lgkmcnt(0)")
    so = k.srd(P['ws'], KF_OFF, KF_SZ)
    t0, t1 = k.s(), k.s()
    va = k.v()
    k(f"s_lshl_b32 {t0}, {p}, 9")
    k(f"v_lshlrev_b32 {va}, 1, v0")
    par = {}
    srd = k.s(4)
    for nm in ('B_A_re', 'B_A_im', 'B_B_re', 'B_B_im', 'B_C_re', 'B_C_im'):
        sr = k.srd(P[nm], 0, 512 * 128 * 2)
        par[nm] = k.v()
        k(f"buffer_load_ushort {par[nm]}, {va}, {sr}, {t0} offen")
    sl = k.srd(P['B_log_dt'], 0, 1024)
    ld = k.v()
    k(f"v_lshrrev_b32 {va}, 7, v0")
    k(f"v_lshlrev_b32 {va}, 1, {va}")
    k(f"s_lshl_b32 {t1}, {p}, 2")
    k(f"buffer_load_ushort {ld}, {va}, {sl}, {t1} offen")
    for nm in par:
        k(f"v_lshlrev_b32 {par[nm]}, 16, {par[nm]}")
    k(f"v_lshlrev_b32 {ld}, 16, {ld}")
    L2E = 1.4426950408889634
    hi = struct.unpack('<f', struct.pack('<I', struct.unpack('<I', struct.pack('<f', L2E))[0] & 0xFFFFFF00))[0]
    lo = L2E - hi
    dt, tv, tw = k.v(), k.v(), k.v()
    k(f"v_mul_f32 {tv}, {fhex(hi)}, {ld}")
    k(f"v_mul_f32 {tw}, {fhex(lo * 0.6931471805599453)}, {ld}")
    k(f"v_exp_f32 {tv}, {tv}")
    k(f"v_fma_f32 {dt}, {tv}, {tw}, {tv}")
    k.round_bf16(dt, dt, tv)
    ar, ai = par['B_A_re'], par['B_A_im']
    k(f"v_mul_f32 {ar}, {dt}, {ar}")
    k(f"v_mul_f32 {ai}, {dt}, {ai}")
    br, bi = par['B_B_re'], par['B_B_im']
    k(f"v_mul_f32 {br}, {dt}, {br}")
    k(f"v_mul_f32 {bi}, {dt}, {bi}")
    cc = k.v(2, 2)
    cr, ci = par['B_C_re'], par['B_C_im']
    k(f"v_mul_f32 {cc[0]}, {cr}, {br}")
    k(f"v_mul_f32 {cc[1]}, {cr}, {bi}")
    k(f"v_fma_f32 {cc[0]}, -{ci}, {bi}, {cc[0]}")
    k(f"v_fma_f32 {cc[1]}, {ci}, {br}, {cc[1]}")
    k(f"v_mul_f32 {ar}, {fhex(L2E)}, {ar}")
    k(f"v_mul_f32 {ai}, {fhex(1 / (2 * 3.141592653589793))}, {ai}")

    def seed(l):
        e = k.v(2, 2)
        k(f"v_mul_f32 {tv}, {fhex(l)}, {ar}")
        k(f"v_mul_f32 {tw}, {fhex(l)}, {ai}")
        k(f"v_exp_f32 {tv}, {tv}")
        k(f"v_fract_f32 {tw}, {tw}")
        k(f"v_cos_f32 {e[0]}, {tw}")
        k(f"v_sin_f32 {e[1]}, {tw}")
        k(f"v_mul_f32 {e[0]}, {tv}, {e[0]}")
        k(f"v_mul_f32 {e[1]}, {tv}, {e[1]}")
        return e

    def cstep(dst, z, e, t):
        k(f"v_pk_mul_f32 {t}, {z}, {e} op_sel:[0,0] op_sel_hi:[1,0]")
        k(f"v_pk_fma_f32 {dst}, {z}, {e}, {t} op_sel:[1,1,0] op_sel_hi:[0,1,1] neg_lo:[1,0,0]")
    E1, E4, E32, E128, E512 = seed(1), seed(4), seed(32), seed(128), seed(512)
    zc1, zc2, zr1, zr2 = k.v(2, 2), k.v(2, 2), k.v(2, 2), k.v(2, 2)
    tp = [k.v(2, 2) for _ in range(4)]
    for z in (zc1, zc2):
        k(f"v_mov_b32 {z[0]}, 1.0")
        k(f"v_mov_b32 {z[1]}, 0")
    k(f"v_mov_b32 {zr1[0]}, {cc[0]}")
    k(f"v_mov_b32 {zr1[1]}, {cc[1]}")
    cstep(zr2, cc, E512, tp[0])
    k.V.free(E512, cc, *par.values())
    vw = k.v()
    k(f"v_and_b32 {vw}, 127, v0")
    k(f"v_lshlrev_b32 {vw}, 2, {vw}")
    k(f"v_lshrrev_b32 {tv}, 7, v0")
    k(f"v_mul_u32_u24 {tv}, {KG_CH}, {tv}")
    k(f"v_add_u32 {vw}, {vw}, {tv}")
    R1, C1, R2, C2 = 0, 16 * KG_ROW, 48 * KG_ROW, 64 * KG_ROW
    wr1, wc1, wr2, wc2 = k.v(), k.v(), k.v(), k.v()
    k(f"v_mov_b32 {wr1}, {vw}")
    k(f"v_add_u32 {wc1}, {C1}, {vw}")
    k(f"v_add_u32 {wr2}, {R2}, {vw}")
    k(f"v_add_u32 {wc2}, {C2}, {vw}")
    cnt = k.s()
    k(f"s_mov_b32 {cnt}, 16")
    pkd = [k.v() for _ in range(6)]
    k(f"L_{name}_tab:")
    k.pk(pkd[0], zc1[0], zc1[1])
    k.pk(pkd[1], zc2[0], zc2[1])
    k.pk(pkd[2], zr1[0], f"-{zr1[1]}")
    k.pk(pkd[3], zr2[0], f"-{zr2[1]}")
    k(f"ds_write_b32 {wc1}, {pkd[0]}")
    k(f"ds_write_b32 {wc2}, {pkd[1]}")
    k(f"ds_write_b32 {wr1}, {pkd[2]}")
    k(f"ds_write_b32 {wr2}, {pkd[3]}")
    cstep(zc1, zc1, E1, tp[0])
    cstep(zc2, zc2, E4, tp[1])
    cstep(zr1, zr1, E32, tp[2])
    cstep(zr2, zr2, E128, tp[3])
    k.pk(pkd[4], zc1[0], zc1[1])
    k.pk(pkd[5], zc2[0], zc2[1])
    k(f"ds_write_b32 {wc1}, {pkd[4]} offset:{KG_ROW}")
    k(f"ds_write_b32 {wc2}, {pkd[5]} offset:{KG_ROW}")
    cstep(zc1, zc1, E1, tp[0])
    cstep(zc2, zc2, E4, tp[1])
    k(f"v_add_u32 {wc1}, {2 * KG_ROW}, {wc1}")
    k(f"v_add_u32 {wc2}, {2 * KG_ROW}, {wc2}")
    k(f"v_add_u32 {wr1}, {KG_ROW}, {wr1}")
    k(f"v_add_u32 {wr2}, {KG_ROW}, {wr2}")
    k(f"s_sub_u32 {cnt}, {cnt}, 1")
    k(f"s_cmp_lg_u32 {cnt}, 0")
    k(f"s_cbranch_scc1 L_{name}_tab")
    k.V.free(E1, E4, E32, E128, zc1, zc2, zr1, zr2, *tp, *pkd, vw, wr1, wc1, wr2, wc2)
    tmp = [k.v() for _ in range(5)]
    FC, FS = gen_f1_shift(k, n, g, wv, tmp)
    G = gen_g32(k, n, g, tmp)
    fc, fs, ic, is_ = gen_twiddles(k, n, g, wv, 0.25, tmp)
    k.V.free(*ic, *is_)
    k("s_barrier")
    ch, blk = k.s(), k.s()
    k(f"s_lshr_b32 {ch}, {wv}, 1")
    k(f"s_and_b32 {blk}, {wv}, 1")
    k(f"s_mul_i32 {t0}, {ch}, {KG_CH}")
    k(f"s_mul_i32 {t1}, {blk}, {48 * KG_ROW}")
    k(f"s_add_u32 {t0}, {t0}, {t1}")
    vr = k.v()
    k(f"v_mul_u32_u24 {vr}, {KG_ROW}, {n}")
    k(f"v_lshl_add_u32 {vr}, {g}, 4, {vr}")
    k(f"v_add_u32 {vr}, {t0}, {vr}")
    D = [k.v(4, 2) for _ in range(2)]
    for ks in range(8):
        Ar, B0, B1 = k.v(4, 2), k.v(4, 2), k.v(4, 2)
        k(f"ds_read_b128 {Ar}, {vr} offset:{ks * 64}")
        k(f"ds_read_b128 {B0}, {vr} offset:{16 * KG_ROW + ks * 64}")
        k(f"ds_read_b128 {B1}, {vr} offset:{32 * KG_ROW + ks * 64}")
        k.mfma(D[0], Ar, B0, D[0] if ks else None)
        k.mfma(D[1], Ar, B1, D[1] if ks else None)
        if ks % 2 == 1:
            k.V.free(*held, Ar, B0, B1)
        else:
            held = (Ar, B0, B1)
    k(f"s_lshl_b32 {t0}, {wv}, 10")
    k(f"s_add_u32 {t0}, {t0}, {KG_KX}")
    k(f"v_lshlrev_b32 {vr}, 8, {g}")
    k(f"v_lshl_add_u32 {vr}, {n}, 1, {vr}")
    k(f"v_add_u32 {vr}, {t0}, {vr}")
    for nt in range(2):
        for r in range(4):
            k.pk(tv, D[nt][r], D[nt][r])
            k(f"ds_write_b16 {vr}, {tv} offset:{r * 64 + nt * 32}")
    k.V.free(*D)
    k("s_barrier")
    vb = k.v()
    k(f"v_lshlrev_b32 {vb}, 8, {g}")
    k(f"v_add_u32 {vb}, {vb}, {n}")
    k(f"s_lshl_b32 {t0}, {blk}, 10")
    k(f"v_add_u32 {vb}, {t0}, {vb}")
    kxb = k.s()
    k(f"s_lshl_b32 {kxb}, {ch}, 11")
    k(f"s_add_u32 {kxb}, {kxb}, {KG_KX}")
    c512 = k.s()
    k(f"s_mov_b32 {c512}, 512")
    OPS = [k.v(4, 2) for _ in range(2)]
    for mt in range(2):
        vals = [k.v() for _ in range(8)]
        for j in range(8):
            x = vals[j]
            k(f"v_add_u32 {x}, {16 * mt + 32 * j}, {vb}")
            k.cvtf(x, x)
            k.round_bf16(x, x, tv)
            k(f"v_cvt_u32_f32 {x}, {x}")
            k(f"v_lshrrev_b32 {tv}, 2, {x}")
            k(f"v_add_u32 {tv}, 384, {tv}")
            k(f"v_cmp_gt_u32 vcc, {c512}, {x}")
            k(f"v_cndmask_b32 {x}, {tv}, {x}, vcc")
            k(f"v_lshl_add_u32 {x}, {x}, 1, {kxb}")
            k(f"ds_read_u16 {x}, {x}")
        for jp in range(4):
            k(f"v_lshl_or_b32 {OPS[mt][jp]}, {vals[2 * jp + 1]}, 16, {vals[2 * jp]}")
        k.V.free(*vals)
    k(f"s_lshl_b32 {t0}, {ch}, 12")
    k(f"s_lshl_b32 {t1}, {blk}, 10")
    k(f"s_add_u32 {t0}, {t0}, {t1}")
    k(f"s_add_u32 {t0}, {t0}, {KG_OP}")
    k(f"v_lshlrev_b32 {vr}, 4, {lane}")
    k(f"v_add_u32 {vb}, {t0}, {vr}")
    for mt in range(2):
        k(f"ds_write_b128 {vb}, {OPS[mt]} offset:{mt * 2048}")
    k.V.free(*OPS)
    k("s_barrier")
    vo = k.v()
    k(f"v_lshlrev_b32 {vo}, 7, {n}")
    k(f"v_lshl_add_u32 {vo}, {g}, 4, {vo}")
    k(f"v_add_u32 {vr}, {KG_OP}, {vr}")
    sc = fhex(1.0 / 2048)
    for c in range(2):
        U = [[k.v(4, 2) for _ in range(2)] for _ in range(2)]
        for mt in range(2):
            for q in range(2):
                k(f"ds_read_b128 {U[mt][q]}, {vr} offset:{c * 4096 + mt * 2048 + q * 1024}")
        Dr = [k.v(4, 2) for _ in range(2)]
        Di = [k.v(4, 2) for _ in range(2)]
        for mt in range(2):
            for q in range(2):
                k.mfma(Dr[mt], U[mt][q], FC[q], Dr[mt] if q else None)
                k.mfma(Di[mt], U[mt][q], FS[q], Di[mt] if q else None)
        Er, Ei = mid_pipeline(k, Dr, Di, G, fc, fs, None, None, None, None, None)
        k(f"s_lshl_b32 {t0}, {p}, 14")
        k(f"s_lshl_b32 {t1}, {wv}, 11")
        k(f"s_add_u32 {t0}, {t0}, {t1}")
        k(f"s_add_u32 {t0}, {t0}, {c * 8192}")
        for m2 in range(2):
            for r in range(4):
                k(f"v_mul_f32 {Er[m2][r]}, {sc}, {Er[m2][r]}")
                k(f"v_mul_f32 {Ei[m2][r]}, {sc}, {Ei[m2][r]}")
            pack4(k, U[0][m2], Er[m2], Ei[m2])
            k(f"buffer_store_dwordx4 {U[0][m2]}, {vo}, {so}, {t0} offen offset:{m2 * 64}")
        k.V.free(*U[0], *U[1], *Dr, *Di, *Er, *Ei)
    k.end()
    return k


def gen_cb(name, last):
    k = K(name, 256)
    P = k.prologue(['B_Dskip', 'ws', 'out'] if last else ['B_Dskip', 'ws'])
    n, g, lane, wv = k.n16, k.g4, k.lane, k.wv
    p = xcd_pair(k)
    k("s_waitcnt lgkmcnt(0)")
    su = k.srd(P['ws'], UX_OFF, UX_SZ)
    sk = k.srd(P['ws'], KF_OFF, KF_SZ)
    so = k.srd(P['out'], 0, 2048 * 512 * 2) if last else k.srd(P['ws'], X2_OFF, X2_SZ)
    t0, t1 = k.s(), k.s()
    dsk = k.s()
    k(f"s_lshl_b32 {t0}, {p}, 2")
    k(f"s_load_dword {dsk}, {P['B_Dskip']}, {t0}")
    k.lds = 16384
    ub, ub1 = k.s(), k.s()
    k(f"s_lshl_b32 {ub}, {p}, 14")
    k(f"s_add_u32 {ub1}, {ub}, 8192")
    va = k.v()
    k(f"v_lshlrev_b32 {va}, 9, {n}")
    k(f"v_lshl_add_u32 {va}, {g}, 6, {va}")
    U = [[[k.v(4, 2) for _ in range(2)] for _ in range(2)] for _ in range(2)]
    for c in range(2):
        for mt in range(2):
            for q in range(2):
                k(f"buffer_load_dwordx4 {U[c][mt][q]}, {va}, {su}, {ub1 if mt else ub} offen offset:{q * 256 + c * 16}")
    k.V.free(va)
    vw = k.v()
    k(f"v_lshlrev_b32 {vw}, 7, {n}")
    k(f"v_lshl_add_u32 {vw}, {g}, 4, {vw}")
    k(f"s_lshl_b32 {t0}, {wv}, 11")
    k(f"s_add_u32 {t0}, {t0}, {ub}")
    k(f"s_add_u32 {t1}, {t0}, 8192")
    KF = [[k.v(4, 2) for _ in range(2)] for _ in range(2)]
    for c in range(2):
        for m2 in range(2):
            k(f"buffer_load_dwordx4 {KF[c][m2]}, {vw}, {sk}, {t1 if c else t0} offen offset:{m2 * 64}")
    k.V.free(vw)
    ve = k.v()
    tv = k.v()
    k(f"v_lshlrev_b32 {ve}, 9, {n}")
    k(f"v_lshrrev_b32 {tv}, 1, {g}")
    k(f"v_lshl_add_u32 {ve}, {tv}, 6, {ve}")
    k(f"v_and_b32 {tv}, 1, {g}")
    k(f"v_lshl_add_u32 {ve}, {tv}, 3, {ve}")
    eb = [k.s(), k.s()]
    k(f"s_lshl_b32 {eb[0]}, {wv}, 7")
    k(f"s_add_u32 {eb[0]}, {eb[0]}, {ub}")
    k(f"s_add_u32 {eb[1]}, {eb[0]}, 8192")
    EU = [[k.v(2, 2) for _ in range(2)] for _ in range(2)]
    EX = [[k.v(2, 2) for _ in range(2)] for _ in range(2)]
    for c in range(2):
        for nt in range(2):
            k(f"buffer_load_dwordx2 {EU[c][nt]}, {ve}, {su}, {eb[nt]} offen offset:{c * 16}")
            k(f"buffer_load_dwordx2 {EX[c][nt]}, {ve}, {su}, {eb[nt]} offen offset:{32 + c * 16}")
    k.V.free(ve)
    tmp = [k.v() for _ in range(5)]
    FC, FS = gen_f1_shift(k, n, g, wv, tmp)
    G = gen_g32(k, n, g, tmp)
    fc, fs, ic, is_ = gen_twiddles(k, n, g, wv, 0.25, tmp)
    I2 = gen_i2_shift(k, n, g, wv, tmp)
    k.V.free(*tmp)
    vl, vr = k.v(), k.v()
    k(f"s_lshl_b32 {t0}, {wv}, 11")
    k(f"v_lshlrev_b32 {vr}, 4, {lane}")
    k(f"v_add_u32 {vl}, {t0}, {vr}")
    for c in range(2):
        Dr = [k.v(4, 2) for _ in range(2)]
        Di = [k.v(4, 2) for _ in range(2)]
        for mt in range(2):
            for q in range(2):
                k.mfma(Dr[mt], U[c][mt][q], FC[q], Dr[mt] if q else None)
                k.mfma(Di[mt], U[c][mt][q], FS[q], Di[mt] if q else None)
        XO = [U[c][0][0], U[c][0][1]]
        mid_pipeline(k, Dr, Di, G, fc, fs, KF[c], ic, is_, XO, None)
        for nt in range(2):
            k(f"ds_write_b128 {vl}, {XO[nt]} offset:{c * 8192 + nt * 1024}")
        k.V.free(*Dr, *Di)
    k.V.free(*FC, *FS, *G[0], *G[1], *fc, *fs, *ic, *is_, *KF[0], *KF[1])
    k("s_barrier")
    D = [[k.v(4, 2) for _ in range(2)] for _ in range(2)]
    for c in range(2):
        Y = [[k.v(4, 2) for _ in range(4)] for _ in range(2)]
        for kq in range(4):
            for nt in range(2):
                k(f"ds_read_b128 {Y[nt][kq]}, {vr} offset:{c * 8192 + kq * 2048 + nt * 1024}")
        for nt in range(2):
            for kq in range(4):
                k.mfma(D[c][nt], I2[kq], Y[nt][kq], D[c][nt] if kq else None)
        k.V.free(*Y[0], *Y[1])
    ds2 = k.s(2)
    yp, up = k.v(2, 2), k.v(2, 2)
    O = [k.v(4, 2) for _ in range(2)]
    for c in range(2):
        if c == 0:
            k(f"s_lshl_b32 {ds2[0]}, {dsk}, 16")
        else:
            k(f"s_and_b32 {ds2[0]}, {dsk}, 0xffff0000")
        for nt in range(2):
            for h in range(2):
                k.pk(tv, D[c][nt][2 * h], D[c][nt][2 * h + 1])
                unpack2(k, yp, tv)
                unpack2(k, up, EU[c][nt][h])
                k(f"v_pk_mul_f32 {up}, {up}, {ds2} op_sel_hi:[1,0]")
                k.pk(tv, up[0], up[1])
                unpack2(k, up, tv)
                k(f"v_pk_add_f32 {yp}, {yp}, {up}")
                k.pk(tv, yp[0], yp[1])
                unpack2(k, yp, tv)
                unpack2(k, up, EX[c][nt][h])
                k(f"v_pk_add_f32 {yp}, {yp}, {up}")
                k.pk(O[nt][2 * c + h], yp[0], yp[1])
    if not last:
        vo = k.v()
        k(f"v_lshlrev_b32 {vo}, 8, {n}")
        k(f"v_lshl_add_u32 {vo}, {g}, 4, {vo}")
        k(f"s_lshl_b32 {t0}, {p}, 13")
        k(f"s_lshl_b32 {t1}, {wv}, 6")
        k(f"s_add_u32 {t0}, {t0}, {t1}")
        k(f"s_add_u32 {t1}, {t0}, 4096")
        for nt in range(2):
            k(f"v_permlane16_swap_b32 {O[nt][0]}, {O[nt][2]}")
            k(f"v_permlane16_swap_b32 {O[nt][1]}, {O[nt][3]}")
            k(f"buffer_store_dwordx4 {O[nt]}, {vo}, {so}, {t1 if nt else t0} offen")
    else:
        vo = k.v()
        k(f"v_lshlrev_b32 {vo}, 10, {n}")
        k(f"v_lshl_add_u32 {vo}, {g}, 17, {vo}")
        slo, shi = k.s(), k.s()
        k(f"s_mov_b32 {slo}, 0x05040100")
        k(f"s_mov_b32 {shi}, 0x07060302")
        k(f"s_lshl_b32 {t0}, {p}, 2")
        k(f"s_lshl_b32 {t1}, {wv}, 19")
        k(f"s_add_u32 {t0}, {t0}, {t1}")
        ob = [k.s() for _ in range(8)]
        od = [k.v() for _ in range(8)]
        for nt in range(2):
            for r in range(4):
                i = nt * 4 + r
                k(f"s_add_u32 {ob[i]}, {t0}, {nt * 16384 + r * 32768}")
                k(f"v_perm_b32 {od[i]}, {O[nt][2 + (r >> 1)]}, {O[nt][r >> 1]}, {shi if r & 1 else slo}")
                k(f"buffer_store_dword {od[i]}, {vo}, {so}, {ob[i]} offen")
    k.end()
    return k


KERNELS = {}


def build(names, launches, path):
    ks = []
    seen = {}
    for nm in names:
        kk = KERNELS[nm]()
        seen[nm] = kk
        ks.append(kk.text())
    ls = [(seen[nm].name, seen[nm].nwg, 256, seen[nm].lds) for nm in launches]
    txt = make_file(ks, ls)
    open(path, 'w').write(txt)
    for (nm, body, v, s), kk in zip(ks, seen.values()):
        print(f"{nm}: vgpr={v} sgpr={s} lds={kk.lds} lines={body.count(chr(10))}")


KERNELS['wt'] = lambda: gen_wt()
KERNELS['rf0'] = lambda: gen_rf('rf0_kernel', True)
KERNELS['rf1'] = lambda: gen_rf('rf1_kernel', False)
KERNELS['ca'] = lambda: gen_ca('ca_kernel')
KERNELS['kg'] = lambda: gen_kg('kg_kernel')
KERNELS['cb0'] = lambda: gen_cb('cb0_kernel', False)
KERNELS['cb1'] = lambda: gen_cb('cb1_kernel', True)
KERNELS['ri0'] = lambda: gen_ri('ri0_kernel', True)
KERNELS['ri1'] = lambda: gen_ri('ri1_kernel', False)

if __name__ == '__main__':
    allk = ['wt', 'kg', 'rf0', 'ca', 'ri0', 'cb0', 'rf1', 'ri1', 'cb1']
    build(allk, ['wt', 'kg', 'rf0', 'ca', 'ri0', 'cb0'], 'stage1.s')
    build(allk, ['wt', 'kg', 'rf0', 'ca', 'ri0', 'cb0', 'rf1', 'ca', 'ri1', 'cb1'], 'full.s')
```

```python
import re

REG_RE = re.compile(r'^(-|abs\()?([vsa])(\d+)\)?$')
RNG_RE = re.compile(r'^(-|abs\()?([vsa])\[(\d+):(\d+)\]\)?$')

TRANS = ('v_exp_f32', 'v_log_f32', 'v_rcp_f32', 'v_rsq_f32', 'v_sqrt_f32', 'v_sin_f32', 'v_cos_f32',
         'v_rcp_iflag_f32')
RMW_DST = ('v_fmac_f32', 'v_dot2c_f32_bf16', 'v_pk_fmac_f16', 'v_writelane_b32', 'v_fmac_f32_e32',
           'v_dot2c_f32_bf16_e32')
NO_DST_S = ('s_cmp', 's_waitcnt', 's_barrier', 's_nop', 's_branch', 's_cbranch', 's_setprio', 's_endpgm',
            's_sleep', 's_setreg', 's_bitcmp', 's_sethalt', 's_setpc')


def regs_of(tok):
    tok = tok.strip()
    m = REG_RE.match(tok)
    if m:
        return {(m.group(2), int(m.group(3)))}
    m = RNG_RE.match(tok)
    if m:
        return {(m.group(2), i) for i in range(int(m.group(3)), int(m.group(4)) + 1)}
    if tok == 'vcc':
        return {('s', 106), ('s', 107)}
    if tok == 'vcc_lo':
        return {('s', 106)}
    if tok == 'vcc_hi':
        return {('s', 107)}
    if tok == 'exec':
        return {('s', 126), ('s', 127)}
    if tok == 'exec_lo':
        return {('s', 126)}
    if tok == 'exec_hi':
        return {('s', 127)}
    if tok == 'm0':
        return {('s', 124)}
    return set()


def split_ops(s):
    out, depth, cur = [], 0, ''
    for ch in s:
        if ch in '[(':
            depth += 1
        if ch in '])':
            depth -= 1
        if ch == ',' and depth == 0:
            out.append(cur.strip())
            cur = ''
        else:
            cur += ch
    if cur.strip():
        out.append(cur.strip())
    return out


class Ins:
    __slots__ = ('text', 'mn', 'ops', 'mods', 'kind', 'R', 'W', 'srcA', 'srcB', 'srcC', 'passes', 'dpp',
                 'trans', 'wide_store', 'lds_dma', 'manual')

    def __init__(self, text, manual=False):
        self.text = text
        self.manual = manual
        t = text.split(';')[0].strip()
        self.R, self.W = set(), set()
        self.srcA = self.srcB = self.srcC = set()
        self.passes = 0
        self.dpp = self.trans = self.wide_store = self.lds_dma = False
        if t.endswith(':'):
            self.kind, self.mn, self.ops, self.mods = 'label', t, [], ''
            return
        if t.startswith('.') or not t:
            self.kind, self.mn, self.ops, self.mods = 'dir', t, [], ''
            return
        parts = t.split(None, 1)
        mn = parts[0]
        self.mn = mn
        rest = parts[1] if len(parts) > 1 else ''
        ops = split_ops(rest)
        mods = ''
        if ops:
            last = ops[-1].split(None, 1)
            if len(last) > 1 and not last[0].startswith('vmcnt') and not last[0].startswith('lgkmcnt'):
                ops[-1], mods = last[0], last[1]
        self.ops, self.mods = ops, mods
        base = re.sub(r'_(e32|e64|dpp|sdwa)$', '', mn)
        rg = [regs_of(o) for o in ops]

        def U(idx):
            s = set()
            for i in idx:
                if i < len(rg):
                    s |= rg[i]
            return s
        n = len(ops)
        if base.startswith('v_mfma'):
            self.kind = 'mfma'
            self.W = rg[0]
            self.srcA, self.srcB, self.srcC = rg[1], rg[2], rg[3]
            self.R = rg[1] | rg[2] | rg[3]
            if '16x16x32' in base or '16x16x16' in base:
                self.passes = 4
            elif '32x32x16' in base or '32x32x8' in base:
                self.passes = 8
            else:
                raise ValueError('unmodelled mfma ' + base)
        elif base.startswith('v_'):
            self.kind = 'valu'
            self.trans = base in TRANS
            self.dpp = mn.endswith('_dpp') or any(k in mods for k in ('row_', 'quad_perm', 'wave_'))
            if base.startswith('v_permlane') and 'swap' in base:
                self.W = U([0, 1])
                self.R = U([0, 1])
            elif base.startswith('v_cmp'):
                self.W = rg[0]
                self.R = U(range(1, n))
            elif base in ('v_add_co_u32', 'v_sub_co_u32', 'v_addc_co_u32', 'v_subb_co_u32', 'v_subrev_co_u32'):
                self.W = U([0, 1])
                self.R = U(range(2, n))
            elif base == 'v_cndmask_b32':
                self.W = rg[0]
                self.R = U(range(1, n))
                if n == 3:
                    self.R |= regs_of('vcc')
            else:
                self.W = rg[0]
                self.R = U(range(1, n))
                if base in RMW_DST or self.dpp:
                    self.R |= rg[0]
            if base == 'v_nop':
                self.W, self.R = set(), set()
        elif base.startswith('ds_'):
            self.kind = 'ds'
            if base.startswith('ds_read') or base.startswith('ds_bpermute') or base.startswith('ds_swizzle') \
                    or base.startswith('ds_permute'):
                self.W = rg[0]
                self.R = U(range(1, n))
                if 'd16' in base:
                    self.R |= rg[0]
            else:
                self.R = U(range(n))
        elif base.startswith('buffer_') or base.startswith('global_'):
            self.kind = 'vmem'
            words = mods.split()
            if base in ('buffer_wbl2', 'buffer_inv'):
                pass
            elif 'lds' in words or '_lds_' in base:
                self.lds_dma = True
                self.R = U(range(n)) | regs_of('m0')
            elif '_load' in base:
                self.W = rg[0]
                self.R = U(range(1, n))
                if 'd16' in base:
                    self.R |= rg[0]
            elif '_atomic' in base:
                self.R = U(range(n))
                if 'sc0' in words:
                    self.W = rg[0]
            else:
                self.R = U(range(n))
                self.wide_store = 'x4' in base or 'x3' in base
                if self.wide_store:
                    self.srcA = rg[0] if base.startswith('buffer_') else rg[1]
        elif base.startswith('s_load') or base.startswith('s_buffer_load') or base in ('s_memtime', 's_memrealtime'):
            self.kind = 'smem'
            self.W = rg[0]
            self.R = U(range(1, n))
        elif base.startswith('s_'):
            self.kind = 'salu'
            if any(base.startswith(p) for p in NO_DST_S):
                self.R = U(range(n))
                if base in ('s_cbranch_vccz', 's_cbranch_vccnz'):
                    self.R |= regs_of('vcc')
                if base in ('s_cbranch_execz', 's_cbranch_execnz'):
                    self.R |= regs_of('exec')
            else:
                self.W = rg[0]
                self.R = U(range(1, n))
                if 'saveexec' in base:
                    self.W |= regs_of('exec')
                    self.R |= regs_of('exec')
                if base in ('s_addk_i32', 's_mulk_i32'):
                    self.R |= rg[0]
        else:
            raise ValueError('unmodelled instruction: ' + text)

    @property
    def is_branch(self):
        return self.kind == 'salu' and (self.mn.startswith('s_branch') or self.mn.startswith('s_cbranch')
                                        or self.mn.startswith('s_endpgm') or self.mn.startswith('s_setpc'))


def is_vgpr(r):
    return r[0] in ('v', 'a')


def wait_text(vm, lg):
    parts = []
    if vm is not None:
        parts.append('vmcnt(%d)' % min(vm, 63))
    if lg is not None:
        parts.append('lgkmcnt(%d)' % min(lg, 15))
    return 's_waitcnt ' + ' '.join(parts)


class Asm:
    def __init__(self):
        self.ins = []

    def __call__(self, text, manual=False):
        for line in text.split('\n'):
            line = line.strip()
            if not line or line.startswith(';'):
                continue
            self.ins.append(Ins(line, manual))

    def label(self, name):
        self.ins.append(Ins(name + ':'))

    def insert_waits(self):
        out = []
        vm = []
        lg = []
        saved = {}
        for i in self.ins:
            if i.kind == 'dir':
                out.append(i)
                continue
            if i.manual and i.is_branch and i.ops:
                saved.setdefault(i.ops[0], []).append(([set(d) for d in vm], [(kd, set(d)) for kd, d in lg]))
            if i.manual and i.kind == 'label':
                states = saved.pop(i.mn[:-1], []) + [(vm, lg)]
                dv, dl, anyv, anyl, sm = set(), set(), False, False, False
                for v_, l_ in states:
                    for d in v_:
                        dv |= d
                        anyv = True
                    for kd, d in l_:
                        dl |= d
                        anyl = True
                        sm = sm or kd == 'smem'
                vm = [dv] if anyv else []
                lg = [('smem' if sm else 'ds', dl)] if anyl else []
                out.append(i)
                continue
            touched = i.R | i.W
            need_vm = need_lg = None
            boundary = i.kind == 'label' or i.is_branch
            if boundary and not i.manual:
                idx = [k for k, d in enumerate(vm) if d]
                if idx:
                    need_vm = len(vm) - 1 - max(idx)
                if any(d for _, d in lg):
                    need_lg = 0
            else:
                for k, d in enumerate(vm):
                    if d & touched:
                        c = len(vm) - 1 - k
                        need_vm = c if need_vm is None else min(need_vm, c)
                smem_out = any(kd == 'smem' for kd, _ in lg)
                for k, (kd, d) in enumerate(lg):
                    if d & touched:
                        c = 0 if smem_out else len(lg) - 1 - k
                        need_lg = c if need_lg is None else min(need_lg, c)
                if i.mn == 's_barrier' and lg:
                    need_lg = 0
            if i.mn == 's_waitcnt':
                m = re.search(r'vmcnt\((\d+)\)', i.text)
                if m:
                    c = int(m.group(1))
                    vm = vm[len(vm) - c:] if c < len(vm) else vm
                    if c == 0:
                        vm = []
                m = re.search(r'lgkmcnt\((\d+)\)', i.text)
                if m:
                    c = int(m.group(1))
                    if c == 0:
                        lg = []
                    elif not any(kd == 'smem' for kd, _ in lg):
                        lg = lg[len(lg) - c:] if c < len(lg) else lg
                out.append(i)
                continue
            if need_vm is not None or need_lg is not None:
                if need_vm is not None:
                    need_vm = min(need_vm, 63)
                if need_lg is not None:
                    need_lg = min(need_lg, 15)
                out.append(Ins(wait_text(need_vm, need_lg)))
                if need_vm is not None:
                    vm = vm[len(vm) - need_vm:] if need_vm > 0 else []
                if need_lg is not None:
                    lg = lg[len(lg) - need_lg:] if need_lg > 0 else []
            out.append(i)
            if i.kind == 'vmem':
                vm.append(set(i.W))
            elif i.kind == 'ds':
                lg.append(('ds', set(i.W)))
            elif i.kind == 'smem':
                lg.append(('smem', set(i.W)))
            if boundary and not i.manual:
                vm = [set() for _ in vm]
                lg = [('smem', set())] if lg else []
        self.ins = out

    @staticmethod
    def required(p, c):
        need = 0
        cw_v = {r for r in c.W if is_vgpr(r)}
        cr_v = {r for r in c.R if is_vgpr(r)}
        pw_v = {r for r in p.W if is_vgpr(r)}
        pw_s = {r for r in p.W if r[0] == 's'}
        cr_s = {r for r in c.R if r[0] == 's'}
        if p.kind == 'valu':
            if c.kind == 'mfma' and pw_v & c.R:
                need = max(need, 2)
            if c.kind == 'valu':
                if p.trans and pw_v & cr_v:
                    need = max(need, 1)
                if c.dpp and pw_v & cr_v:
                    need = max(need, 2)
                if c.mn.startswith('v_permlane') and pw_v & cr_v:
                    need = max(need, 2)
                if (c.mn.startswith('v_readlane') or c.mn.startswith('v_readfirstlane')) and pw_v & cr_v:
                    need = max(need, 1)
                if pw_s & cr_s:
                    need = max(need, 4 if (c.mn.startswith('v_readlane') or c.mn.startswith('v_writelane')) else 2)
                if ('op_sel' in p.mods and not p.mn.startswith('v_pk_')) or 'dst_sel' in p.mods:
                    if pw_v & (cr_v | cw_v):
                        need = max(need, 1)
            if c.kind == 'vmem' and pw_s & cr_s:
                need = max(need, 5)
            if c.kind in ('salu', 'smem') and pw_s & cr_s:
                need = max(need, 4)
            if p.trans and c.kind in ('vmem', 'ds') and pw_v & cr_v:
                need = max(need, 1)
        if p.kind == 'mfma':
            n = p.passes
            if c.kind == 'mfma':
                if p.W & (c.srcA | c.srcB):
                    need = max(need, {4: 8, 8: 12}[n])
                if p.W & c.srcC:
                    if not (p.W == c.srcC and p.passes == c.passes):
                        need = max(need, {4: 6, 8: 10}[n])
                elif p.W & c.W:
                    need = max(need, {4: 8, 8: 12}[n])
            elif c.kind in ('valu', 'vmem', 'ds'):
                if p.W & (cr_v | cw_v):
                    need = max(need, {4: 8, 8: 12}[n])
                if p.srcC & cw_v:
                    need = max(need, {4: 3, 8: 7}[n])
        if p.kind == 'vmem' and p.wide_store and c.kind in ('valu', 'mfma', 'ds', 'vmem'):
            if p.srcA & cw_v:
                need = max(need, 2)
        if p.kind == 'salu' and ('s', 124) in p.W and (c.lds_dma or 'addtid' in c.mn):
            need = max(need, 1)
        if p.kind == 'salu' and pw_s & regs_of('exec') and c.kind == 'valu' and c.dpp:
            need = max(need, 1)
        return need

    @staticmethod
    def residual(p):
        if p.kind == 'mfma':
            return {4: 8, 8: 12}[p.passes]
        if p.kind == 'valu':
            if any(r[0] == 's' for r in p.W):
                return 5
            return 2 if p.W else 0
        if p.kind == 'vmem' and p.wide_store:
            return 2
        if p.kind == 'salu' and ('s', 124) in p.W:
            return 1
        return 0

    def insert_nops(self):
        out = []
        hist = []
        for i in self.ins:
            if i.kind == 'dir':
                out.append(i)
                continue
            need = 0
            if i.kind == 'label' or (i.is_branch and not i.mn.startswith('s_endpgm')):
                extra = 1 if i.kind != 'label' else 0
                for p, d in hist:
                    need = max(need, self.residual(p) - d - extra)
            else:
                for p, d in hist:
                    need = max(need, self.required(p, i) - d)
            while need > 0:
                k = min(need, 16)
                out.append(Ins('s_nop %d' % (k - 1)))
                hist = [(p, d + k) for p, d in hist]
                need -= k
            out.append(i)
            if i.kind == 'label':
                hist = []
                continue
            step = 1
            if i.mn == 's_nop':
                step = int(i.ops[0]) + 1
            hist = [(p, d + step) for p, d in hist if d + step < 24]
            hist.append((i, 0))
        self.ins = out

    def finish(self):
        self.insert_waits()
        self.insert_nops()
        lines = []
        for i in self.ins:
            lines.append(i.text if i.kind in ('label', 'dir') else '    ' + i.text)
        return '\n'.join(lines) + '\n'

    def count(self):
        return sum(1 for i in self.ins if i.kind not in ('label', 'dir'))


class Regs:
    def __init__(self, prefix, first, limit):
        self.p, self.limit = prefix, limit
        self.used = set(range(first))
        self.hi = first

    def alloc(self, n=1, align=None):
        if align is None:
            align = 1 if n == 1 else (2 if self.p == 'v' else (2 if n == 2 else 4))
        b = 0
        while True:
            b = (b + align - 1) // align * align
            if all((b + k) not in self.used for k in range(n)):
                break
            b += 1
        if b + n > self.limit:
            raise RuntimeError('out of %s registers' % self.p)
        self.used |= set(range(b, b + n))
        self.hi = max(self.hi, b + n)
        return Reg(self.p, b, n)

    def free(self, *rs):
        for r in rs:
            self.used -= set(range(r.b, r.b + r.n))


class Reg:
    def __init__(self, p, b, n):
        self.p, self.b, self.n = p, b, n

    def __str__(self):
        return '%s%d' % (self.p, self.b) if self.n == 1 else '%s[%d:%d]' % (self.p, self.b, self.b + self.n - 1)

    def __getitem__(self, k):
        if isinstance(k, slice):
            st = k.start or 0
            en = self.n if k.stop is None else k.stop
            assert 0 <= st < en <= self.n, (st, en, self.n)
            return Reg(self.p, self.b + st, en - st)
        assert 0 <= k < self.n, (k, self.n)
        return Reg(self.p, self.b + k, 1)

    def __format__(self, spec):
        return str(self)
```

```python
import struct
import sys
from common import *

X1_OFF, X1_SZ = 0x0000000, 257 * 8192
Z_OFF, Z_SZ = 0x0400000, 257 * 8192
WT_OFF, WT_SZ = 0x0800000, 257 * 8192
UX_OFF, UX_SZ = 0x0C00000, 256 * 16384
X2_OFF, X2_SZ = 0x1000000, 256 * 8192
KF_OFF, KF_SZ = 0x1400000, 512 * 8192
OOB = 0x7FFFFFF0
TS_OFF = 0x2000000
STAMPS = False


def fhex(x):
    return '0x%08x' % struct.unpack('<I', struct.pack('<f', x))[0]


class K:
    def __init__(self, name, nwg, vlimit=256):
        self.name, self.nwg = name, nwg
        self.a = Asm()
        self.V = Regs('v', 1, vlimit)
        self.S = Regs('s', 4, 100)
        self.lds = 0
        self.uid = 0
        self.stamps = []

    def __call__(self, t, **kw):
        self.a(t, **kw)

    def v(self, n=1, align=None):
        return self.V.alloc(n, align)

    def s(self, n=1, align=None):
        return self.S.alloc(n, align)

    def prologue(self, ptrs):
        self(f"s_cmp_ge_u32 s2, {self.nwg}")
        self(f"s_cbranch_scc1 L_{self.name}_end")
        self.stamp()
        out = {}
        for p in ptrs:
            r = self.s(2)
            self(f"s_load_dwordx2 {r}, s[0:1], {KA[p]}")
            out[p] = r
        self.lane = self.v()
        self.n16 = self.v()
        self.g4 = self.v()
        self.wv = self.s()
        t = self.v()
        self(f"v_lshrrev_b32 {t}, 6, v0")
        self(f"v_and_b32 {self.lane}, 63, v0")
        self(f"v_readfirstlane_b32 {self.wv}, {t}")
        self(f"v_and_b32 {self.n16}, 15, v0")
        self(f"v_lshrrev_b32 {self.g4}, 4, {self.lane}")
        self.V.free(t)
        return out

    def srd(self, ptr, off, size):
        r = self.s(4)
        if off:
            self(f"s_add_u32 {r[0]}, {ptr[0]}, {hex(off)}")
            self(f"s_addc_u32 {r[1]}, {ptr[1]}, 0")
        else:
            self(f"s_mov_b32 {r[0]}, {ptr[0]}")
            self(f"s_mov_b32 {r[1]}, {ptr[1]}")
        self(f"s_mov_b32 {r[2]}, {hex(size)}")
        self(f"s_mov_b32 {r[3]}, 0x20000")
        return r

    def stamp(self, wait=None):
        if not STAMPS:
            return
        if wait:
            self(wait)
        r = self.s(2)
        self(f"s_memrealtime {r}")
        self.stamps.append(r)

    def end(self):
        if STAMPS:
            self.stamp("s_waitcnt vmcnt(0)")
            pw, pd = self.s(2), self.s(2)
            self(f"s_load_dwordx2 {pw}, s[0:1], {KA['ws']}")
            self(f"s_load_dwordx2 {pd}, s[0:1], {KA['debug']}")
            self("s_waitcnt lgkmcnt(0)")
            self(f"s_lshr_b32 {pd[0]}, {pd[0]}, 9")
            self(f"s_and_b32 {pd[0]}, {pd[0]}, 31")
            self(f"s_lshl_b32 {pd[0]}, {pd[0]}, 15")
            self(f"s_lshl_b32 {pd[1]}, s2, 6")
            self(f"s_add_u32 {pd[0]}, {pd[0]}, {pd[1]}")
            self(f"s_add_u32 {pd[0]}, {pd[0]}, {hex(TS_OFF)}")
            self(f"s_add_u32 {pw[0]}, {pw[0]}, {pd[0]}")
            self(f"s_addc_u32 {pw[1]}, {pw[1]}, 0")
            va, vd = self.v(), self.v()
            self(f"v_mov_b32 {va}, 0")
            self(f"v_cmp_eq_u32 vcc, 0, v0")
            self(f"s_and_saveexec_b64 {pd}, vcc")
            self(f"s_cbranch_execz L_{self.name}_end")
            for i, r in enumerate(self.stamps):
                self(f"v_mov_b32 {vd}, {r[0]}")
                self(f"global_store_dword {va}, {vd}, {pw} offset:{4 * i}")
        self(f"L_{self.name}_end:")
        self("s_endpgm")

    def text(self):
        return (self.name, self.a.finish(), max(self.V.hi, 8), max(self.S.hi, 16))

    def cvtf(self, dst, src):
        self(f"v_cvt_f32_u32 {dst}, {src}")

    def cossin(self, c, s, ang):
        if c is not None:
            self(f"v_cos_f32 {c}, {ang}")
        if s is not None:
            self(f"v_sin_f32 {s}, {ang}")

    def pk(self, dst, lo, hi):
        self(f"v_cvt_pk_bf16_f32 {dst}, {lo}, {hi}")

    def mfma(self, d, A, B, c=None):
        self(f"v_mfma_f32_16x16x32_bf16 {d}, {A}, {B}, {c if c is not None else 0}")

    def round_bf16(self, dst, src, tmp):
        self(f"v_cvt_pk_bf16_f32 {tmp}, {src}, {src}")
        self(f"v_lshlrev_b32 {dst}, 16, {tmp}")

    def cmul(self, dr, di, ar, ai, c, s, conj):
        self(f"v_mul_f32 {dr}, {ar}, {c}")
        self(f"v_mul_f32 {di}, {ai}, {c}")
        if not conj:
            self(f"v_fma_f32 {dr}, {ai}, {s}, {dr}")
            self(f"v_fma_f32 {di}, -{ar}, {s}, {di}")
        else:
            self(f"v_fma_f32 {dr}, -{ai}, {s}, {dr}")
            self(f"v_fma_f32 {di}, {ar}, {s}, {di}")

    def reduce4(self, q):
        q0, q1, q2, q3 = q
        self(f"v_permlane32_swap_b32 {q0}, {q1}")
        self(f"v_permlane32_swap_b32 {q2}, {q3}")
        self(f"v_add_f32 {q0}, {q0}, {q1}")
        self(f"v_add_f32 {q2}, {q2}, {q3}")
        self(f"v_permlane16_swap_b32 {q0}, {q2}")
        self(f"v_add_f32 {q0}, {q0}, {q2}")
        self(f"v_add_f32_dpp {q0}, {q0}, {q0} row_ror:8 row_mask:0xf bank_mask:0xf")
        self(f"v_add_f32_dpp {q0}, {q0}, {q0} row_ror:4 row_mask:0xf bank_mask:0xf")
        self(f"v_add_f32_dpp {q0}, {q0}, {q0} quad_perm:[2,3,0,1] row_mask:0xf bank_mask:0xf")
        return q0

    def ln_finish(self, S, Q, tmp):
        mean, t = S, tmp
        self(f"v_mul_f32 {mean}, {fhex(1 / 512)}, {S}")
        self(f"v_mul_f32 {Q}, {fhex(1 / 512)}, {Q}")
        self(f"v_fma_f32 {Q}, -{mean}, {mean}, {Q}")
        self(f"v_max_f32 {Q}, 0, {Q}")
        self.round_bf16(mean, mean, t)
        self.round_bf16(Q, Q, t)
        self(f"v_add_f32 {Q}, {fhex(1e-5)}, {Q}")
        self.round_bf16(Q, Q, t)
        self(f"v_sqrt_f32 {Q}, {Q}")
        self.round_bf16(Q, Q, t)
        self(f"v_rcp_f32 {Q}, {Q}")
        return mean, Q


ROWLANE = [0, 32, 16, 48]


def gen_wt(name='wt_kernel'):
    k = K(name, 256)
    P = k.prologue(['A_w_r', 'A_w_i', 'ws'])
    k1, kb = k.s(), k.s()
    k(f"s_and_b32 {k1}, s2, 63")
    k(f"s_lshr_b32 {kb}, s2, 6")
    base = k.s()
    t = k.s()
    k(f"s_lshl_b32 {t}, {kb}, 9")
    k(f"s_add_u32 {base}, {t}, {k1}")
    k(f"s_mul_i32 {base}, {base}, 514")
    obase = k.s()
    k(f"s_lshl_b32 {obase}, {k1}, 7")
    k(f"s_lshl_b32 {t}, {kb}, 5")
    k(f"s_add_u32 {obase}, {obase}, {t}")
    k("s_waitcnt lgkmcnt(0)")
    sr = k.srd(P['A_w_r'], 0, 2048 * 257 * 2)
    si = k.srd(P['A_w_i'], 0, 2048 * 257 * 2)
    so = k.srd(P['ws'], WT_OFF, WT_SZ)
    soff = [k.s() for _ in range(8)]
    for rho in range(8):
        k(f"s_add_u32 {soff[rho]}, {base}, {rho * 64 * 514}")
    for part in range(2):
        vin, vout = k.v(), k.v()
        d = k.v(8, 4)
        if part == 0:
            k(f"v_lshlrev_b32 {vin}, 1, v0")
            k(f"v_lshlrev_b32 {vout}, 13, v0")
        else:
            k(f"v_cmp_eq_u32 vcc, 0, v0")
            k(f"v_mov_b32 {vin}, {hex(OOB)}")
            k(f"v_mov_b32 {vout}, {hex(OOB)}")
            tmp = k.v()
            k(f"v_mov_b32 {tmp}, 512")
            k(f"v_cndmask_b32 {vin}, {vin}, {tmp}, vcc")
            k(f"v_mov_b32 {tmp}, {256 * 8192}")
            k(f"v_cndmask_b32 {vout}, {vout}, {tmp}, vcc")
        raw = [[k.v() for _ in range(2)] for _ in range(8)]
        for rho in range(8):
            for c, srd in ((0, sr), (1, si)):
                k(f"buffer_load_ushort {raw[rho][c]}, {vin}, {srd}, {soff[rho]} offen")
        for rho in range(0, 8, 2):
            for c in range(2):
                reg = d[(rho >> 2) * 4 + c * 2 + ((rho & 3) >> 1)]
                k(f"v_lshl_or_b32 {reg}, {raw[rho + 1][c]}, 16, {raw[rho][c]}")
        k(f"buffer_store_dwordx4 {d[0:4]}, {vout}, {so}, {obase} offen")
        k(f"buffer_store_dwordx4 {d[4:8]}, {vout}, {so}, {obase} offen offset:16")
    k.end()
    return k


def gen_rf(name, first):
    k = K(name, 256)
    P = k.prologue(['A_x', 'ws'] if first else ['ws'])
    n, g, lane, wv = k.n16, k.g4, k.lane, k.wv
    bs, a8, rg, kt = k.s(), k.s(), k.s(), k.s()
    k(f"s_and_b32 {bs}, s2, 31")
    k(f"s_lshr_b32 {a8}, s2, 5")
    k(f"s_lshr_b32 {rg}, {wv}, 1")
    k(f"s_and_b32 {kt}, {wv}, 1")
    k("s_waitcnt lgkmcnt(0)")
    so = k.srd(P['ws'], X1_OFF, X1_SZ)
    t0, t1 = k.s(), k.s()
    A = [k.v(4, 2) for _ in range(4)]
    if first:
        k.lds = 16384
        sx = k.srd(P['A_x'], 0, 2048 * 512 * 2)
        k(f"s_lshl_b32 {t0}, {a8}, 8")
        k(f"s_add_u32 {t0}, {t0}, {bs}")
        k(f"s_lshl_b32 {t1}, {rg}, 7")
        k(f"s_add_u32 {t0}, {t0}, {t1}")
        k(f"s_lshl_b32 {t0}, {t0}, 10")
        va = k.v()
        k(f"v_lshlrev_b32 {va}, 4, {lane}")
        lb = k.s()
        k(f"s_lshl_b32 {lb}, {wv}, 12")
        for rho in range(4):
            k(f"s_add_u32 m0, {lb}, {rho * 1024}")
            k(f"s_add_u32 {t1}, {t0}, {rho * 32 * 1024}")
            k(f"buffer_load_dwordx4 {va}, {sx}, {t1} offen lds")
    else:
        k.lds = 8192
        sx = k.srd(P['ws'], X2_OFF, X2_SZ)
        va, vb = k.v(), k.v()
        k(f"v_lshrrev_b32 {va}, 1, v0")
        k(f"v_lshlrev_b32 {va}, 13, {va}")
        k(f"v_and_b32 {vb}, 1, v0")
        k(f"v_lshl_add_u32 {va}, {vb}, 4, {va}")
        k(f"s_lshl_b32 {t0}, {bs}, 8")
        k(f"s_lshl_b32 {t1}, {a8}, 5")
        k(f"s_add_u32 {t0}, {t0}, {t1}")
        lb = k.s()
        k(f"s_lshl_b32 {lb}, {wv}, 10")
        for i in range(2):
            k(f"s_add_u32 m0, {lb}, {i * 4096}")
            k(f"s_add_u32 {t1}, {t0}, {i * 128 * 8192}")
            k(f"buffer_load_dwordx4 {va}, {sx}, {t1} offen lds")
        k.V.free(vb)
    nf, gf, k1f = k.v(), k.v(), k.v()
    k.cvtf(nf, n)
    k.cvtf(gf, g)
    ktf = k.v()
    k(f"s_lshl_b32 {t1}, {kt}, 4")
    k(f"v_add_u32 {ktf}, {t1}, {n}")
    k.cvtf(k1f, ktf)
    B1r, B1i = k.v(4, 2), k.v(4, 2)
    ang = [k.v() for _ in range(2)]
    cs = [k.v() for _ in range(4)]
    u = k.v()
    k(f"v_mul_f32 {u}, {fhex(1 / 32)}, {k1f}")
    base = k.v()
    k(f"v_mul_f32 {base}, 4.0, {gf}")
    for jp in range(4):
        for e in range(2):
            j = 2 * jp + e
            off = j if j < 4 else 16 + j - 4
            k(f"v_add_f32 {ang[e]}, {fhex(off)}, {base}")
            k(f"v_mul_f32 {ang[e]}, {ang[e]}, {u}")
            k(f"v_cos_f32 {cs[e]}, {ang[e]}")
            k(f"v_sin_f32 {cs[2 + e]}, -{ang[e]}")
        k.pk(B1r[jp], cs[0], cs[1])
        k.pk(B1i[jp], cs[2], cs[3])
    twc, tws = k.v(4, 2), k.v(4, 2)
    k(f"v_mul_f32 {u}, {fhex(1 / 512)}, {k1f}")
    for r in range(4):
        k(f"v_add_f32 {ang[0]}, {fhex(r)}, {base}")
        k(f"v_mul_f32 {ang[0]}, {ang[0]}, {u}")
        k.cossin(twc[r], tws[r], ang[0])
    A2 = k.v(4, 2)
    k2f, cq = k.v(), k.v()
    k(f"v_lshrrev_b32 {k2f}, 1, {n}")
    k.cvtf(k2f, k2f)
    k(f"v_mul_f32 {k2f}, {fhex(1 / 16)}, {k2f}")
    k(f"v_and_b32 {cq}, 1, {n}")
    k.cvtf(cq, cq)
    k(f"v_mul_f32 {cq}, 0.25e0, {cq}".replace('0.25e0', fhex(0.25)))
    for jp in range(2):
        for e in range(2):
            k(f"v_add_f32 {ang[e]}, {fhex(2 * jp + e)}, {base}")
            k(f"v_fma_f32 {ang[e]}, {ang[e]}, {k2f}, {cq}")
            k(f"v_cos_f32 {cs[e]}, {ang[e]}")
            k(f"v_sin_f32 {cs[2 + e]}, {ang[e]}")
        k.pk(A2[jp], cs[0], cs[1])
        k.pk(A2[2 + jp], cs[2], cs[3])
    dcm = k.v()
    k(f"v_lshl_add_u32 {dcm}, {ktf}, 2, {g}")
    k(f"v_cmp_eq_u32 vcc, 0, {dcm}")
    k(f"v_cndmask_b32 {dcm}, 0, 1.0, vcc")
    vo = k.v()
    k(f"v_lshl_add_u32 {vo}, {g}, 6, {ktf}")
    k(f"v_lshlrev_b32 {vo}, 13, {vo}")
    ob = k.s()
    k(f"s_lshl_b32 {ob}, {bs}, 8")
    k(f"s_lshl_b32 {t0}, {a8}, 5")
    k(f"s_add_u32 {ob}, {ob}, {t0}")
    k(f"s_lshl_b32 {t0}, {rg}, 4")
    k(f"s_add_u32 {ob}, {ob}, {t0}")
    ob1 = k.s()
    k(f"s_add_u32 {ob1}, {ob}, {32 * 8192}")
    k.V.free(nf, gf, k1f, u, base, k2f, cq, *ang)
    k.stamp()
    vr = k.v()
    if first:
        k(f"v_lshlrev_b32 {vr}, 3, {lane}")
        k(f"v_add_u32 {vr}, {lb}, {vr}")
        k("s_waitcnt vmcnt(0)")
        for rho in range(4):
            k(f"ds_read_b64_tr_b16 {A[rho][0:2]}, {vr} offset:{rho * 1024}")
            k(f"ds_read_b64_tr_b16 {A[rho][2:4]}, {vr} offset:{rho * 1024 + 512}")
    else:
        k(f"v_lshlrev_b32 {vr}, 10, {g}")
        k(f"v_lshl_add_u32 {vr}, {n}, 4, {vr}")
        k(f"s_lshl_b32 {t0}, {rg}, 3")
        k(f"v_add_u32 {vr}, {t0}, {vr}")
        k("s_waitcnt vmcnt(0)")
        k("s_barrier")
        L = [k.v(2, 2) for _ in range(8)]
        for j in range(8):
            dh = j if j < 4 else 16 + j - 4
            k(f"ds_read_b64 {L[j]}, {vr} offset:{dh * 256}")
        slo, shi = k.s(), k.s()
        k(f"s_mov_b32 {slo}, 0x05040100")
        k(f"s_mov_b32 {shi}, 0x07060302")
        for rho in range(4):
            for jp in range(4):
                k(f"v_perm_b32 {A[rho][jp]}, {L[2 * jp + 1][rho >> 1]}, {L[2 * jp][rho >> 1]}, {shi if rho & 1 else slo}")
        k.V.free(*L)
    k.stamp("s_waitcnt lgkmcnt(0)")
    Dr = [k.v(4, 2) for _ in range(4)]
    Di = [k.v(4, 2) for _ in range(4)]
    for rho in range(4):
        k.mfma(Dr[rho], A[rho], B1r)
        k.mfma(Di[rho], A[rho], B1i)
    ones = k.s()
    k(f"s_mov_b32 {ones}, 0x3f803f80")
    Sx = [k.v() for _ in range(4)]
    Qx = [k.v() for _ in range(4)]
    for rho in range(4):
        k(f"v_dot2_f32_bf16 {Sx[rho]}, {A[rho][0]}, {ones}, 0")
        k(f"v_dot2_f32_bf16 {Qx[rho]}, {A[rho][0]}, {A[rho][0]}, 0")
    for jp in range(1, 4):
        for rho in range(4):
            k(f"v_dot2c_f32_bf16 {Sx[rho]}, {ones}, {A[rho][jp]}")
            k(f"v_dot2c_f32_bf16 {Qx[rho]}, {A[rho][jp]}, {A[rho][jp]}")
    Sr = k.reduce4(Sx)
    Qr = k.reduce4(Qx)
    oth, alt = Sx[1], Sx[2]
    k(f"v_mov_b32_dpp {oth}, {Sr} quad_perm:[1,0,3,2] row_mask:0xf bank_mask:0xf")
    k(f"v_add_f32_dpp {Qr}, {Qr}, {Qr} quad_perm:[1,0,3,2] row_mask:0xf bank_mask:0xf")
    k(f"v_sub_f32 {alt}, {Sr}, {oth}")
    k(f"v_add_f32 {Sr}, {Sr}, {oth}")
    mbf, rstd = k.ln_finish(Sr, Qr, Sx[3])
    k(f"v_mul_f32 {mbf}, {fhex(512.0)}, {mbf}")
    k(f"v_mul_f32 {alt}, {alt}, {rstd}")
    s_r = [k.s() for _ in range(4)]
    s_m = [k.s() for _ in range(4)]
    s_a = [k.s() for _ in range(4)]
    for rho in range(4):
        k(f"v_readlane_b32 {s_r[rho]}, {rstd}, {ROWLANE[rho]}")
        k(f"v_readlane_b32 {s_m[rho]}, {mbf}, {ROWLANE[rho]}")
        k(f"v_readlane_b32 {s_a[rho]}, {alt}, {ROWLANE[rho]}")
    D2 = [k.v(4, 2) for _ in range(4)]
    tr, ti = k.v(4, 2), k.v(4, 2)
    B2 = [k.v(4, 2) for _ in range(2)]
    for rho in range(4):
        for r in range(4):
            k.cmul(tr[r], ti[r], Dr[rho][r], Di[rho][r], twc[r], tws[r], False)
        b = B2[rho & 1]
        k.pk(b[0], tr[0], tr[1])
        k.pk(b[1], tr[2], tr[3])
        k.pk(b[2], ti[0], ti[1])
        k.pk(b[3], ti[2], ti[3])
        k.mfma(D2[rho], A2, b)
    k.stamp()
    for rho in range(4):
        k(f"v_fma_f32 {D2[rho][0]}, -{dcm}, {s_m[rho]}, {D2[rho][0]}")
        for r in range(4):
            k(f"v_mul_f32 {D2[rho][r]}, {s_r[rho]}, {D2[rho][r]}")
    O = [k.v(4, 2) for _ in range(2)]
    for e in range(2):
        k.pk(O[e][0], D2[0][2 * e], D2[1][2 * e])
        k.pk(O[e][1], D2[2][2 * e], D2[3][2 * e])
        k.pk(O[e][2], D2[0][2 * e + 1], D2[1][2 * e + 1])
        k.pk(O[e][3], D2[2][2 * e + 1], D2[3][2 * e + 1])
        k(f"buffer_store_dwordx4 {O[e]}, {vo}, {so}, {ob if e == 0 else ob1} offen")
    N4 = k.v(4, 2)
    tt = k.v()
    k(f"v_mov_b32 {tt}, {s_a[0]}")
    k(f"v_cvt_pk_bf16_f32 {N4[0]}, {tt}, {s_a[1]}")
    k(f"v_mov_b32 {tt}, {s_a[2]}")
    k(f"v_cvt_pk_bf16_f32 {N4[1]}, {tt}, {s_a[3]}")
    k(f"v_mov_b32 {N4[2]}, 0")
    k(f"v_mov_b32 {N4[3]}, 0")
    vn = k.v()
    k(f"v_cmp_lt_f32 vcc, 0.5, {dcm}")
    k(f"v_mov_b32 {vn}, {hex(OOB)}")
    k(f"v_mov_b32 {tt}, {256 * 8192}")
    k(f"v_cndmask_b32 {vn}, {vn}, {tt}, vcc")
    k(f"buffer_store_dwordx4 {N4}, {vn}, {so}, {ob} offen")
    k.end()
    return k


def cs_blocks(k, blk, lanef, slot0, scale, shift_lane=0.0, shift_slot=0.0, tmp=None):
    ang, c0, c1, s0, s1 = tmp
    cs = [(c0, s0), (c1, s1)]
    for jp in range(2):
        for e in range(2):
            k(f"v_add_f32 {ang}, {fhex(2 * jp + e + shift_slot)}, {slot0}")
            k(f"v_mul_f32 {ang}, {ang}, {lanef}")
            k.cossin(cs[e][0], cs[e][1], ang)
        k.pk(blk[jp], c0, c1)
        k.pk(blk[2 + jp], s0, s1)
    for jp in range(2):
        k(f"v_mov_b32 {blk[4 + jp]}, {blk[jp]}")
        k(f"v_xor_b32 {blk[6 + jp]}, 0x80008000, {blk[2 + jp]}")
        k(f"v_mov_b32 {blk[8 + jp]}, {blk[jp]}")


def op_CS(blk):
    return blk[0:4]


def op_SC(blk):
    return blk[2:6]


def op_CnS(blk):
    return blk[4:8]


def op_nSC(blk):
    return blk[6:10]


def pack4(k, dst, re, im):
    k.pk(dst[0], re[0], re[1])
    k.pk(dst[1], re[2], re[3])
    k.pk(dst[2], im[0], im[1])
    k.pk(dst[3], im[2], im[3])


def gen_g32(k, n, g, tmp):
    G = [[k.v(10, 2) for _ in range(2)] for _ in range(2)]
    lf, sf = k.v(), k.v()
    for t in range(2):
        k(f"v_add_u32 {lf}, {16 * t}, {n}")
        k.cvtf(lf, lf)
        k(f"v_mul_f32 {lf}, {fhex(1 / 32)}, {lf}")
        for q in range(2):
            k(f"v_lshlrev_b32 {sf}, 2, {g}")
            k(f"v_add_u32 {sf}, {16 * q}, {sf}")
            k.cvtf(sf, sf)
            cs_blocks(k, G[t][q], lf, sf, None, tmp=tmp)
    k.V.free(lf, sf)
    return G


def gen_twiddles(k, n, g, wv, shift, tmp):
    fc = [k.v(4, 2) for _ in range(2)]
    fs = [k.v(4, 2) for _ in range(2)]
    ic = [k.v(4, 2) for _ in range(2)]
    is_ = [k.v(4, 2) for _ in range(2)]
    ang = tmp[0]
    w16 = k.s()
    k(f"s_lshl_b32 {w16}, {wv}, 4")
    lf, sf = k.v(), k.v()
    k(f"v_add_u32 {lf}, {w16}, {n}")
    k.cvtf(lf, lf)
    if shift:
        k(f"v_add_f32 {lf}, {fhex(-shift)}, {lf}")
    k(f"v_mul_f32 {lf}, {fhex(1 / 2048)}, {lf}")
    k(f"v_lshlrev_b32 {sf}, 2, {g}")
    k.cvtf(sf, sf)
    for mt in range(2):
        for r in range(4):
            k(f"v_add_f32 {ang}, {fhex(16 * mt + r)}, {sf}")
            k(f"v_mul_f32 {ang}, {ang}, {lf}")
            k.cossin(fc[mt][r], fs[mt][r], ang)
    k(f"v_lshlrev_b32 {sf}, 2, {g}")
    k(f"v_add_u32 {sf}, {w16}, {sf}")
    k.cvtf(sf, sf)
    for nt in range(2):
        k(f"v_add_u32 {lf}, {16 * nt}, {n}")
        k.cvtf(lf, lf)
        k(f"v_mul_f32 {lf}, {fhex(1 / 2048)}, {lf}")
        for r in range(4):
            k(f"v_add_f32 {ang}, {fhex(r - shift)}, {sf}")
            k(f"v_mul_f32 {ang}, {ang}, {lf}")
            k.cossin(ic[nt][r], is_[nt][r], ang)
    k.V.free(lf, sf)
    k.S.free(w16)
    return fc, fs, ic, is_


def mid_pipeline(k, Dr, Di, G, fc, fs, spec, ic, is_, XO, scale):
    tr, ti = k.v(4, 2), k.v(4, 2)
    B = [k.v(4, 2) for _ in range(2)]
    for mt in range(2):
        for r in range(4):
            k.cmul(tr[r], ti[r], Dr[mt][r], Di[mt][r], fc[mt][r], fs[mt][r], False)
        pack4(k, B[mt], tr, ti)
    Er = [k.v(4, 2) for _ in range(2)]
    Ei = [k.v(4, 2) for _ in range(2)]
    for m2 in range(2):
        for q in range(2):
            k.mfma(Er[m2], op_CS(G[m2][q]), B[q], Er[m2] if q else None)
            k.mfma(Ei[m2], op_nSC(G[m2][q]), B[q], Ei[m2] if q else None)
    if spec is None:
        k.V.free(tr, ti, *B)
        return Er, Ei
    wr, wi = k.v(4, 2), k.v(4, 2)
    for m2 in range(2):
        for r in range(4):
            sh = r & 1
            for dst, src in ((wr[r], spec[m2][r >> 1]), (wi[r], spec[m2][2 + (r >> 1)])):
                if sh:
                    k(f"v_and_b32 {dst}, 0xffff0000, {src}")
                else:
                    k(f"v_lshlrev_b32 {dst}, 16, {src}")
        if scale is not None:
            for r in range(4):
                k(f"v_mul_f32 {wr[r]}, {scale}, {wr[r]}")
                k(f"v_mul_f32 {wi[r]}, {scale}, {wi[r]}")
        for r in range(4):
            k.cmul(tr[r], ti[r], Er[m2][r], Ei[m2][r], wr[r], wi[r], True)
        pack4(k, B[m2], tr, ti)
    k.V.free(wr, wi)
    for nt in range(2):
        for q in range(2):
            k.mfma(Er[nt], B[q], op_CnS(G[nt][q]), Er[nt] if q else None)
            k.mfma(Ei[nt], B[q], op_SC(G[nt][q]), Ei[nt] if q else None)
    for nt in range(2):
        for r in range(4):
            k.cmul(tr[r], ti[r], Er[nt][r], Ei[nt][r], ic[nt][r], is_[nt][r], True)
        pack4(k, XO[nt], tr, ti)
    k.V.free(tr, ti, *B, *Er, *Ei)
    return None


def gen_ca(name):
    k = K(name, 257)
    P = k.prologue(['ws'])
    n, g, lane, wv = k.n16, k.g4, k.lane, k.wv
    k("s_waitcnt lgkmcnt(0)")
    sx = k.srd(P['ws'], X1_OFF, X1_SZ)
    sw = k.srd(P['ws'], WT_OFF, WT_SZ)
    so = k.srd(P['ws'], Z_OFF, Z_SZ)
    cb = k.s()
    k(f"s_lshl_b32 {cb}, s2, 13")
    k.lds = 8192
    va = k.v()
    k(f"v_lshlrev_b32 {va}, 8, {n}")
    k(f"v_lshl_add_u32 {va}, {g}, 4, {va}")
    X = [[k.v(4, 2) for _ in range(4)] for _ in range(2)]
    cb1 = k.s()
    k(f"s_add_u32 {cb1}, {cb}, 4096")
    for mt in range(2):
        for q in range(4):
            k(f"buffer_load_dwordx4 {X[mt][q]}, {va}, {sx}, {cb1 if mt else cb} offen offset:{q * 64}")
    vw = k.v()
    t0 = k.s()
    k(f"s_lshl_b32 {t0}, {wv}, 11")
    k(f"s_add_u32 {t0}, {t0}, {cb}")
    k(f"v_lshlrev_b32 {vw}, 7, {n}")
    k(f"v_lshl_add_u32 {vw}, {g}, 4, {vw}")
    W = [k.v(4, 2) for _ in range(2)]
    for m2 in range(2):
        k(f"buffer_load_dwordx4 {W[m2]}, {vw}, {sw}, {t0} offen offset:{m2 * 64}")
    k.V.free(vw)
    sc = k.s()
    k(f"s_mov_b32 {sc}, {fhex(2.0 / (2048 * 512))}")
    k(f"s_and_b32 {t0}, s2, 255")
    k(f"s_cmp_eq_u32 {t0}, 0")
    k(f"s_cselect_b32 {sc}, {fhex(1.0 / (2048 * 512))}, {sc}")
    tmp = [k.v() for _ in range(5)]
    F = [k.v(10, 2) for _ in range(4)]
    lf, sf = k.v(), k.v()
    w16 = k.s()
    k(f"s_lshl_b32 {w16}, {wv}, 4")
    k(f"v_add_u32 {lf}, {w16}, {n}")
    k.cvtf(lf, lf)
    k(f"v_mul_f32 {lf}, {fhex(1 / 64)}, {lf}")
    for q in range(4):
        k(f"v_lshlrev_b32 {sf}, 2, {g}")
        k(f"v_add_u32 {sf}, {16 * q}, {sf}")
        k.cvtf(sf, sf)
        cs_blocks(k, F[q], lf, sf, None, tmp=tmp)
    k.V.free(lf, sf)
    G = gen_g32(k, n, g, tmp)
    fc, fs, ic, is_ = gen_twiddles(k, n, g, wv, 0.0, tmp)
    k.V.free(*tmp)
    k.stamp()
    k.stamp("s_waitcnt vmcnt(0)")
    Dr = [k.v(4, 2) for _ in range(2)]
    Di = [k.v(4, 2) for _ in range(2)]
    for mt in range(2):
        for q in range(4):
            k.mfma(Dr[mt], X[mt][q], op_CS(F[q]), Dr[mt] if q else None)
            k.mfma(Di[mt], X[mt][q], op_nSC(F[q]), Di[mt] if q else None)
    XO = [X[0][0], X[0][1]]
    mid_pipeline(k, Dr, Di, G, fc, fs, W, ic, is_, XO, sc)
    k.stamp()
    vl, vr = k.v(), k.v()
    k(f"s_lshl_b32 {t0}, {wv}, 11")
    k(f"v_lshlrev_b32 {vr}, 4, {lane}")
    k(f"v_add_u32 {vl}, {t0}, {vr}")
    for nt in range(2):
        k(f"ds_write_b128 {vl}, {XO[nt]} offset:{nt * 1024}")
    k("s_barrier")
    Y = [[X[nt][kq] for kq in range(4)] for nt in range(2)]
    for kq in range(4):
        for nt in range(2):
            k(f"ds_read_b128 {Y[nt][kq]}, {vr} offset:{kq * 2048 + nt * 1024}")
    for nt in range(2):
        for kq in range(4):
            k.mfma(Dr[nt], op_CnS(F[kq]), Y[nt][kq], Dr[nt] if kq else None)
            k.mfma(Di[nt], op_SC(F[kq]), Y[nt][kq], Di[nt] if kq else None)
    k.stamp()
    k(f"s_lshl_b32 {t0}, {wv}, 6")
    k(f"s_add_u32 {t0}, {t0}, {cb}")
    t1 = k.s()
    k(f"s_add_u32 {t1}, {t0}, 4096")
    O = [W[0], W[1]]
    for nt in range(2):
        k.pk(O[nt][0], Dr[nt][0], Dr[nt][1])
        k.pk(O[nt][1], Di[nt][0], Di[nt][1])
        k.pk(O[nt][2], Dr[nt][2], Dr[nt][3])
        k.pk(O[nt][3], Di[nt][2], Di[nt][3])
        k(f"buffer_store_dwordx4 {O[nt]}, {va}, {so}, {t1 if nt else t0} offen")
    k.end()
    return k


def unpack2(k, pair, dw):
    k(f"v_lshlrev_b32 {pair[0]}, 16, {dw}")
    k(f"v_and_b32 {pair[1]}, 0xffff0000, {dw}")


def gen_ri(name, first):
    k = K(name, 256)
    P = k.prologue(['A_x', 'ws'] if first else ['ws'])
    n, g, lane, wv = k.n16, k.g4, k.lane, k.wv
    bs, a8 = k.s(), k.s()
    k(f"s_and_b32 {bs}, s2, 31")
    k(f"s_lshr_b32 {a8}, s2, 5")
    k("s_waitcnt lgkmcnt(0)")
    sz = k.srd(P['ws'], Z_OFF, Z_SZ)
    so = k.srd(P['ws'], UX_OFF, UX_SZ)
    t0, t1 = k.s(), k.s()
    zb = k.s()
    k(f"s_lshl_b32 {zb}, {bs}, 8")
    k(f"s_lshl_b32 {t0}, {a8}, 5")
    k(f"s_add_u32 {zb}, {zb}, {t0}")
    k(f"s_lshl_b32 {t0}, {wv}, 3")
    k(f"s_add_u32 {zb}, {zb}, {t0}")
    vz = k.v()
    k(f"v_lshl_add_u32 {vz}, {g}, 6, {n}")
    k(f"v_lshlrev_b32 {vz}, 13, {vz}")
    L = [k.v(2, 2) for _ in range(4)]
    zo = [k.s() for _ in range(4)]
    for e in range(4):
        k(f"s_add_u32 {zo[e]}, {zb}, {e * 16 * 8192}")
        k(f"buffer_load_dwordx2 {L[e]}, {vz}, {sz}, {zo[e]} offen")
    z256 = k.v()
    k(f"v_mov_b32 {vz}, {256 * 8192}")
    k(f"buffer_load_dword {z256}, {vz}, {sz}, {zb} offen")
    k.V.free(vz)
    LDS_X = 16384
    k.lds = 16384 + 8192
    va = k.v()
    lb = k.s()
    if first:
        sx = k.srd(P['A_x'], 0, 2048 * 512 * 2)
        k(f"s_lshl_b32 {t0}, {a8}, 8")
        k(f"s_add_u32 {t0}, {t0}, {bs}")
        k(f"s_lshl_b32 {t1}, {wv}, 6")
        k(f"s_add_u32 {t0}, {t0}, {t1}")
        k(f"s_lshl_b32 {t0}, {t0}, 10")
        k(f"v_lshlrev_b32 {va}, 4, {lane}")
        k(f"s_lshl_b32 {lb}, {wv}, 11")
        k(f"s_add_u32 {lb}, {lb}, {LDS_X}")
        for e in range(2):
            k(f"s_add_u32 m0, {lb}, {e * 1024}")
            k(f"s_add_u32 {t1}, {t0}, {e * 32 * 1024}")
            k(f"buffer_load_dwordx4 {va}, {sx}, {t1} offen lds")
    else:
        sx = k.srd(P['ws'], X2_OFF, X2_SZ)
        vb = k.v()
        k(f"v_lshrrev_b32 {va}, 1, v0")
        k(f"v_lshlrev_b32 {va}, 13, {va}")
        k(f"v_and_b32 {vb}, 1, v0")
        k(f"v_lshl_add_u32 {va}, {vb}, 4, {va}")
        k(f"s_lshl_b32 {t0}, {bs}, 8")
        k(f"s_lshl_b32 {t1}, {a8}, 5")
        k(f"s_add_u32 {t0}, {t0}, {t1}")
        k(f"s_lshl_b32 {lb}, {wv}, 10")
        k(f"s_add_u32 {lb}, {lb}, {LDS_X}")
        for i in range(2):
            k(f"s_add_u32 m0, {lb}, {i * 4096}")
            k(f"s_add_u32 {t1}, {t0}, {i * 128 * 8192}")
            k(f"buffer_load_dwordx4 {va}, {sx}, {t1} offen lds")
        k.V.free(vb)
    tmp = [k.v() for _ in range(5)]
    ang = tmp[0]
    H = [k.v(10, 2) for _ in range(2)]
    lf, sf = k.v(), k.v()
    k(f"v_lshlrev_b32 {sf}, 2, {g}")
    k.cvtf(sf, sf)
    twc = [k.v(4, 2) for _ in range(2)]
    tws = [k.v(4, 2) for _ in range(2)]
    for nt in range(2):
        k(f"v_add_u32 {lf}, {16 * nt}, {n}")
        k.cvtf(lf, lf)
        k(f"v_mul_f32 {lf}, {fhex(1 / 32)}, {lf}")
        cs_blocks(k, H[nt], lf, sf, None, tmp=tmp)
        k(f"v_mul_f32 {lf}, {fhex(1 / 16)}, {lf}")
        for r in range(4):
            k(f"v_add_f32 {ang}, {fhex(r)}, {sf}")
            k(f"v_mul_f32 {ang}, {ang}, {lf}")
            k.cossin(twc[nt][r], tws[nt][r], ang)
    A2 = k.v(4, 2)
    k.cvtf(lf, n)
    k(f"v_mul_f32 {lf}, {fhex(1 / 16)}, {lf}")
    for jp in range(2):
        for e in range(2):
            k(f"v_add_f32 {ang}, {fhex(2 * jp + e)}, {sf}")
            k(f"v_mul_f32 {ang}, {ang}, {lf}")
            k(f"v_cos_f32 {tmp[1 + e]}, {ang}")
            k(f"v_sin_f32 {tmp[3 + e]}, -{ang}")
        k.pk(A2[jp], tmp[1], tmp[2])
        k.pk(A2[2 + jp], tmp[3], tmp[4])
    sgn = k.v()
    k(f"v_lshlrev_b32 {sgn}, 31, {n}")
    k.V.free(lf, sf, *tmp)
    k.stamp()
    k.stamp("s_waitcnt vmcnt(0)")
    slo, shi = k.s(), k.s()
    k(f"s_mov_b32 {slo}, 0x05040100")
    k(f"s_mov_b32 {shi}, 0x07060302")
    A = [k.v(4, 2) for _ in range(2)]
    for e in range(2):
        sel = shi if e else slo
        k(f"v_perm_b32 {A[e][0]}, {L[1][0]}, {L[0][0]}, {sel}")
        k(f"v_perm_b32 {A[e][1]}, {L[3][0]}, {L[2][0]}, {sel}")
        k(f"v_perm_b32 {A[e][2]}, {L[1][1]}, {L[0][1]}, {sel}")
        k(f"v_perm_b32 {A[e][3]}, {L[3][1]}, {L[2][1]}, {sel}")
    k.V.free(*L)
    Vr = [[k.v(4, 2) for _ in range(2)] for _ in range(2)]
    Vi = [[k.v(4, 2) for _ in range(2)] for _ in range(2)]
    for e in range(2):
        for nt in range(2):
            k.mfma(Vr[e][nt], A[e], op_CnS(H[nt]))
            k.mfma(Vi[e][nt], A[e], op_SC(H[nt]))
    Ci = [k.v(4, 2) for _ in range(2)]
    zz = k.v(2, 2)
    unpack2(k, zz, z256)
    for e in range(2):
        k(f"v_xor_b32 {Ci[e][0]}, {sgn}, {zz[e]}")
        for r in range(1, 4):
            k(f"v_mov_b32 {Ci[e][r]}, {Ci[e][0]}")
    k.V.free(zz, z256, sgn)
    D = [[k.v(4, 2) for _ in range(2)] for _ in range(2)]
    tr, ti = k.v(4, 2), k.v(4, 2)
    B = [k.v(4, 2) for _ in range(2)]
    for e in range(2):
        for nt in range(2):
            for r in range(4):
                k.cmul(tr[r], ti[r], Vr[e][nt][r], Vi[e][nt][r], twc[nt][r], tws[nt][r], True)
            pack4(k, B[nt], tr, ti)
            k.mfma(D[e][nt], A2, B[nt], Ci[e])
    k.V.free(tr, ti, *B, *Ci, A2, *H, *twc, *tws, *A, *Vr[0], *Vr[1], *Vi[0], *Vi[1])
    k.stamp()
    X = [k.v(4, 2) for _ in range(2)]
    vr = k.v()
    tv = k.v()
    if first:
        k(f"v_lshrrev_b32 {tv}, 2, {n}")
        k(f"v_and_b32 {vr}, 1, {tv}")
        k(f"v_lshlrev_b32 {vr}, 10, {vr}")
        k(f"v_lshrrev_b32 {tv}, 1, {tv}")
        k(f"v_lshl_add_u32 {vr}, {tv}, 6, {vr}")
        k(f"v_and_b32 {tv}, 3, {n}")
        k(f"v_lshl_add_u32 {vr}, {tv}, 3, {vr}")
        k(f"v_lshl_add_u32 {vr}, {g}, 8, {vr}")
        k(f"v_add_u32 {vr}, {lb}, {vr}")
        k("s_waitcnt vmcnt(0)")
        for nt in range(2):
            for r in (0, 2):
                k(f"ds_read_b64_tr_b16 {X[nt][r:r + 2]}, {vr} offset:{nt * 32 + r * 64}")
    else:
        k(f"v_lshlrev_b32 {vr}, 11, {g}")
        k(f"v_lshl_add_u32 {vr}, {n}, 4, {vr}")
        k(f"s_lshl_b32 {t0}, {wv}, 2")
        k(f"s_add_u32 {t0}, {t0}, {LDS_X}")
        k(f"v_add_u32 {vr}, {t0}, {vr}")
        k("s_waitcnt vmcnt(0)")
        k("s_barrier")
        for nt in range(2):
            for r in range(4):
                k(f"ds_read_b32 {X[nt][r]}, {vr} offset:{nt * 256 + r * 512}")
    Sp, Qp = k.v(2, 2), k.v(2, 2)
    XF = [[k.v(2, 2) for _ in range(4)] for _ in range(2)]
    yp, xp = k.v(2, 2), k.v(2, 2)
    for nt in range(2):
        for r in range(4):
            k.pk(tv, D[0][nt][r], D[1][nt][r])
            unpack2(k, yp, tv)
            unpack2(k, xp, X[nt][r])
            k(f"v_pk_add_f32 {yp}, {yp}, {xp}")
            k.pk(X[nt][r], yp[0], yp[1])
            unpack2(k, XF[nt][r], X[nt][r])
            if nt == 0 and r == 0:
                k(f"v_pk_mul_f32 {Qp}, {XF[nt][r]}, {XF[nt][r]}")
                k(f"v_mov_b32 {Sp[0]}, {XF[nt][r][0]}")
                k(f"v_mov_b32 {Sp[1]}, {XF[nt][r][1]}")
            else:
                k(f"v_pk_fma_f32 {Qp}, {XF[nt][r]}, {XF[nt][r]}, {Qp}")
                k(f"v_pk_add_f32 {Sp}, {Sp}, {XF[nt][r]}")
    k.V.free(*D[0], *D[1])
    R = k.reduce4([Sp[0], Sp[1], Qp[0], Qp[1]])
    k(f"v_add_f32_dpp {R}, {R}, {R} quad_perm:[1,0,3,2] row_mask:0xf bank_mask:0xf")
    R2 = Qp[1]
    k(f"v_mov_b32 {R2}, {R}")
    k(f"v_permlane16_swap_b32 {R}, {R2}")
    mbf, rstd = k.ln_finish(R, R2, tv)
    sm, sr = k.s(2), k.s(2)
    for e in range(2):
        k(f"v_readlane_b32 {sm[e]}, {mbf}, {32 * e}")
        k(f"v_readlane_b32 {sr[e]}, {rstd}, {32 * e}")
    k.stamp()
    vw = k.v()
    k(f"v_lshlrev_b32 {vw}, 11, {g}")
    k(f"v_lshl_add_u32 {vw}, {n}, 4, {vw}")
    k(f"s_lshl_b32 {t0}, {wv}, 2")
    k(f"v_add_u32 {vw}, {t0}, {vw}")
    for nt in range(2):
        for r in range(4):
            k(f"v_pk_add_f32 {yp}, {XF[nt][r]}, {sm} neg_lo:[0,1] neg_hi:[0,1]")
            k.pk(tv, yp[0], yp[1])
            unpack2(k, yp, tv)
            k(f"v_pk_mul_f32 {yp}, {yp}, {sr}")
            k.pk(tv, yp[0], yp[1])
            k(f"ds_write_b32 {vw}, {tv} offset:{nt * 256 + r * 512}")
            k(f"ds_write_b32 {vw}, {X[nt][r]} offset:{8192 + nt * 256 + r * 512}")
    k("s_barrier")
    k.stamp()
    vl, vg = k.v(), k.v()
    k(f"v_lshrrev_b32 {tv}, 2, v0")
    k(f"v_lshlrev_b32 {vl}, 5, {tv}")
    k(f"v_lshlrev_b32 {vg}, 14, {tv}")
    k(f"v_and_b32 {tv}, 1, v0")
    k(f"v_lshl_add_u32 {vl}, {tv}, 4, {vl}")
    k(f"v_bfe_u32 {tv}, v0, 1, 1")
    k(f"v_lshl_add_u32 {vl}, {tv}, 13, {vl}")
    k(f"v_and_b32 {tv}, 3, v0")
    k(f"v_lshl_add_u32 {vg}, {tv}, 4, {vg}")
    k(f"s_lshl_b32 {t0}, {bs}, 9")
    k(f"s_lshl_b32 {t1}, {a8}, 6")
    k(f"s_add_u32 {t0}, {t0}, {t1}")
    O = [k.v(4, 2) for _ in range(4)]
    for i in range(4):
        k(f"ds_read_b128 {O[i]}, {vl} offset:{i * 2048}")
    for i in range(4):
        k(f"s_add_u32 {zo[i]}, {t0}, {i * 64 * 16384}")
        k(f"buffer_store_dwordx4 {O[i]}, {vg}, {so}, {zo[i]} offen")
    k.end()
    return k


def gen_f1_shift(k, n, g, wv, tmp):
    C = [k.v(4, 2) for _ in range(2)]
    S = [k.v(4, 2) for _ in range(2)]
    ang, c0, c1, s0, s1 = tmp
    lf, sf = k.v(), k.v()
    w16 = k.s()
    k(f"s_lshl_b32 {w16}, {wv}, 4")
    k(f"v_add_u32 {lf}, {w16}, {n}")
    k.cvtf(lf, lf)
    k(f"v_add_f32 {lf}, {fhex(-0.25)}, {lf}")
    k(f"v_mul_f32 {lf}, {fhex(1 / 64)}, {lf}")
    k(f"v_lshlrev_b32 {sf}, 3, {g}")
    k.cvtf(sf, sf)
    cs = [(c0, s0), (c1, s1)]
    for q in range(2):
        for jp in range(4):
            for e in range(2):
                k(f"v_add_f32 {ang}, {fhex(32 * q + 2 * jp + e)}, {sf}")
                k(f"v_mul_f32 {ang}, {ang}, {lf}")
                k(f"v_cos_f32 {cs[e][0]}, {ang}")
                k(f"v_sin_f32 {cs[e][1]}, -{ang}")
            k.pk(C[q][jp], c0, c1)
            k.pk(S[q][jp], s0, s1)
    k.V.free(lf, sf)
    k.S.free(w16)
    return C, S


def gen_i2_shift(k, n, g, wv, tmp):
    A = [k.v(4, 2) for _ in range(4)]
    ang, c0, c1, s0, s1 = tmp
    lf, sf = k.v(), k.v()
    w16 = k.s()
    k(f"s_lshl_b32 {w16}, {wv}, 4")
    k(f"v_add_u32 {lf}, {w16}, {n}")
    k.cvtf(lf, lf)
    k(f"v_mul_f32 {lf}, {fhex(1 / 64)}, {lf}")
    k(f"v_lshlrev_b32 {sf}, 2, {g}")
    k.cvtf(sf, sf)
    cs = [(c0, s0), (c1, s1)]
    for kq in range(4):
        for jp in range(2):
            for e in range(2):
                k(f"v_add_f32 {ang}, {fhex(16 * kq + 2 * jp + e - 0.25)}, {sf}")
                k(f"v_mul_f32 {ang}, {ang}, {lf}")
                k(f"v_cos_f32 {cs[e][0]}, {ang}")
                k(f"v_sin_f32 {cs[e][1]}, -{ang}")
            k.pk(A[kq][jp], c0, c1)
            k.pk(A[kq][2 + jp], s0, s1)
    k.V.free(lf, sf)
    k.S.free(w16)
    return A


def xcd_pair(k):
    p, t = k.s(), k.s()
    k(f"s_and_b32 {p}, s2, 7")
    k(f"s_lshl_b32 {p}, {p}, 5")
    k(f"s_lshr_b32 {t}, s2, 3")
    k(f"s_add_u32 {p}, {p}, {t}")
    k.S.free(t)
    return p


KG_ROW = 528
KG_CH = 96 * KG_ROW
KG_KX = 2 * KG_CH
KG_OP = KG_KX + 4096
KG_LDS = KG_OP + 8192


def gen_kg(name):
    k = K(name, 256)
    P = k.prologue(['B_A_re', 'B_A_im', 'B_B_re', 'B_B_im', 'B_C_re', 'B_C_im', 'B_log_dt', 'ws'])
    n, g, lane, wv = k.n16, k.g4, k.lane, k.wv
    k.lds = KG_LDS
    p = xcd_pair(k)
    k("s_waitcnt lgkmcnt(0)")
    so = k.srd(P['ws'], KF_OFF, KF_SZ)
    t0, t1 = k.s(), k.s()
    va = k.v()
    k(f"s_lshl_b32 {t0}, {p}, 9")
    k(f"v_lshlrev_b32 {va}, 1, v0")
    par = {}
    srd = k.s(4)
    for nm in ('B_A_re', 'B_A_im', 'B_B_re', 'B_B_im', 'B_C_re', 'B_C_im'):
        sr = k.srd(P[nm], 0, 512 * 128 * 2)
        par[nm] = k.v()
        k(f"buffer_load_ushort {par[nm]}, {va}, {sr}, {t0} offen")
    sl = k.srd(P['B_log_dt'], 0, 1024)
    ld = k.v()
    k(f"v_lshrrev_b32 {va}, 7, v0")
    k(f"v_lshlrev_b32 {va}, 1, {va}")
    k(f"s_lshl_b32 {t1}, {p}, 2")
    k(f"buffer_load_ushort {ld}, {va}, {sl}, {t1} offen")
    for nm in par:
        k(f"v_lshlrev_b32 {par[nm]}, 16, {par[nm]}")
    k(f"v_lshlrev_b32 {ld}, 16, {ld}")
    L2E = 1.4426950408889634
    hi = struct.unpack('<f', struct.pack('<I', struct.unpack('<I', struct.pack('<f', L2E))[0] & 0xFFFFFF00))[0]
    lo = L2E - hi
    dt, tv, tw = k.v(), k.v(), k.v()
    k(f"v_mul_f32 {tv}, {fhex(hi)}, {ld}")
    k(f"v_mul_f32 {tw}, {fhex(lo * 0.6931471805599453)}, {ld}")
    k(f"v_exp_f32 {tv}, {tv}")
    k(f"v_fma_f32 {dt}, {tv}, {tw}, {tv}")
    k.round_bf16(dt, dt, tv)
    ar, ai = par['B_A_re'], par['B_A_im']
    k(f"v_mul_f32 {ar}, {dt}, {ar}")
    k(f"v_mul_f32 {ai}, {dt}, {ai}")
    br, bi = par['B_B_re'], par['B_B_im']
    k(f"v_mul_f32 {br}, {dt}, {br}")
    k(f"v_mul_f32 {bi}, {dt}, {bi}")
    cc = k.v(2, 2)
    cr, ci = par['B_C_re'], par['B_C_im']
    k(f"v_mul_f32 {cc[0]}, {cr}, {br}")
    k(f"v_mul_f32 {cc[1]}, {cr}, {bi}")
    k(f"v_fma_f32 {cc[0]}, -{ci}, {bi}, {cc[0]}")
    k(f"v_fma_f32 {cc[1]}, {ci}, {br}, {cc[1]}")
    k(f"v_mul_f32 {ar}, {fhex(L2E)}, {ar}")
    k(f"v_mul_f32 {ai}, {fhex(1 / (2 * 3.141592653589793))}, {ai}")

    def seed(l):
        e = k.v(2, 2)
        k(f"v_mul_f32 {tv}, {fhex(l)}, {ar}")
        k(f"v_mul_f32 {tw}, {fhex(l)}, {ai}")
        k(f"v_exp_f32 {tv}, {tv}")
        k(f"v_fract_f32 {tw}, {tw}")
        k(f"v_cos_f32 {e[0]}, {tw}")
        k(f"v_sin_f32 {e[1]}, {tw}")
        k(f"v_mul_f32 {e[0]}, {tv}, {e[0]}")
        k(f"v_mul_f32 {e[1]}, {tv}, {e[1]}")
        return e

    def cstep(dst, z, e, t):
        k(f"v_pk_mul_f32 {t}, {z}, {e} op_sel:[0,0] op_sel_hi:[1,0]")
        k(f"v_pk_fma_f32 {dst}, {z}, {e}, {t} op_sel:[1,1,0] op_sel_hi:[0,1,1] neg_lo:[1,0,0]")
    E1, E4, E32, E128, E512 = seed(1), seed(4), seed(32), seed(128), seed(512)
    zc1, zc2, zr1, zr2 = k.v(2, 2), k.v(2, 2), k.v(2, 2), k.v(2, 2)
    tp = [k.v(2, 2) for _ in range(4)]
    for z in (zc1, zc2):
        k(f"v_mov_b32 {z[0]}, 1.0")
        k(f"v_mov_b32 {z[1]}, 0")
    k(f"v_mov_b32 {zr1[0]}, {cc[0]}")
    k(f"v_mov_b32 {zr1[1]}, {cc[1]}")
    cstep(zr2, cc, E512, tp[0])
    k.V.free(E512, cc, *par.values())
    k.stamp()
    vw = k.v()
    k(f"v_and_b32 {vw}, 127, v0")
    k(f"v_lshlrev_b32 {vw}, 2, {vw}")
    k(f"v_lshrrev_b32 {tv}, 7, v0")
    k(f"v_mul_u32_u24 {tv}, {KG_CH}, {tv}")
    k(f"v_add_u32 {vw}, {vw}, {tv}")
    R1, C1, R2, C2 = 0, 16 * KG_ROW, 48 * KG_ROW, 64 * KG_ROW
    wr1, wc1, wr2, wc2 = k.v(), k.v(), k.v(), k.v()
    k(f"v_mov_b32 {wr1}, {vw}")
    k(f"v_add_u32 {wc1}, {C1}, {vw}")
    k(f"v_add_u32 {wr2}, {R2}, {vw}")
    k(f"v_add_u32 {wc2}, {C2}, {vw}")
    cnt = k.s()
    k(f"s_mov_b32 {cnt}, 16")
    pkd = [k.v() for _ in range(6)]
    k(f"L_{name}_tab:")
    k.pk(pkd[0], zc1[0], zc1[1])
    k.pk(pkd[1], zc2[0], zc2[1])
    k.pk(pkd[2], zr1[0], f"-{zr1[1]}")
    k.pk(pkd[3], zr2[0], f"-{zr2[1]}")
    k(f"ds_write_b32 {wc1}, {pkd[0]}")
    k(f"ds_write_b32 {wc2}, {pkd[1]}")
    k(f"ds_write_b32 {wr1}, {pkd[2]}")
    k(f"ds_write_b32 {wr2}, {pkd[3]}")
    cstep(zc1, zc1, E1, tp[0])
    cstep(zc2, zc2, E4, tp[1])
    cstep(zr1, zr1, E32, tp[2])
    cstep(zr2, zr2, E128, tp[3])
    k.pk(pkd[4], zc1[0], zc1[1])
    k.pk(pkd[5], zc2[0], zc2[1])
    k(f"ds_write_b32 {wc1}, {pkd[4]} offset:{KG_ROW}")
    k(f"ds_write_b32 {wc2}, {pkd[5]} offset:{KG_ROW}")
    cstep(zc1, zc1, E1, tp[0])
    cstep(zc2, zc2, E4, tp[1])
    k(f"v_add_u32 {wc1}, {2 * KG_ROW}, {wc1}")
    k(f"v_add_u32 {wc2}, {2 * KG_ROW}, {wc2}")
    k(f"v_add_u32 {wr1}, {KG_ROW}, {wr1}")
    k(f"v_add_u32 {wr2}, {KG_ROW}, {wr2}")
    k(f"s_sub_u32 {cnt}, {cnt}, 1")
    k(f"s_cmp_lg_u32 {cnt}, 0")
    k(f"s_cbranch_scc1 L_{name}_tab")
    k.V.free(E1, E4, E32, E128, zc1, zc2, zr1, zr2, *tp, *pkd, vw, wr1, wc1, wr2, wc2)
    k.stamp()
    tmp = [k.v() for _ in range(5)]
    FC, FS = gen_f1_shift(k, n, g, wv, tmp)
    G = gen_g32(k, n, g, tmp)
    fc, fs, ic, is_ = gen_twiddles(k, n, g, wv, 0.25, tmp)
    k.V.free(*ic, *is_)
    k.stamp()
    k("s_barrier")
    ch, blk = k.s(), k.s()
    k(f"s_lshr_b32 {ch}, {wv}, 1")
    k(f"s_and_b32 {blk}, {wv}, 1")
    k(f"s_mul_i32 {t0}, {ch}, {KG_CH}")
    k(f"s_mul_i32 {t1}, {blk}, {48 * KG_ROW}")
    k(f"s_add_u32 {t0}, {t0}, {t1}")
    vr = k.v()
    k(f"v_mul_u32_u24 {vr}, {KG_ROW}, {n}")
    k(f"v_lshl_add_u32 {vr}, {g}, 4, {vr}")
    k(f"v_add_u32 {vr}, {t0}, {vr}")
    D = [k.v(4, 2) for _ in range(2)]
    for ks in range(8):
        Ar, B0, B1 = k.v(4, 2), k.v(4, 2), k.v(4, 2)
        k(f"ds_read_b128 {Ar}, {vr} offset:{ks * 64}")
        k(f"ds_read_b128 {B0}, {vr} offset:{16 * KG_ROW + ks * 64}")
        k(f"ds_read_b128 {B1}, {vr} offset:{32 * KG_ROW + ks * 64}")
        k.mfma(D[0], Ar, B0, D[0] if ks else None)
        k.mfma(D[1], Ar, B1, D[1] if ks else None)
        if ks % 2 == 1:
            k.V.free(*held, Ar, B0, B1)
        else:
            held = (Ar, B0, B1)
    k(f"s_lshl_b32 {t0}, {wv}, 10")
    k(f"s_add_u32 {t0}, {t0}, {KG_KX}")
    k(f"v_lshlrev_b32 {vr}, 8, {g}")
    k(f"v_lshl_add_u32 {vr}, {n}, 1, {vr}")
    k(f"v_add_u32 {vr}, {t0}, {vr}")
    for nt in range(2):
        for r in range(4):
            k.pk(tv, D[nt][r], D[nt][r])
            k(f"ds_write_b16 {vr}, {tv} offset:{r * 64 + nt * 32}")
    k.V.free(*D)
    k("s_barrier")
    k.stamp()
    vb = k.v()
    k(f"v_lshlrev_b32 {vb}, 8, {g}")
    k(f"v_add_u32 {vb}, {vb}, {n}")
    k(f"s_lshl_b32 {t0}, {blk}, 10")
    k(f"v_add_u32 {vb}, {t0}, {vb}")
    kxb = k.s()
    k(f"s_lshl_b32 {kxb}, {ch}, 11")
    k(f"s_add_u32 {kxb}, {kxb}, {KG_KX}")
    c512 = k.s()
    k(f"s_mov_b32 {c512}, 512")
    OPS = [k.v(4, 2) for _ in range(2)]
    for mt in range(2):
        vals = [k.v() for _ in range(8)]
        for j in range(8):
            x = vals[j]
            k(f"v_add_u32 {x}, {16 * mt + 32 * j}, {vb}")
            k.cvtf(x, x)
            k.round_bf16(x, x, tv)
            k(f"v_cvt_u32_f32 {x}, {x}")
            k(f"v_lshrrev_b32 {tv}, 2, {x}")
            k(f"v_add_u32 {tv}, 384, {tv}")
            k(f"v_cmp_gt_u32 vcc, {c512}, {x}")
            k(f"v_cndmask_b32 {x}, {tv}, {x}, vcc")
            k(f"v_lshl_add_u32 {x}, {x}, 1, {kxb}")
            k(f"ds_read_u16 {x}, {x}")
        for jp in range(4):
            k(f"v_lshl_or_b32 {OPS[mt][jp]}, {vals[2 * jp + 1]}, 16, {vals[2 * jp]}")
        k.V.free(*vals)
    k(f"s_lshl_b32 {t0}, {ch}, 12")
    k(f"s_lshl_b32 {t1}, {blk}, 10")
    k(f"s_add_u32 {t0}, {t0}, {t1}")
    k(f"s_add_u32 {t0}, {t0}, {KG_OP}")
    k(f"v_lshlrev_b32 {vr}, 4, {lane}")
    k(f"v_add_u32 {vb}, {t0}, {vr}")
    for mt in range(2):
        k(f"ds_write_b128 {vb}, {OPS[mt]} offset:{mt * 2048}")
    k.V.free(*OPS)
    k("s_barrier")
    k.stamp()
    vo = k.v()
    k(f"v_lshlrev_b32 {vo}, 7, {n}")
    k(f"v_lshl_add_u32 {vo}, {g}, 4, {vo}")
    k(f"v_add_u32 {vr}, {KG_OP}, {vr}")
    sc = fhex(1.0 / 2048)
    for c in range(2):
        U = [[k.v(4, 2) for _ in range(2)] for _ in range(2)]
        for mt in range(2):
            for q in range(2):
                k(f"ds_read_b128 {U[mt][q]}, {vr} offset:{c * 4096 + mt * 2048 + q * 1024}")
        Dr = [k.v(4, 2) for _ in range(2)]
        Di = [k.v(4, 2) for _ in range(2)]
        for mt in range(2):
            for q in range(2):
                k.mfma(Dr[mt], U[mt][q], FC[q], Dr[mt] if q else None)
                k.mfma(Di[mt], U[mt][q], FS[q], Di[mt] if q else None)
        Er, Ei = mid_pipeline(k, Dr, Di, G, fc, fs, None, None, None, None, None)
        k(f"s_lshl_b32 {t0}, {p}, 14")
        k(f"s_lshl_b32 {t1}, {wv}, 11")
        k(f"s_add_u32 {t0}, {t0}, {t1}")
        k(f"s_add_u32 {t0}, {t0}, {c * 8192}")
        for m2 in range(2):
            for r in range(4):
                k(f"v_mul_f32 {Er[m2][r]}, {sc}, {Er[m2][r]}")
                k(f"v_mul_f32 {Ei[m2][r]}, {sc}, {Ei[m2][r]}")
            pack4(k, U[0][m2], Er[m2], Ei[m2])
            k(f"buffer_store_dwordx4 {U[0][m2]}, {vo}, {so}, {t0} offen offset:{m2 * 64}")
        k.V.free(*U[0], *U[1], *Dr, *Di, *Er, *Ei)
    k.end()
    return k


def gen_cb(name, last):
    k = K(name, 256)
    P = k.prologue(['B_Dskip', 'ws', 'out'] if last else ['B_Dskip', 'ws'])
    n, g, lane, wv = k.n16, k.g4, k.lane, k.wv
    p = xcd_pair(k)
    k("s_waitcnt lgkmcnt(0)")
    su = k.srd(P['ws'], UX_OFF, UX_SZ)
    sk = k.srd(P['ws'], KF_OFF, KF_SZ)
    so = k.srd(P['out'], 0, 2048 * 512 * 2) if last else k.srd(P['ws'], X2_OFF, X2_SZ)
    t0, t1 = k.s(), k.s()
    dsk = k.s()
    k(f"s_lshl_b32 {t0}, {p}, 2")
    k(f"s_load_dword {dsk}, {P['B_Dskip']}, {t0}")
    k.lds = 16384
    ub, ub1 = k.s(), k.s()
    k(f"s_lshl_b32 {ub}, {p}, 14")
    k(f"s_add_u32 {ub1}, {ub}, 8192")
    va = k.v()
    k(f"v_lshlrev_b32 {va}, 9, {n}")
    k(f"v_lshl_add_u32 {va}, {g}, 6, {va}")
    U = [[[k.v(4, 2) for _ in range(2)] for _ in range(2)] for _ in range(2)]
    for c in range(2):
        for mt in range(2):
            for q in range(2):
                k(f"buffer_load_dwordx4 {U[c][mt][q]}, {va}, {su}, {ub1 if mt else ub} offen offset:{q * 256 + c * 16}")
    k.V.free(va)
    vw = k.v()
    k(f"v_lshlrev_b32 {vw}, 7, {n}")
    k(f"v_lshl_add_u32 {vw}, {g}, 4, {vw}")
    k(f"s_lshl_b32 {t0}, {wv}, 11")
    k(f"s_add_u32 {t0}, {t0}, {ub}")
    k(f"s_add_u32 {t1}, {t0}, 8192")
    KF = [[k.v(4, 2) for _ in range(2)] for _ in range(2)]
    for c in range(2):
        for m2 in range(2):
            k(f"buffer_load_dwordx4 {KF[c][m2]}, {vw}, {sk}, {t1 if c else t0} offen offset:{m2 * 64}")
    k.V.free(vw)
    ve = k.v()
    tv = k.v()
    k(f"v_lshlrev_b32 {ve}, 9, {n}")
    k(f"v_lshrrev_b32 {tv}, 1, {g}")
    k(f"v_lshl_add_u32 {ve}, {tv}, 6, {ve}")
    k(f"v_and_b32 {tv}, 1, {g}")
    k(f"v_lshl_add_u32 {ve}, {tv}, 3, {ve}")
    eb = [k.s(), k.s()]
    k(f"s_lshl_b32 {eb[0]}, {wv}, 7")
    k(f"s_add_u32 {eb[0]}, {eb[0]}, {ub}")
    k(f"s_add_u32 {eb[1]}, {eb[0]}, 8192")
    EU = [[k.v(2, 2) for _ in range(2)] for _ in range(2)]
    EX = [[k.v(2, 2) for _ in range(2)] for _ in range(2)]
    for c in range(2):
        for nt in range(2):
            k(f"buffer_load_dwordx2 {EU[c][nt]}, {ve}, {su}, {eb[nt]} offen offset:{c * 16}")
            k(f"buffer_load_dwordx2 {EX[c][nt]}, {ve}, {su}, {eb[nt]} offen offset:{32 + c * 16}")
    k.V.free(ve)
    tmp = [k.v() for _ in range(5)]
    FC, FS = gen_f1_shift(k, n, g, wv, tmp)
    G = gen_g32(k, n, g, tmp)
    fc, fs, ic, is_ = gen_twiddles(k, n, g, wv, 0.25, tmp)
    I2 = gen_i2_shift(k, n, g, wv, tmp)
    k.V.free(*tmp)
    k.stamp()
    k.stamp("s_waitcnt vmcnt(0)")
    vl, vr = k.v(), k.v()
    k(f"s_lshl_b32 {t0}, {wv}, 11")
    k(f"v_lshlrev_b32 {vr}, 4, {lane}")
    k(f"v_add_u32 {vl}, {t0}, {vr}")
    for c in range(2):
        Dr = [k.v(4, 2) for _ in range(2)]
        Di = [k.v(4, 2) for _ in range(2)]
        for mt in range(2):
            for q in range(2):
                k.mfma(Dr[mt], U[c][mt][q], FC[q], Dr[mt] if q else None)
                k.mfma(Di[mt], U[c][mt][q], FS[q], Di[mt] if q else None)
        XO = [U[c][0][0], U[c][0][1]]
        mid_pipeline(k, Dr, Di, G, fc, fs, KF[c], ic, is_, XO, None)
        for nt in range(2):
            k(f"ds_write_b128 {vl}, {XO[nt]} offset:{c * 8192 + nt * 1024}")
        k.V.free(*Dr, *Di)
    k.V.free(*FC, *FS, *G[0], *G[1], *fc, *fs, *ic, *is_, *KF[0], *KF[1])
    k.stamp()
    k("s_barrier")
    D = [[k.v(4, 2) for _ in range(2)] for _ in range(2)]
    for c in range(2):
        Y = [[k.v(4, 2) for _ in range(4)] for _ in range(2)]
        for kq in range(4):
            for nt in range(2):
                k(f"ds_read_b128 {Y[nt][kq]}, {vr} offset:{c * 8192 + kq * 2048 + nt * 1024}")
        for nt in range(2):
            for kq in range(4):
                k.mfma(D[c][nt], I2[kq], Y[nt][kq], D[c][nt] if kq else None)
        k.V.free(*Y[0], *Y[1])
    k.stamp()
    ds2 = k.s(2)
    yp, up = k.v(2, 2), k.v(2, 2)
    O = [k.v(4, 2) for _ in range(2)]
    for c in range(2):
        if c == 0:
            k(f"s_lshl_b32 {ds2[0]}, {dsk}, 16")
        else:
            k(f"s_and_b32 {ds2[0]}, {dsk}, 0xffff0000")
        for nt in range(2):
            for h in range(2):
                k.pk(tv, D[c][nt][2 * h], D[c][nt][2 * h + 1])
                unpack2(k, yp, tv)
                unpack2(k, up, EU[c][nt][h])
                k(f"v_pk_mul_f32 {up}, {up}, {ds2} op_sel_hi:[1,0]")
                k.pk(tv, up[0], up[1])
                unpack2(k, up, tv)
                k(f"v_pk_add_f32 {yp}, {yp}, {up}")
                k.pk(tv, yp[0], yp[1])
                unpack2(k, yp, tv)
                unpack2(k, up, EX[c][nt][h])
                k(f"v_pk_add_f32 {yp}, {yp}, {up}")
                k.pk(O[nt][2 * c + h], yp[0], yp[1])
    if not last:
        vo = k.v()
        k(f"v_lshlrev_b32 {vo}, 8, {n}")
        k(f"v_lshl_add_u32 {vo}, {g}, 4, {vo}")
        k(f"s_lshl_b32 {t0}, {p}, 13")
        k(f"s_lshl_b32 {t1}, {wv}, 6")
        k(f"s_add_u32 {t0}, {t0}, {t1}")
        k(f"s_add_u32 {t1}, {t0}, 4096")
        for nt in range(2):
            k(f"v_permlane16_swap_b32 {O[nt][0]}, {O[nt][2]}")
            k(f"v_permlane16_swap_b32 {O[nt][1]}, {O[nt][3]}")
            k(f"buffer_store_dwordx4 {O[nt]}, {vo}, {so}, {t1 if nt else t0} offen")
    else:
        vo = k.v()
        k(f"v_lshlrev_b32 {vo}, 10, {n}")
        k(f"v_lshl_add_u32 {vo}, {g}, 17, {vo}")
        slo, shi = k.s(), k.s()
        k(f"s_mov_b32 {slo}, 0x05040100")
        k(f"s_mov_b32 {shi}, 0x07060302")
        k(f"s_lshl_b32 {t0}, {p}, 2")
        k(f"s_lshl_b32 {t1}, {wv}, 19")
        k(f"s_add_u32 {t0}, {t0}, {t1}")
        ob = [k.s() for _ in range(8)]
        od = [k.v() for _ in range(8)]
        for nt in range(2):
            for r in range(4):
                i = nt * 4 + r
                k(f"s_add_u32 {ob[i]}, {t0}, {nt * 16384 + r * 32768}")
                k(f"v_perm_b32 {od[i]}, {O[nt][2 + (r >> 1)]}, {O[nt][r >> 1]}, {shi if r & 1 else slo}")
                k(f"buffer_store_dword {od[i]}, {vo}, {so}, {ob[i]} offen")
    k.end()
    return k


KERNELS = {}


def build(names, launches, path):
    ks = []
    seen = {}
    for nm in names:
        kk = KERNELS[nm]()
        seen[nm] = kk
        ks.append(kk.text())
    ls = [(seen[nm].name, seen[nm].nwg, 256, seen[nm].lds) for nm in launches]
    txt = make_file(ks, ls)
    open(path, 'w').write(txt)
    for (nm, body, v, s), kk in zip(ks, seen.values()):
        print(f"{nm}: vgpr={v} sgpr={s} lds={kk.lds} lines={body.count(chr(10))}")


KERNELS['wt'] = lambda: gen_wt()
KERNELS['rf0'] = lambda: gen_rf('rf0_kernel', True)
KERNELS['rf1'] = lambda: gen_rf('rf1_kernel', False)
KERNELS['ca'] = lambda: gen_ca('ca_kernel')
KERNELS['kg'] = lambda: gen_kg('kg_kernel')
KERNELS['cb0'] = lambda: gen_cb('cb0_kernel', False)
KERNELS['cb1'] = lambda: gen_cb('cb1_kernel', True)
KERNELS['ri0'] = lambda: gen_ri('ri0_kernel', True)
KERNELS['ri1'] = lambda: gen_ri('ri1_kernel', False)

if __name__ == '__main__':
    if len(sys.argv) > 1 and sys.argv[1] == 'stamps':
        STAMPS = True
    allk = ['wt', 'kg', 'rf0', 'ca', 'ri0', 'cb0', 'rf1', 'ri1', 'cb1']
    build(allk, ['wt', 'kg', 'rf0', 'ca', 'ri0', 'cb0'], 'stage1.s')
    build(allk, ['wt', 'kg', 'rf0', 'ca', 'ri0', 'cb0', 'rf1', 'ca', 'ri1', 'cb1'], 'full_ts.s' if STAMPS else 'full.s')
```

```python
import struct
import sys
from common import *
import gen
from gen import fhex, ROWLANE, unpack2, pack4, op_CS, op_SC, op_CnS, op_nSC

X1_B, Z_B, U_B, Y_B = 0x0000000, 0x0400000, 0x0800000, 0x0C00000
IT_STRIDE = 0x200000
WT_B, WT_BLK = 0x1000000, 8256
FL_B = 0x1400000
WS_USED = 0x1500000
TS_OFF = 0x2000000
OOB = 0x7FFFFFF0
SPIN_MAX = 1 << 18

L_XL = 0
L_IMG = 8192
L_XCH = 16384
L_WIM = 32768
L_K = 49152
KG_ROW = 528
KG_CH = 96 * KG_ROW
L_KX = L_K + 2 * KG_CH
L_KOP = L_K
LDS_BYTES = L_KX + 4096

OPT = dict(stamps=False, prefetch=True,
           windows={'0': ['F', 'G'], '1a': ['TW0', 'KP', 'KT0'], '1b': ['KT1'], '2a': ['RI', 'KM'],
                    '2b': ['TW1', 'FC', 'KE'], '3a': ['KX'], '3b': ['I2']})


class PK(gen.K):
    def __init__(self, name):
        super().__init__(name, 256, vlimit=256)
        self.A = Regs('a', 0, 256)
        self.S = Regs('s', 4, 102)
        self.stamp_names = []

    def acc(self, n):
        return self.A.alloc(n, 2)

    def to_acc(self, a, v):
        for i in range(a.n):
            self(f"v_accvgpr_write_b32 {a[i]}, {v[i]}")

    def stamp(self, name='', wait=None):
        if not OPT['stamps']:
            return
        if wait:
            self(wait)
        self.stamp_names.append(name)
        t = self.s_tmp2
        self(f"s_memrealtime {t}")
        self("s_waitcnt lgkmcnt(0)")
        self(f"v_writelane_b32 {self.v_ts}, {t[0]}, m0")
        self("s_add_u32 m0, m0, 1")


def build():
    k = PK(KN)
    k("s_cmp_ge_u32 s2, 256")
    k("s_cbranch_scc1 L_end")
    ptr = {}
    big = k.s(16, 4)
    big2 = k.s(8, 4)
    tail = k.s(4, 4)
    k(f"s_load_dwordx16 {big}, s[0:1], 0")
    k(f"s_load_dwordx8 {big2}, s[0:1], 64")
    k(f"s_load_dwordx4 {tail}, s[0:1], 96")
    ptr['ws'] = k.s(2)
    k(f"s_load_dwordx2 {ptr['ws']}, s[0:1], 112")
    for i, nm in enumerate(['A_x', 'A_w_r', 'A_w_i', 'B_u', 'B_A_re', 'B_A_im', 'B_B_re', 'B_B_im']):
        ptr[nm] = big[2 * i:2 * i + 2]
    for i, nm in enumerate(['B_C_re', 'B_C_im', 'B_log_dt', 'B_Dskip']):
        ptr[nm] = big2[2 * i:2 * i + 2]
    ptr['out'], ptr['debug'] = tail[0:2], tail[2:4]
    lane, n, g = k.v(), k.v(), k.v()
    wv = k.s()
    tv = k.v()
    k(f"v_lshrrev_b32 {tv}, 6, v0")
    k(f"v_and_b32 {lane}, 63, v0")
    k(f"v_readfirstlane_b32 {wv}, {tv}")
    k(f"v_and_b32 {n}, 15, v0")
    k(f"v_lshrrev_b32 {g}, 4, {lane}")
    Lid, t0, t1, t2 = k.s(), k.s(), k.s(), k.s()
    k(f"s_and_b32 {Lid}, s2, 7")
    k(f"s_lshl_b32 {Lid}, {Lid}, 5")
    k(f"s_lshr_b32 {t0}, s2, 3")
    k(f"s_add_u32 {Lid}, {Lid}, {t0}")
    bs, a8, rep, it = k.s(), k.s(), k.s(), k.s()
    k(f"s_and_b32 {bs}, {Lid}, 31")
    k(f"s_lshr_b32 {a8}, {Lid}, 5")
    k(f"s_and_b32 {rep}, s2, 7")
    k(f"s_mov_b32 {it}, 0")
    rg, kt, w16 = k.s(), k.s(), k.s()
    k(f"s_lshr_b32 {rg}, {wv}, 1")
    k(f"s_and_b32 {kt}, {wv}, 1")
    k(f"s_lshl_b32 {w16}, {wv}, 4")
    nonce = k.s()
    if OPT['stamps']:
        k.s_tmp2, k.v_ts = k.s(2), k.v()
        k("s_mov_b32 m0, 0")
        k(f"v_mov_b32 {k.v_ts}, 0")
        k.stamp('entry')
    k("s_waitcnt lgkmcnt(0)")
    sws = k.srd(ptr['ws'], 0, WS_USED)
    scr = k.s(4)

    def scratch_srd(nm, size):
        k(f"s_mov_b32 {scr[0]}, {ptr[nm][0]}")
        k(f"s_mov_b32 {scr[1]}, {ptr[nm][1]}")
        k(f"s_mov_b32 {scr[2]}, {hex(size)}")
        k(f"s_mov_b32 {scr[3]}, 0x20000")
        return scr
    k.stamp('kernarg')

    XR = [k.v(4, 2) for _ in range(2)]
    va = k.v()
    sx = scratch_srd('A_x', 2048 * 512 * 2)
    k(f"s_lshl_b32 {t0}, {a8}, 8")
    k(f"s_add_u32 {t0}, {t0}, {bs}")
    k(f"s_lshl_b32 {t1}, {wv}, 5")
    k(f"s_add_u32 {t0}, {t0}, {t1}")
    k(f"s_lshl_b32 {t0}, {t0}, 10")
    k(f"s_add_u32 {t1}, {t0}, {4 * 32 * 1024}")
    k(f"v_lshlrev_b32 {va}, 4, {lane}")
    k(f"buffer_load_dwordx4 {XR[0]}, {va}, {sx}, {t0} offen")
    k(f"buffer_load_dwordx4 {XR[1]}, {va}, {sx}, {t1} offen")
    sd = scratch_srd('debug', 256)
    k("s_cmp_lg_u32 s2, 0")
    k("s_cbranch_scc1 L_nonce_done", manual=True)
    k(f"s_cmp_lg_u32 {wv}, 0")
    k("s_cbranch_scc1 L_nonce_done", manual=True)
    tm = k.s(2)
    k(f"s_memrealtime {tm}")
    k("s_waitcnt lgkmcnt(0)")
    k(f"s_or_b32 {tm[0]}, {tm[0]}, 1")
    vz = k.v()
    k(f"v_mov_b32 {vz}, {tm[0]}")
    k(f"v_mov_b32 {va}, {hex(OOB)}")
    k(f"v_cmp_eq_u32 vcc, 0, {lane}")
    k(f"v_cndmask_b32 {va}, {va}, 0, vcc")
    k(f"buffer_store_dword {vz}, {va}, {sd}, 0 offen sc1")
    k("s_nop 1")
    k("L_nonce_done:", manual=True)
    k.S.free(tm)
    k.V.free(vz)
    Wraw = [[k.v() for _ in range(2)] for _ in range(8)]
    Wn = [k.v() for _ in range(2)]
    wb = k.s()
    k(f"s_lshr_b32 {t0}, {Lid}, 6")
    k(f"s_lshl_b32 {t0}, {t0}, 9")
    k(f"s_and_b32 {t1}, {Lid}, 63")
    k(f"s_add_u32 {wb}, {t0}, {t1}")
    k(f"s_mul_i32 {wb}, {wb}, 514")
    vin, vny = k.v(), k.v()
    k(f"v_lshlrev_b32 {vin}, 1, v0")
    k(f"v_mul_u32_u24 {vny}, {64 * 514}, v0")
    k(f"v_add_u32 {vny}, 512, {vny}")
    k(f"v_mov_b32 {tv}, {hex(OOB)}")
    k(f"v_cmp_gt_u32 vcc, 8, v0")
    k(f"v_cndmask_b32 {vny}, {tv}, {vny}, vcc")
    for c, nm in ((0, 'A_w_r'), (1, 'A_w_i')):
        sr = scratch_srd(nm, 2048 * 257 * 2)
        for rho in range(8):
            k(f"s_add_u32 {t0}, {wb}, {rho * 64 * 514}")
            k(f"buffer_load_ushort {Wraw[rho][c]}, {vin}, {sr}, {t0} offen")
        k(f"buffer_load_ushort {Wn[c]}, {vny}, {sr}, {wb} offen")
    k.V.free(vin, vny)
    k.S.free(wb)
    par = {}
    k(f"s_lshl_b32 {t0}, {Lid}, 9")
    k(f"v_lshlrev_b32 {va}, 1, v0")
    for nm in ('B_A_re', 'B_A_im', 'B_B_re', 'B_B_im', 'B_C_re', 'B_C_im'):
        sr = scratch_srd(nm, 512 * 128 * 2)
        par[nm] = k.v()
        k(f"buffer_load_ushort {par[nm]}, {va}, {sr}, {t0} offen")
    sr = scratch_srd('B_log_dt', 1024)
    ld = k.v()
    k(f"v_lshrrev_b32 {va}, 7, v0")
    k(f"v_lshlrev_b32 {va}, 1, {va}")
    k(f"s_lshl_b32 {t1}, {Lid}, 2")
    k(f"buffer_load_ushort {ld}, {va}, {sr}, {t1} offen")
    dsk = k.s()
    k(f"s_load_dword {dsk}, {ptr['B_Dskip']}, {t1}")
    if OPT['prefetch']:
        pc = k.s(2)
        vpf = k.v(4, 2)
        k(f"s_getpc_b64 {pc}")
        k("L_pc_here:", manual=True)
        k(f"s_lshr_b32 {t0}, s2, 3")
        k(f"s_lshl_b32 {t0}, {t0}, 10")
        k(f"s_min_u32 {t0}, {t0}, L_code_end-L_pc_here-1024")
        k(f"v_lshlrev_b32 {va}, 4, {lane}")
        k(f"v_add_u32 {va}, {t0}, {va}")
        k(f"global_load_dwordx4 {vpf}, {va}, {pc}")
        k.S.free(pc)
    k.V.free(va)
    k.stamp('ldissue')

    TWV = k.v(32, 2)
    RF = dict(B1=k.acc(8), A2=k.acc(4), twa=k.acc(8), dcm=k.v(), twc=TWV[0:4], tws=TWV[4:8])
    F = [k.acc(10) for _ in range(4)]
    G = [[k.acc(10) for _ in range(2)] for _ in range(2)]
    RI = dict(H=[k.acc(10) for _ in range(2)], A2=k.acc(4), twa=k.acc(16), sgn=k.v(),
              twc=[TWV[0:4], TWV[8:12]], tws=[TWV[4:8], TWV[12:16]])
    FCS = [k.acc(8) for _ in range(2)]
    FC, FS = [a[0:4] for a in FCS], [a[4:8] for a in FCS]
    I2 = [k.acc(4) for _ in range(4)]
    TW0a, TW1a = k.acc(32), k.acc(32)
    WQa = k.acc(16)
    WP = [k.v(8, 2) for _ in range(2)]
    KF = [[k.v(4, 2) for _ in range(2)] for _ in range(2)]
    TW = [[TWV[8 * i + 4 * j:8 * i + 4 * j + 4] for j in range(2)] for i in range(4)]

    def load_tw(acc):
        for i in range(acc.n):
            k(f"v_accvgpr_read_b32 {TWV[i]}, {acc[i]}")

    class Tmp:
        def __enter__(self):
            self.regs = [k.v() for _ in range(5)]
            self.ang = self.regs[0]
            self.blk = k.v(8, 2)
            self.lf, self.sf = k.v(), k.v()
            return self

        def __exit__(self, *a):
            k.V.free(*self.regs, self.blk, self.lf, self.sf)

    def blocks(T, a):
        ang, c0, c1, s0, s1 = T.regs
        cs = [(c0, s0), (c1, s1)]
        blk = T.blk
        for jp in range(2):
            for e in range(2):
                k(f"v_add_f32 {ang}, {fhex(2 * jp + e)}, {T.sf}")
                k(f"v_mul_f32 {ang}, {ang}, {T.lf}")
                k.cossin(cs[e][0], cs[e][1], ang)
            k.pk(blk[jp], c0, c1)
            k.pk(blk[2 + jp], s0, s1)
        for jp in range(2):
            k(f"v_xor_b32 {blk[4 + jp]}, 0x80008000, {blk[2 + jp]}")
            for pos in (0, 4, 8):
                k(f"v_accvgpr_write_b32 {a[pos + jp]}, {blk[jp]}")
            k(f"v_accvgpr_write_b32 {a[2 + jp]}, {blk[2 + jp]}")
            k(f"v_accvgpr_write_b32 {a[6 + jp]}, {blk[4 + jp]}")

    def gen_rf():
        with Tmp() as T:
            ang, cs, blk = T.ang, T.regs[1:5], T.blk
            k1i, k1f, base, u = k.v(), k.v(), T.sf, T.lf
            k(f"s_lshl_b32 {t1}, {kt}, 4")
            k(f"v_add_u32 {k1i}, {t1}, {n}")
            k.cvtf(k1f, k1i)
            k.cvtf(base, g)
            k(f"v_mul_f32 {base}, 4.0, {base}")
            k(f"v_mul_f32 {u}, {fhex(1 / 32)}, {k1f}")
            for jp in range(4):
                for e in range(2):
                    j = 2 * jp + e
                    off = j if j < 4 else 16 + j - 4
                    k(f"v_add_f32 {ang}, {fhex(off)}, {base}")
                    k(f"v_mul_f32 {ang}, {ang}, {u}")
                    k(f"v_cos_f32 {cs[e]}, {ang}")
                    k(f"v_sin_f32 {cs[2 + e]}, -{ang}")
                k.pk(blk[jp], cs[0], cs[1])
                k.pk(blk[4 + jp], cs[2], cs[3])
            k.to_acc(RF['B1'], blk[0:8])
            k(f"v_mul_f32 {u}, {fhex(1 / 512)}, {k1f}")
            for r in range(4):
                k(f"v_add_f32 {ang}, {fhex(r)}, {base}")
                k(f"v_mul_f32 {ang}, {ang}, {u}")
                k.cossin(cs[0], cs[1], ang)
                k(f"v_accvgpr_write_b32 {RF['twa'][r]}, {cs[0]}")
                k(f"v_accvgpr_write_b32 {RF['twa'][4 + r]}, {cs[1]}")
            k2f, cq = k1f, u
            k(f"v_lshrrev_b32 {k2f}, 1, {n}")
            k.cvtf(k2f, k2f)
            k(f"v_mul_f32 {k2f}, {fhex(1 / 16)}, {k2f}")
            k(f"v_and_b32 {cq}, 1, {n}")
            k.cvtf(cq, cq)
            k(f"v_mul_f32 {cq}, {fhex(0.25)}, {cq}")
            for jp in range(2):
                for e in range(2):
                    k(f"v_add_f32 {ang}, {fhex(2 * jp + e)}, {base}")
                    k(f"v_fma_f32 {ang}, {ang}, {k2f}, {cq}")
                    k(f"v_cos_f32 {cs[e]}, {ang}")
                    k(f"v_sin_f32 {cs[2 + e]}, {ang}")
                k.pk(blk[jp], cs[0], cs[1])
                k.pk(blk[2 + jp], cs[2], cs[3])
            k.to_acc(RF['A2'], blk[0:4])
            dcm = RF['dcm']
            k(f"v_lshl_add_u32 {dcm}, {k1i}, 2, {g}")
            k(f"v_cmp_eq_u32 vcc, 0, {dcm}")
            k(f"v_cndmask_b32 {dcm}, 0, 1.0, vcc")
            k.V.free(k1i, k1f)

    def gen_f64():
        with Tmp() as T:
            k(f"v_add_u32 {T.lf}, {w16}, {n}")
            k.cvtf(T.lf, T.lf)
            k(f"v_mul_f32 {T.lf}, {fhex(1 / 64)}, {T.lf}")
            for q in range(4):
                k(f"v_lshlrev_b32 {T.sf}, 2, {g}")
                k(f"v_add_u32 {T.sf}, {16 * q}, {T.sf}")
                k.cvtf(T.sf, T.sf)
                blocks(T, F[q])

    def gen_g32():
        with Tmp() as T:
            for t in range(2):
                k(f"v_add_u32 {T.lf}, {16 * t}, {n}")
                k.cvtf(T.lf, T.lf)
                k(f"v_mul_f32 {T.lf}, {fhex(1 / 32)}, {T.lf}")
                for q in range(2):
                    k(f"v_lshlrev_b32 {T.sf}, 2, {g}")
                    k(f"v_add_u32 {T.sf}, {16 * q}, {T.sf}")
                    k.cvtf(T.sf, T.sf)
                    blocks(T, G[t][q])

    def gen_ri():
        with Tmp() as T:
            ang, tmp, blk, lf, sf = T.ang, T.regs, T.blk, T.lf, T.sf
            k(f"v_lshlrev_b32 {sf}, 2, {g}")
            k.cvtf(sf, sf)
            for nt in range(2):
                k(f"v_add_u32 {lf}, {16 * nt}, {n}")
                k.cvtf(lf, lf)
                k(f"v_mul_f32 {lf}, {fhex(1 / 32)}, {lf}")
                blocks(T, RI['H'][nt])
                k(f"v_mul_f32 {lf}, {fhex(1 / 16)}, {lf}")
                for r in range(4):
                    k(f"v_add_f32 {ang}, {fhex(r)}, {sf}")
                    k(f"v_mul_f32 {ang}, {ang}, {lf}")
                    k.cossin(tmp[1], tmp[2], ang)
                    k(f"v_accvgpr_write_b32 {RI['twa'][8 * nt + r]}, {tmp[1]}")
                    k(f"v_accvgpr_write_b32 {RI['twa'][8 * nt + 4 + r]}, {tmp[2]}")
            k.cvtf(lf, n)
            k(f"v_mul_f32 {lf}, {fhex(1 / 16)}, {lf}")
            for jp in range(2):
                for e in range(2):
                    k(f"v_add_f32 {ang}, {fhex(2 * jp + e)}, {sf}")
                    k(f"v_mul_f32 {ang}, {ang}, {lf}")
                    k(f"v_cos_f32 {tmp[1 + e]}, {ang}")
                    k(f"v_sin_f32 {tmp[3 + e]}, -{ang}")
                k.pk(blk[jp], tmp[1], tmp[2])
                k.pk(blk[2 + jp], tmp[3], tmp[4])
            k.to_acc(RI['A2'], blk[0:4])
            k(f"v_lshlrev_b32 {RI['sgn']}, 31, {n}")

    def gen_fc():
        with Tmp() as T:
            ang, blk, lf, sf = T.ang, T.blk, T.lf, T.sf
            c0, c1, s0, s1 = T.regs[1:5]
            cs = [(c0, s0), (c1, s1)]
            k(f"v_add_u32 {lf}, {w16}, {n}")
            k.cvtf(lf, lf)
            k(f"v_add_f32 {lf}, {fhex(-0.25)}, {lf}")
            k(f"v_mul_f32 {lf}, {fhex(1 / 64)}, {lf}")
            k(f"v_lshlrev_b32 {sf}, 3, {g}")
            k.cvtf(sf, sf)
            for q in range(2):
                for jp in range(4):
                    for e in range(2):
                        k(f"v_add_f32 {ang}, {fhex(32 * q + 2 * jp + e)}, {sf}")
                        k(f"v_mul_f32 {ang}, {ang}, {lf}")
                        k(f"v_cos_f32 {cs[e][0]}, {ang}")
                        k(f"v_sin_f32 {cs[e][1]}, -{ang}")
                    k.pk(blk[jp], c0, c1)
                    k.pk(blk[4 + jp], s0, s1)
                k.to_acc(FCS[q], blk[0:8])

    def gen_i2():
        with Tmp() as T:
            ang, blk, lf, sf = T.ang, T.blk, T.lf, T.sf
            c0, c1, s0, s1 = T.regs[1:5]
            cs = [(c0, s0), (c1, s1)]
            k(f"v_add_u32 {lf}, {w16}, {n}")
            k.cvtf(lf, lf)
            k(f"v_mul_f32 {lf}, {fhex(1 / 64)}, {lf}")
            k(f"v_lshlrev_b32 {sf}, 2, {g}")
            k.cvtf(sf, sf)
            for kq in range(4):
                for jp in range(2):
                    for e in range(2):
                        k(f"v_add_f32 {ang}, {fhex(16 * kq + 2 * jp + e - 0.25)}, {sf}")
                        k(f"v_mul_f32 {ang}, {ang}, {lf}")
                        k(f"v_cos_f32 {cs[e][0]}, {ang}")
                        k(f"v_sin_f32 {cs[e][1]}, -{ang}")
                    k.pk(blk[jp], c0, c1)
                    k.pk(blk[2 + jp], s0, s1)
                k.to_acc(I2[kq], blk[0:4])

    def gen_tw(shift, a):
        with Tmp() as T:
            ang, tmp, lf, sf = T.ang, T.regs, T.lf, T.sf

            def put(i, j, r):
                k.cossin(tmp[1], tmp[2], ang)
                k(f"v_accvgpr_write_b32 {a[8 * i + 4 * j + r]}, {tmp[1]}")
                k(f"v_accvgpr_write_b32 {a[8 * (i + 1) + 4 * j + r]}, {tmp[2]}")
            k(f"v_add_u32 {lf}, {w16}, {n}")
            k.cvtf(lf, lf)
            if shift:
                k(f"v_add_f32 {lf}, {fhex(-shift)}, {lf}")
            k(f"v_mul_f32 {lf}, {fhex(1 / 2048)}, {lf}")
            k(f"v_lshlrev_b32 {sf}, 2, {g}")
            k.cvtf(sf, sf)
            for mt in range(2):
                for r in range(4):
                    k(f"v_add_f32 {ang}, {fhex(16 * mt + r)}, {sf}")
                    k(f"v_mul_f32 {ang}, {ang}, {lf}")
                    put(0, mt, r)
            k(f"v_lshlrev_b32 {sf}, 2, {g}")
            k(f"v_add_u32 {sf}, {w16}, {sf}")
            k.cvtf(sf, sf)
            for nt in range(2):
                k(f"v_add_u32 {lf}, {16 * nt}, {n}")
                k.cvtf(lf, lf)
                k(f"v_mul_f32 {lf}, {fhex(1 / 2048)}, {lf}")
                for r in range(4):
                    k(f"v_add_f32 {ang}, {fhex(r - shift)}, {sf}")
                    k(f"v_mul_f32 {ang}, {ang}, {lf}")
                    put(2, nt, r)

    KS = {}

    def kg_params():
        for nm in par:
            k(f"v_lshlrev_b32 {par[nm]}, 16, {par[nm]}")
        k(f"v_lshlrev_b32 {ld}, 16, {ld}")
        L2E = 1.4426950408889634
        hi = struct.unpack('<f', struct.pack('<I', struct.unpack('<I', struct.pack('<f', L2E))[0] & 0xFFFFFF00))[0]
        lo = L2E - hi
        dt, ta, tb = k.v(), k.v(), k.v()
        k(f"v_mul_f32 {ta}, {fhex(hi)}, {ld}")
        k(f"v_mul_f32 {tb}, {fhex(lo * 0.6931471805599453)}, {ld}")
        k(f"v_exp_f32 {ta}, {ta}")
        k(f"v_fma_f32 {dt}, {ta}, {tb}, {ta}")
        k.round_bf16(dt, dt, ta)
        ar, ai = par['B_A_re'], par['B_A_im']
        br, bi = par['B_B_re'], par['B_B_im']
        cr, ci = par['B_C_re'], par['B_C_im']
        for x in (ar, ai, br, bi):
            k(f"v_mul_f32 {x}, {dt}, {x}")
        cc = k.v(2, 2)
        k(f"v_mul_f32 {cc[0]}, {cr}, {br}")
        k(f"v_mul_f32 {cc[1]}, {cr}, {bi}")
        k(f"v_fma_f32 {cc[0]}, -{ci}, {bi}, {cc[0]}")
        k(f"v_fma_f32 {cc[1]}, {ci}, {br}, {cc[1]}")
        k(f"v_mul_f32 {ar}, {fhex(L2E)}, {ar}")
        k(f"v_mul_f32 {ai}, {fhex(1 / (2 * 3.141592653589793))}, {ai}")

        def seed(l):
            e = k.v(2, 2)
            k(f"v_mul_f32 {ta}, {fhex(l)}, {ar}")
            k(f"v_mul_f32 {tb}, {fhex(l)}, {ai}")
            k(f"v_exp_f32 {ta}, {ta}")
            k(f"v_fract_f32 {tb}, {tb}")
            k(f"v_cos_f32 {e[0]}, {tb}")
            k(f"v_sin_f32 {e[1]}, {tb}")
            k(f"v_mul_f32 {e[0]}, {ta}, {e[0]}")
            k(f"v_mul_f32 {e[1]}, {ta}, {e[1]}")
            return e
        E1, E4, E32, E128, E512 = seed(1), seed(4), seed(32), seed(128), seed(512)
        zc1, zc2, zr1, zr2 = k.v(2, 2), k.v(2, 2), k.v(2, 2), k.v(2, 2)
        for z in (zc1, zc2):
            k(f"v_mov_b32 {z[0]}, 1.0")
            k(f"v_mov_b32 {z[1]}, 0")
        k(f"v_mov_b32 {zr1[0]}, {cc[0]}")
        k(f"v_mov_b32 {zr1[1]}, {cc[1]}")
        tp = k.v(2, 2)
        cstep(zr2, cc, E512, tp)
        vw = k.v()
        k(f"v_and_b32 {vw}, 127, v0")
        k(f"v_lshlrev_b32 {vw}, 2, {vw}")
        k(f"v_lshrrev_b32 {ta}, 7, v0")
        k(f"v_mul_u32_u24 {ta}, {KG_CH}, {ta}")
        k(f"v_add_u32 {vw}, {vw}, {ta}")
        R1, C1, R2, C2 = L_K, L_K + 16 * KG_ROW, L_K + 48 * KG_ROW, L_K + 64 * KG_ROW
        wr1, wc1, wr2, wc2 = k.v(), k.v(), k.v(), k.v()
        k(f"v_add_u32 {wr1}, {R1}, {vw}")
        k(f"v_add_u32 {wc1}, {C1}, {vw}")
        k(f"v_add_u32 {wr2}, {R2}, {vw}")
        k(f"v_add_u32 {wc2}, {C2}, {vw}")
        k.V.free(vw, tp, E512, cc, dt, ta, tb, ld, *par.values())
        KS.update(E=(E1, E4, E32, E128), z=(zc1, zc2, zr1, zr2), w=(wc1, wc2, wr1, wr2))

    def cstep(dst, z, e, t):
        k(f"v_pk_mul_f32 {t}, {z}, {e} op_sel:[0,0] op_sel_hi:[1,0]")
        k(f"v_pk_fma_f32 {dst}, {z}, {e}, {t} op_sel:[1,1,0] op_sel_hi:[0,1,1] neg_lo:[1,0,0]")

    def kg_tables(part):
        E1, E4, E32, E128 = KS['E']
        zc1, zc2, zr1, zr2 = KS['z']
        wc1, wc2, wr1, wr2 = KS['w']
        tp = [k.v(2, 2) for _ in range(4)]
        pkd = [k.v() for _ in range(6)]
        k(f"s_mov_b32 {t2}, 8")
        k(f"L_kg_tab{part}:", manual=True)
        k.pk(pkd[0], zc1[0], zc1[1])
        k.pk(pkd[1], zc2[0], zc2[1])
        k.pk(pkd[2], zr1[0], f"-{zr1[1]}")
        k.pk(pkd[3], zr2[0], f"-{zr2[1]}")
        k(f"ds_write_b32 {wc1}, {pkd[0]}")
        k(f"ds_write_b32 {wc2}, {pkd[1]}")
        k(f"ds_write_b32 {wr1}, {pkd[2]}")
        k(f"ds_write_b32 {wr2}, {pkd[3]}")
        cstep(zc1, zc1, E1, tp[0])
        cstep(zc2, zc2, E4, tp[1])
        cstep(zr1, zr1, E32, tp[2])
        cstep(zr2, zr2, E128, tp[3])
        k.pk(pkd[4], zc1[0], zc1[1])
        k.pk(pkd[5], zc2[0], zc2[1])
        k(f"ds_write_b32 {wc1}, {pkd[4]} offset:{KG_ROW}")
        k(f"ds_write_b32 {wc2}, {pkd[5]} offset:{KG_ROW}")
        cstep(zc1, zc1, E1, tp[0])
        cstep(zc2, zc2, E4, tp[1])
        k(f"v_add_u32 {wc1}, {2 * KG_ROW}, {wc1}")
        k(f"v_add_u32 {wc2}, {2 * KG_ROW}, {wc2}")
        k(f"v_add_u32 {wr1}, {KG_ROW}, {wr1}")
        k(f"v_add_u32 {wr2}, {KG_ROW}, {wr2}")
        k(f"s_sub_u32 {t2}, {t2}, 1")
        k(f"s_cmp_lg_u32 {t2}, 0")
        k(f"s_cbranch_scc1 L_kg_tab{part}", manual=True)
        k.V.free(*tp, *pkd)
        if part == 1:
            k.V.free(*KS['E'], *KS['z'], *KS['w'])

    def kg_matmul():
        ch, blkid = rg, kt
        k(f"s_mul_i32 {t0}, {ch}, {KG_CH}")
        k(f"s_mul_i32 {t1}, {blkid}, {48 * KG_ROW}")
        k(f"s_add_u32 {t0}, {t0}, {t1}")
        k(f"s_add_u32 {t0}, {t0}, {L_K}")
        vr, tt = k.v(), k.v()
        k(f"v_mul_u32_u24 {vr}, {KG_ROW}, {n}")
        k(f"v_lshl_add_u32 {vr}, {g}, 4, {vr}")
        k(f"v_add_u32 {vr}, {t0}, {vr}")
        D = [k.v(4, 2) for _ in range(2)]
        bufs = [[k.v(4, 2) for _ in range(3)] for _ in range(3)]
        for ks in range(8):
            Ar, B0, B1 = bufs[ks % 3]
            k(f"ds_read_b128 {Ar}, {vr} offset:{ks * 64}")
            k(f"ds_read_b128 {B0}, {vr} offset:{16 * KG_ROW + ks * 64}")
            k(f"ds_read_b128 {B1}, {vr} offset:{32 * KG_ROW + ks * 64}")
            if ks >= 1:
                Ar, B0, B1 = bufs[(ks - 1) % 3]
                k.mfma(D[0], Ar, B0, D[0] if ks > 1 else None)
                k.mfma(D[1], Ar, B1, D[1] if ks > 1 else None)
        Ar, B0, B1 = bufs[7 % 3]
        k.mfma(D[0], Ar, B0, D[0])
        k.mfma(D[1], Ar, B1, D[1])
        k(f"s_lshl_b32 {t0}, {wv}, 10")
        k(f"s_add_u32 {t0}, {t0}, {L_KX}")
        k(f"v_lshlrev_b32 {vr}, 8, {g}")
        k(f"v_lshl_add_u32 {vr}, {n}, 1, {vr}")
        k(f"v_add_u32 {vr}, {t0}, {vr}")
        for nt in range(2):
            for r in range(4):
                k.pk(tt, D[nt][r], D[nt][r])
                k(f"ds_write_b16 {vr}, {tt} offset:{r * 64 + nt * 32}")
        k.V.free(vr, tt, *D, *bufs[0], *bufs[1], *bufs[2])

    def kg_expand():
        ch, q = rg, kt
        vb, vr = k.v(), k.v()
        k(f"v_lshlrev_b32 {vb}, 8, {g}")
        k(f"v_add_u32 {vb}, {vb}, {n}")
        k(f"s_lshl_b32 {t0}, {q}, 10")
        k(f"v_add_u32 {vb}, {t0}, {vb}")
        kxb, c512 = k.s(), k.s()
        k(f"s_lshl_b32 {kxb}, {ch}, 11")
        k(f"s_add_u32 {kxb}, {kxb}, {L_KX}")
        k(f"s_mov_b32 {c512}, 512")
        OPS = [k.v(4, 2) for _ in range(2)]
        ta, tb = k.v(), k.v()
        vals = [[k.v() for _ in range(8)] for _ in range(2)]
        for mt in range(2):
            for j in range(8):
                x = vals[mt][j]
                k(f"v_add_u32 {x}, {16 * mt + 32 * j}, {vb}")
                k.cvtf(x, x)
                k.round_bf16(x, x, ta)
                k(f"v_cvt_u32_f32 {x}, {x}")
                k(f"v_lshrrev_b32 {tb}, 2, {x}")
                k(f"v_add_u32 {tb}, 384, {tb}")
                k(f"v_cmp_gt_u32 vcc, {c512}, {x}")
                k(f"v_cndmask_b32 {x}, {tb}, {x}, vcc")
                k(f"v_lshl_add_u32 {x}, {x}, 1, {kxb}")
                k(f"ds_read_u16 {x}, {x}")
        for mt in range(2):
            for jp in range(4):
                k(f"v_lshl_or_b32 {OPS[mt][jp]}, {vals[mt][2 * jp + 1]}, 16, {vals[mt][2 * jp]}")
        k(f"s_lshl_b32 {t0}, {ch}, 12")
        k(f"s_lshl_b32 {t1}, {q}, 10")
        k(f"s_add_u32 {t0}, {t0}, {t1}")
        k(f"s_add_u32 {t0}, {t0}, {L_KOP}")
        k(f"v_lshlrev_b32 {vr}, 4, {lane}")
        k(f"v_add_u32 {vb}, {t0}, {vr}")
        for mt in range(2):
            k(f"ds_write_b128 {vb}, {OPS[mt]} offset:{mt * 2048}")
        k.V.free(*OPS, vb, vr, ta, tb, *vals[0], *vals[1])
        k.S.free(kxb, c512)

    def fwd_half(Dr, Di):
        fc, fs = TW[0], TW[1]
        tr = [k.v(4, 2) for _ in range(2)]
        ti = [k.v(4, 2) for _ in range(2)]
        B = [k.v(4, 2) for _ in range(2)]
        for mt in range(2):
            for r in range(4):
                k.cmul(tr[mt][r], ti[mt][r], Dr[mt][r], Di[mt][r], fc[mt][r], fs[mt][r], False)
            pack4(k, B[mt], tr[mt], ti[mt])
        Er = [k.v(4, 2) for _ in range(2)]
        Ei = [k.v(4, 2) for _ in range(2)]
        for q in range(2):
            for m2 in range(2):
                k.mfma(Er[m2], op_CS(G[m2][q]), B[q], Er[m2] if q else None)
                k.mfma(Ei[m2], op_nSC(G[m2][q]), B[q], Ei[m2] if q else None)
        k.V.free(*tr, *ti, *B)
        return Er, Ei

    def inv_half(Yr, Yi, XO):
        ic, is_ = TW[2], TW[3]
        tr = [k.v(4, 2) for _ in range(2)]
        ti = [k.v(4, 2) for _ in range(2)]
        B = [k.v(4, 2) for _ in range(2)]
        Vr = [k.v(4, 2) for _ in range(2)]
        Vi = [k.v(4, 2) for _ in range(2)]
        for m2 in range(2):
            pack4(k, B[m2], Yr[m2], Yi[m2])
        for nt in range(2):
            for q in range(2):
                k.mfma(Vr[nt], B[q], op_CnS(G[nt][q]), Vr[nt] if q else None)
                k.mfma(Vi[nt], B[q], op_SC(G[nt][q]), Vi[nt] if q else None)
        for nt in range(2):
            for r in range(4):
                k.cmul(tr[nt][r], ti[nt][r], Vr[nt][r], Vi[nt][r], ic[nt][r], is_[nt][r], True)
            pack4(k, XO[nt], tr[nt], ti[nt])
        k.V.free(*tr, *ti, *B, *Vr, *Vi)

    def kg_transform():
        vr = k.v()
        k(f"v_lshlrev_b32 {vr}, 4, {lane}")
        k(f"v_add_u32 {vr}, {L_KOP}, {vr}")
        sc = fhex(1.0 / 2048)
        for c in range(2):
            U = [[k.v(4, 2) for _ in range(2)] for _ in range(2)]
            for mt in range(2):
                for q in range(2):
                    k(f"ds_read_b128 {U[mt][q]}, {vr} offset:{c * 4096 + mt * 2048 + q * 1024}")
            Dr = [k.v(4, 2) for _ in range(2)]
            Di = [k.v(4, 2) for _ in range(2)]
            for mt in range(2):
                for q in range(2):
                    k.mfma(Dr[mt], U[mt][q], FC[q], Dr[mt] if q else None)
                    k.mfma(Di[mt], U[mt][q], FS[q], Di[mt] if q else None)
            Er, Ei = fwd_half(Dr, Di)
            for m2 in range(2):
                for r in range(4):
                    k(f"v_mul_f32 {Er[m2][r]}, {sc}, {Er[m2][r]}")
                    k(f"v_mul_f32 {Ei[m2][r]}, {sc}, {Ei[m2][r]}")
                pack4(k, KF[c][m2], Er[m2], Ei[m2])
            k.V.free(*U[0], *U[1], *Dr, *Di, *Er, *Ei)
        k.V.free(vr)

    ITEMS = {'F': gen_f64, 'G': gen_g32, 'TW0': lambda: gen_tw(0.0, TW0a), 'TW1': lambda: gen_tw(0.25, TW1a),
             'RI': gen_ri, 'FC': gen_fc, 'I2': gen_i2, 'KP': kg_params, 'KT0': lambda: kg_tables(0),
             'KT1': lambda: kg_tables(1), 'KM': kg_matmul, 'KE': kg_expand, 'KX': kg_transform,
             'BAR': lambda: k("s_barrier")}
    uid = [0]

    def window(name, guard=True):
        items = OPT['windows'].get(name, [])
        if not items:
            return
        u = uid[0]
        uid[0] += 1
        if guard:
            k(f"s_cmp_lg_u32 {it}, 0")
            k(f"s_cbranch_scc1 L_side{u}", manual=True)
        for nm in items:
            ITEMS[nm]()
        if guard:
            k("s_waitcnt lgkmcnt(0)")
            k("s_nop 7")
            k(f"L_side{u}:", manual=True)
        k.stamp('w' + name)

    gen_rf()
    window('0', guard=False)

    vUl, vG = k.v(), k.v()
    k(f"v_lshlrev_b32 {vUl}, 4, v0")
    k(f"v_lshrrev_b32 {vG}, 1, v0")
    k(f"v_lshlrev_b32 {vG}, 13, {vG}")
    k(f"v_and_b32 {tv}, 1, v0")
    k(f"v_lshl_add_u32 {vG}, {tv}, 4, {vG}")
    vzo = k.v()
    k(f"v_lshrrev_b32 {vzo}, 1, {g}")
    k(f"v_lshlrev_b32 {vzo}, 10, {vzo}")
    k(f"v_lshl_add_u32 {vzo}, {n}, 5, {vzo}")
    k(f"v_and_b32 {tv}, 1, {g}")
    k(f"v_lshl_add_u32 {vzo}, {tv}, 4, {vzo}")
    slo, shi = k.s(), k.s()
    k(f"s_mov_b32 {slo}, 0x05040100")
    k(f"s_mov_b32 {shi}, 0x07060302")
    itoff, bar, sb = k.s(), k.s(), k.s()
    k(f"s_mov_b32 {itoff}, 0")

    def gather_issue(dst, base, voff=None, blkstride=8192):
        k(f"s_lshl_b32 {t0}, {Lid}, 5")
        k(f"s_add_u32 {t0}, {t0}, {base}")
        k(f"s_add_u32 {t1}, {t0}, {128 * blkstride}")
        k(f"buffer_load_dwordx4 {dst[0]}, {voff or vG}, {sws}, {t0} offen sc1")
        k(f"buffer_load_dwordx4 {dst[1]}, {voff or vG}, {sws}, {t1} offen sc1")

    def arrive():
        u = uid[0]
        uid[0] += 1
        k("s_waitcnt vmcnt(0)")
        k("s_barrier")
        k(f"s_cmp_lg_u32 {wv}, 0")
        k(f"s_cbranch_scc1 L_arr{u}")
        x, y = k.v(), k.v()
        k(f"v_mov_b32 {y}, {bar}")
        k(f"v_lshlrev_b32 {x}, 10, {lane}")
        k(f"v_mov_b32 {tv}, {hex(OOB)}")
        k(f"v_cmp_gt_u32 vcc, 8, {lane}")
        k(f"v_cndmask_b32 {x}, {tv}, {x}, vcc")
        k(f"s_sub_u32 {t0}, {bar}, {nonce}")
        k(f"s_lshl_b32 {t0}, {t0}, 13")
        k(f"s_lshl_b32 {t1}, {Lid}, 2")
        k(f"s_add_u32 {t0}, {t0}, {t1}")
        k(f"s_add_u32 {t0}, {t0}, {FL_B}")
        k(f"buffer_store_dword {y}, {x}, {sws}, {t0} offen sc1")
        k(f"L_arr{u}:")
        k.V.free(x, y)

    def wait():
        u = uid[0]
        uid[0] += 1
        k(f"s_cmp_lg_u32 {wv}, 0")
        k(f"s_cbranch_scc1 L_wt{u}")
        x = k.v()
        q = k.v(4, 2)
        k(f"s_mov_b32 {t2}, {SPIN_MAX}")
        k(f"v_lshlrev_b32 {x}, 4, {lane}")
        k(f"s_sub_u32 {t0}, {bar}, {nonce}")
        k(f"s_lshl_b32 {t0}, {t0}, 13")
        k(f"s_lshl_b32 {t1}, {rep}, 10")
        k(f"s_add_u32 {t0}, {t0}, {t1}")
        k(f"s_add_u32 {t0}, {t0}, {FL_B}")
        k(f"L_wtl{u}:")
        k(f"buffer_load_dwordx4 {q}, {x}, {sws}, {t0} offen sc1")
        k(f"s_sub_u32 {t2}, {t2}, 1")
        k(f"s_cmp_eq_u32 {t2}, 0")
        k(f"s_cbranch_scc1 L_wt{u}")
        k(f"v_xor_b32 {q[0]}, {bar}, {q[0]}")
        k(f"v_xor_b32 {q[1]}, {bar}, {q[1]}")
        k(f"v_xor_b32 {q[2]}, {bar}, {q[2]}")
        k(f"v_xor_b32 {q[3]}, {bar}, {q[3]}")
        k(f"v_or3_b32 {q[0]}, {q[0]}, {q[1]}, {q[2]}")
        k(f"v_or_b32 {q[0]}, {q[0]}, {q[3]}")
        k(f"v_cmp_ne_u32 vcc, 0, {q[0]}")
        k(f"s_cbranch_vccnz L_wtl{u}")
        k(f"L_wt{u}:")
        k("s_barrier")
        k(f"s_add_u32 {bar}, {bar}, 1")
        k.V.free(x, q)

    k(f"v_lshlrev_b32 {tv}, 4, {lane}")
    k(f"s_lshl_b32 {t0}, {wv}, 10")
    k(f"s_add_u32 {t0}, {t0}, {L_WIM}")
    vt = k.v()
    k(f"v_add_u32 {vt}, {t0}, {tv}")
    k(f"ds_write_b128 {vt}, {XR[0]}")
    k(f"ds_write_b128 {vt}, {XR[1]} offset:4096")
    Wd = k.v(8, 2)
    for rho in range(0, 8, 2):
        for c in range(2):
            reg = Wd[(rho >> 2) * 4 + c * 2 + ((rho & 3) >> 1)]
            k(f"v_lshl_or_b32 {reg}, {Wraw[rho + 1][c]}, 16, {Wraw[rho][c]}")
    k(f"v_lshlrev_b32 {vt}, 5, v0")
    k(f"ds_write_b128 {vt}, {Wd[0:4]} offset:{L_XCH}")
    k(f"ds_write_b128 {vt}, {Wd[4:8]} offset:{L_XCH + 16}")
    k(f"v_lshrrev_b32 {vt}, 2, v0")
    k(f"v_lshlrev_b32 {vt}, 4, {vt}")
    k(f"v_and_b32 {tv}, 3, v0")
    k(f"v_lshl_add_u32 {vt}, {tv}, 1, {vt}")
    k(f"v_add_u32 {vt}, {L_XCH + 8192}, {vt}")
    k(f"ds_write_b16 {vt}, {Wn[0]}")
    k(f"ds_write_b16 {vt}, {Wn[1]} offset:8")
    k.V.free(Wd, *Wn, *[x for r in Wraw for x in r])
    k("s_barrier")
    k(f"v_lshrrev_b32 {tv}, 2, {n}")
    k(f"v_lshlrev_b32 {vt}, 10, {tv}")
    k(f"v_and_b32 {tv}, 3, {n}")
    k(f"v_lshl_add_u32 {vt}, {tv}, 3, {vt}")
    k(f"v_lshl_add_u32 {vt}, {g}, 5, {vt}")
    k(f"s_lshl_b32 {t0}, {wv}, 8")
    k(f"s_add_u32 {t0}, {t0}, {L_WIM}")
    k(f"v_add_u32 {vt}, {t0}, {vt}")
    for j in range(2):
        k(f"ds_read_b64_tr_b16 {XR[j][0:2]}, {vt} offset:{j * 128}")
        k(f"ds_read_b64_tr_b16 {XR[j][2:4]}, {vt} offset:{j * 128 + 4096}")
    WO = [k.v(4, 2) for _ in range(3)]
    k(f"ds_read_b128 {WO[0]}, {vUl} offset:{L_XCH}")
    k(f"ds_read_b128 {WO[1]}, {vUl} offset:{L_XCH + 4096}")
    k(f"ds_read_b128 {WO[2]}, {vUl} offset:{L_XCH + 8192}")
    k(f"v_lshlrev_b32 {vt}, 4, {lane}")
    k(f"s_lshl_b32 {t0}, {wv}, 11")
    k(f"v_add_u32 {vt}, {t0}, {vt}")
    for j in range(2):
        k(f"ds_write_b128 {vt}, {XR[j]} offset:{L_XL + j * 1024}")
    k(f"v_add_u32 {vt}, 8192, {vUl}")
    k(f"v_mov_b32 {tv}, {hex(OOB)}")
    k(f"v_cmp_gt_u32 vcc, 2, v0")
    k(f"v_cndmask_b32 {vt}, {tv}, {vt}, vcc")
    k(f"s_mul_i32 {t0}, {Lid}, {WT_BLK}")
    k(f"s_add_u32 {t0}, {t0}, {WT_B}")
    k(f"s_add_u32 {t1}, {t0}, 4096")
    k(f"buffer_store_dwordx4 {WO[0]}, {vUl}, {sws}, {t0} offen sc1")
    k(f"buffer_store_dwordx4 {WO[1]}, {vUl}, {sws}, {t1} offen sc1")
    k(f"buffer_store_dwordx4 {WO[2]}, {vt}, {sws}, {t0} offen sc1")
    k.V.free(vt, *WO, *XR)
    sd = scratch_srd('debug', 256)
    vt = k.v()
    k(f"v_mov_b32 {tv}, 0")
    k(f"s_mov_b32 {t2}, {SPIN_MAX}")
    k(f"s_cmp_lg_u32 {wv}, 0")
    k("s_cbranch_scc1 L_tag_done")
    k("L_tag_poll:")
    k(f"buffer_load_dword {vt}, {tv}, {sd}, 0 offen sc1")
    k(f"s_sub_u32 {t2}, {t2}, 1")
    k(f"s_cmp_eq_u32 {t2}, 0")
    k("s_cbranch_scc1 L_tag_done")
    k(f"v_readfirstlane_b32 {nonce}, {vt}")
    k(f"s_cmp_eq_u32 {nonce}, 0")
    k("s_cbranch_scc1 L_tag_poll")
    k("L_tag_done:")
    k(f"s_add_u32 {bar}, {nonce}, 1")
    k.V.free(vt)
    k("s_barrier")
    k.stamp('p1a')

    k("L_layer:")
    load_tw(RF['twa'])
    vr = k.v()
    k(f"v_lshlrev_b32 {vr}, 10, {g}")
    k(f"v_lshl_add_u32 {vr}, {n}, 4, {vr}")
    k(f"s_lshl_b32 {t0}, {rg}, 3")
    k(f"v_add_u32 {vr}, {t0}, {vr}")
    Lr = [k.v(2, 2) for _ in range(8)]
    for j in range(8):
        dh = j if j < 4 else 16 + j - 4
        k(f"ds_read_b64 {Lr[j]}, {vr} offset:{L_XL + dh * 256}")
    Aop = [k.v(4, 2) for _ in range(4)]
    for rho in range(4):
        for jp in range(4):
            k(f"v_perm_b32 {Aop[rho][jp]}, {Lr[2 * jp + 1][rho >> 1]}, {Lr[2 * jp][rho >> 1]}, {shi if rho & 1 else slo}")
    k.V.free(vr, *Lr)
    Dr = [k.v(4, 2) for _ in range(4)]
    Di = [k.v(4, 2) for _ in range(4)]
    for rho in range(4):
        k.mfma(Dr[rho], Aop[rho], RF['B1'][0:4])
        k.mfma(Di[rho], Aop[rho], RF['B1'][4:8])
    ones = k.s()
    k(f"s_mov_b32 {ones}, 0x3f803f80")
    Sx = [k.v() for _ in range(4)]
    Qx = [k.v() for _ in range(4)]
    for rho in range(4):
        k(f"v_dot2_f32_bf16 {Sx[rho]}, {Aop[rho][0]}, {ones}, 0")
        k(f"v_dot2_f32_bf16 {Qx[rho]}, {Aop[rho][0]}, {Aop[rho][0]}, 0")
    for jp in range(1, 4):
        for rho in range(4):
            k(f"v_dot2c_f32_bf16 {Sx[rho]}, {ones}, {Aop[rho][jp]}")
            k(f"v_dot2c_f32_bf16 {Qx[rho]}, {Aop[rho][jp]}, {Aop[rho][jp]}")
    k.S.free(ones)
    Sr = k.reduce4(Sx)
    Qr = k.reduce4(Qx)
    oth, alt = Sx[1], Sx[2]
    k(f"v_mov_b32_dpp {oth}, {Sr} quad_perm:[1,0,3,2] row_mask:0xf bank_mask:0xf")
    k(f"v_add_f32_dpp {Qr}, {Qr}, {Qr} quad_perm:[1,0,3,2] row_mask:0xf bank_mask:0xf")
    k(f"v_sub_f32 {alt}, {Sr}, {oth}")
    k(f"v_add_f32 {Sr}, {Sr}, {oth}")
    mbf, rstd = k.ln_finish(Sr, Qr, Sx[3])
    k(f"v_mul_f32 {mbf}, {fhex(512.0)}, {mbf}")
    s_r = [k.s() for _ in range(4)]
    s_m = [k.s() for _ in range(4)]
    s_a = [k.s() for _ in range(4)]
    for rho in range(4):
        k(f"v_readlane_b32 {s_r[rho]}, {rstd}, {ROWLANE[rho]}")
        k(f"v_readlane_b32 {s_m[rho]}, {mbf}, {ROWLANE[rho]}")
        k(f"v_readlane_b32 {s_a[rho]}, {alt}, {ROWLANE[rho]}")
    k.V.free(*Sx, *Qx, *Aop)
    D2 = [k.v(4, 2) for _ in range(4)]
    tr = [k.v(4, 2) for _ in range(2)]
    ti = [k.v(4, 2) for _ in range(2)]
    B2 = [k.v(4, 2) for _ in range(2)]
    for rho in range(4):
        for r in range(4):
            k.cmul(tr[rho & 1][r], ti[rho & 1][r], Dr[rho][r], Di[rho][r], RF['twc'][r], RF['tws'][r], False)
        b = B2[rho & 1]
        pack4(k, b, tr[rho & 1], ti[rho & 1])
        k.mfma(D2[rho], RF['A2'], b)
    k.V.free(*tr, *ti, *B2, *Dr, *Di)
    for rho in range(4):
        k(f"v_fma_f32 {D2[rho][0]}, -{RF['dcm']}, {s_m[rho]}, {D2[rho][0]}")
        k(f"v_fma_f32 {D2[rho][1]}, {RF['dcm']}, {s_a[rho]}, {D2[rho][1]}")
        for r in range(4):
            k(f"v_mul_f32 {D2[rho][r]}, {s_r[rho]}, {D2[rho][r]}")
    k.S.free(*s_r, *s_m, *s_a)
    vs = k.v()
    k(f"v_lshl_add_u32 {vs}, {g}, 6, {n}")
    k(f"s_lshl_b32 {t0}, {kt}, 4")
    k(f"v_add_u32 {vs}, {t0}, {vs}")
    k(f"v_lshlrev_b32 {vs}, 5, {vs}")
    k(f"s_lshl_b32 {t0}, {rg}, 4")
    k(f"v_add_u32 {vs}, {t0}, {vs}")
    O = [k.v(4, 2) for _ in range(2)]
    for e in range(2):
        k.pk(O[e][0], D2[0][2 * e], D2[1][2 * e])
        k.pk(O[e][1], D2[2][2 * e], D2[3][2 * e])
        k.pk(O[e][2], D2[0][2 * e + 1], D2[1][2 * e + 1])
        k.pk(O[e][3], D2[2][2 * e + 1], D2[3][2 * e + 1])
        k(f"ds_write_b128 {vs}, {O[e]} offset:{L_XCH + e * 1024}")
    k.V.free(vs, *D2)

    def store_block(lds_base, gbase):
        k(f"s_lshl_b32 {t0}, {Lid}, 13")
        k(f"s_add_u32 {t0}, {t0}, {itoff}")
        k(f"s_add_u32 {t0}, {t0}, {gbase}")
        k(f"s_add_u32 {t1}, {t0}, 4096")
        k("s_barrier")
        k(f"ds_read_b128 {O[0]}, {vUl} offset:{lds_base}")
        k(f"ds_read_b128 {O[1]}, {vUl} offset:{lds_base + 4096}")
        k(f"buffer_store_dwordx4 {O[0]}, {vUl}, {sws}, {t0} offen sc1")
        k(f"buffer_store_dwordx4 {O[1]}, {vUl}, {sws}, {t1} offen sc1")
    store_block(L_XCH, X1_B)
    k.stamp('RF')
    arrive()
    k.stamp('arr')
    load_tw(TW0a) if '1a' not in OPT['windows'] or 'TW0' not in OPT['windows']['1a'] else None
    window('1a')
    if 'TW0' in OPT['windows'].get('1a', []):
        load_tw(TW0a)
    wait()
    k.stamp('wait')

    GL = [k.v(4, 2) for _ in range(2)]
    k(f"s_add_u32 {sb}, {itoff}, {X1_B}")
    gather_issue(GL, sb)
    k(f"s_cmp_lg_u32 {it}, 0")
    k("s_cbranch_scc1 L_w_done", manual=True)
    GW = [k.v(4, 2) for _ in range(4)]
    vGW = k.v()
    k(f"v_lshrrev_b32 {vGW}, 1, v0")
    k(f"v_mul_u32_u24 {vGW}, {WT_BLK}, {vGW}")
    k(f"v_and_b32 {tv}, 1, v0")
    k(f"v_lshl_add_u32 {vGW}, {tv}, 4, {vGW}")
    k(f"s_mov_b32 {sb}, {WT_B}")
    gather_issue(GW[0:2], sb, vGW, WT_BLK)
    k(f"s_mov_b32 {t0}, {WT_B + 256 * 32}")
    k(f"s_mov_b32 {t1}, {WT_B + 256 * 32 + 128 * WT_BLK}")
    k(f"buffer_load_dwordx4 {GW[2]}, {vGW}, {sws}, {t0} offen sc1")
    k(f"buffer_load_dwordx4 {GW[3]}, {vGW}, {sws}, {t1} offen sc1")
    for nm in OPT['windows'].get('1b', []):
        ITEMS[nm]()
    k.stamp('w1b')
    k(f"ds_write_b128 {vUl}, {GW[0]} offset:{L_WIM}")
    k(f"ds_write_b128 {vUl}, {GW[1]} offset:{L_WIM + 4096}")
    k(f"ds_write_b128 {vUl}, {GW[2]} offset:{L_WIM + 8192}")
    k(f"ds_write_b128 {vUl}, {GW[3]} offset:{L_WIM + 8192 + 4096}")
    k.V.free(vGW, *GW)
    k("s_barrier")
    vw = k.v()
    k(f"v_lshrrev_b32 {vw}, 1, {g}")
    k(f"v_lshlrev_b32 {vw}, 6, {vw}")
    k(f"v_add_u32 {vw}, {vw}, {n}")
    k(f"v_add_u32 {vw}, {w16}, {vw}")
    k(f"v_lshlrev_b32 {vw}, 5, {vw}")
    k(f"v_and_b32 {tv}, 1, {g}")
    k(f"v_lshl_add_u32 {vw}, {tv}, 4, {vw}")
    Wr = [k.v(4, 2) for _ in range(2)]
    for m2 in range(2):
        k(f"ds_read_b128 {Wr[m2]}, {vw} offset:{L_WIM + m2 * 4096}")
    sc = k.s()
    k(f"s_mov_b32 {sc}, {fhex(2.0 / (2048 * 512))}")
    for m2 in range(2):
        for r in range(4):
            for c in range(2):
                dst, src = WP[m2][4 * c + r], Wr[m2][2 * c + (r >> 1)]
                if r & 1:
                    k(f"v_and_b32 {dst}, 0xffff0000, {src}")
                else:
                    k(f"v_lshlrev_b32 {dst}, 16, {src}")
                k(f"v_mul_f32 {dst}, {sc}, {dst}")
    k(f"s_cmp_lg_u32 {Lid}, 0")
    k("s_cbranch_scc1 L_wq_done")
    vb0 = k.v()
    k(f"v_lshlrev_b32 {vb0}, 8, {g}")
    k(f"v_add_u32 {vb0}, {vb0}, {n}")
    k(f"v_add_u32 {vb0}, {w16}, {vb0}")
    e = {nm: k.v() for nm in ('ks', 'k1', 'k2', 'ad', 'x')}
    val = {nm: k.v() for nm in ('a_r', 'a_i', 'ar_r', 'ar_i', 'b_r', 'b_i', 'br_r', 'br_i')}
    q4 = fhex(0.25 / (2048 * 512))

    def elem_addr(ks):
        k(f"v_and_b32 {e['k1']}, 63, {ks}")
        k(f"v_lshrrev_b32 {e['k2']}, 6, {ks}")
        k(f"v_lshrrev_b32 {e['ad']}, 3, {e['k2']}")
        k(f"v_lshl_add_u32 {e['ad']}, {e['ad']}, 6, {e['k1']}")
        k(f"v_lshlrev_b32 {e['ad']}, 5, {e['ad']}")
        k(f"v_bfe_u32 {e['x']}, {e['k2']}, 2, 1")
        k(f"v_lshl_add_u32 {e['ad']}, {e['x']}, 4, {e['ad']}")
        k(f"v_and_b32 {e['x']}, 3, {e['k2']}")
        k(f"v_lshl_add_u32 {e['ad']}, {e['x']}, 1, {e['ad']}")
    for m2 in range(2):
        for r in range(4):
            k(f"v_add_u32 {e['ks']}, {64 * (16 * m2 + r)}, {vb0}")
            elem_addr(e['ks'])
            k(f"ds_read_u16 {val['a_r']}, {e['ad']} offset:{L_WIM}")
            k(f"ds_read_u16 {val['a_i']}, {e['ad']} offset:{L_WIM + 8}")
            k(f"ds_read_u16 {val['b_r']}, {e['ad']} offset:{L_WIM + 8192}")
            k(f"ds_read_u16 {val['b_i']}, {e['ad']} offset:{L_WIM + 8192 + 8}")
            k(f"v_sub_u32 {e['ks']}, 2048, {e['ks']}")
            k(f"v_and_b32 {e['ks']}, 2047, {e['ks']}")
            elem_addr(e['ks'])
            k(f"ds_read_u16 {val['ar_r']}, {e['ad']} offset:{L_WIM}")
            k(f"ds_read_u16 {val['ar_i']}, {e['ad']} offset:{L_WIM + 8}")
            k(f"ds_read_u16 {val['br_r']}, {e['ad']} offset:{L_WIM + 8192}")
            k(f"ds_read_u16 {val['br_i']}, {e['ad']} offset:{L_WIM + 8192 + 8}")
            for nm in val:
                k(f"v_lshlrev_b32 {val[nm]}, 16, {val[nm]}")
            k(f"v_add_f32 {val['a_r']}, {val['a_r']}, {val['ar_r']}")
            k(f"v_sub_f32 {val['a_i']}, {val['a_i']}, {val['ar_i']}")
            k(f"v_add_f32 {val['b_r']}, {val['b_r']}, {val['br_r']}")
            k(f"v_sub_f32 {val['b_i']}, {val['b_i']}, {val['br_i']}")
            k(f"v_add_f32 {WP[m2][r]}, {val['a_r']}, {val['b_r']}")
            k(f"v_add_f32 {WP[m2][4 + r]}, {val['a_i']}, {val['b_i']}")
            k(f"v_sub_f32 {val['ar_r']}, {val['a_r']}, {val['b_r']}")
            k(f"v_sub_f32 {val['ar_i']}, {val['a_i']}, {val['b_i']}")
            for x in (WP[m2][r], WP[m2][4 + r], val['ar_r'], val['ar_i']):
                k(f"v_mul_f32 {x}, {q4}, {x}")
            k(f"v_accvgpr_write_b32 {WQa[8 * m2 + r]}, {val['ar_r']}")
            k(f"v_accvgpr_write_b32 {WQa[8 * m2 + 4 + r]}, {val['ar_i']}")
    k("L_wq_done:")
    k.V.free(vb0, *e.values(), *val.values(), vw, *Wr)
    k.S.free(sc)
    k("s_waitcnt lgkmcnt(0)")
    k("s_nop 3")
    k("L_w_done:", manual=True)
    k(f"ds_write_b128 {vUl}, {GL[0]} offset:{L_IMG}")
    k(f"ds_write_b128 {vUl}, {GL[1]} offset:{L_IMG + 4096}")
    vo = k.v()
    k(f"v_lshrrev_b32 {vo}, 1, {g}")
    k(f"v_lshl_add_u32 {vo}, {vo}, 5, {n}")
    k(f"v_lshlrev_b32 {vo}, 5, {vo}")
    k(f"v_and_b32 {tv}, 1, {g}")
    k(f"v_lshl_add_u32 {vo}, {tv}, 4, {vo}")
    k("s_barrier")
    k.stamp('CAld')
    X = [[k.v(4, 2) for _ in range(4)] for _ in range(2)]
    for mt in range(2):
        for q in range(4):
            k(f"ds_read_b128 {X[mt][q]}, {vo} offset:{L_IMG + q * 2048 + mt * 512}")
    Dr = [k.v(4, 2) for _ in range(2)]
    Di = [k.v(4, 2) for _ in range(2)]
    for mt in range(2):
        for q in range(4):
            k.mfma(Dr[mt], X[mt][q], op_CS(F[q]), Dr[mt] if q else None)
            k.mfma(Di[mt], X[mt][q], op_nSC(F[q]), Di[mt] if q else None)
    Er, Ei = fwd_half(Dr, Di)
    for m2 in range(2):
        for r in range(4):
            k.cmul(Dr[m2][r], Di[m2][r], Er[m2][r], Ei[m2][r], WP[m2][r], WP[m2][4 + r], True)
    k(f"s_cmp_lg_u32 {Lid}, 0")
    k("s_cbranch_scc1 L_q_done")
    vb0, ad = k.v(), k.v()
    k(f"v_lshlrev_b32 {vb0}, 8, {g}")
    k(f"v_add_u32 {vb0}, {vb0}, {n}")
    k(f"v_add_u32 {vb0}, {w16}, {vb0}")
    prs = [k.v(2, 2) for _ in range(8)]
    qq = k.v(2, 2)
    for m2 in range(2):
        for r in range(4):
            pr = prs[4 * m2 + r]
            k(f"v_add_u32 {ad}, {64 * (16 * m2 + r)}, {vb0}")
            k(f"v_lshlrev_b32 {ad}, 3, {ad}")
            k(f"v_mov_b32 {pr[0]}, {Er[m2][r]}")
            k(f"v_mov_b32 {pr[1]}, {Ei[m2][r]}")
            k(f"ds_write_b64 {ad}, {pr} offset:{L_XCH}")
    k("s_barrier")
    for m2 in range(2):
        for r in range(4):
            k(f"v_sub_u32 {ad}, {2048 - 64 * (16 * m2 + r)}, {vb0}")
            k(f"v_and_b32 {ad}, 2047, {ad}")
            k(f"v_lshlrev_b32 {ad}, 3, {ad}")
            k(f"ds_read_b64 {prs[4 * m2 + r]}, {ad} offset:{L_XCH}")
    for m2 in range(2):
        for r in range(4):
            pr = prs[4 * m2 + r]
            k(f"v_accvgpr_read_b32 {qq[0]}, {WQa[8 * m2 + r]}")
            k(f"v_accvgpr_read_b32 {qq[1]}, {WQa[8 * m2 + 4 + r]}")
            k(f"v_fma_f32 {Dr[m2][r]}, {pr[0]}, {qq[0]}, {Dr[m2][r]}")
            k(f"v_fma_f32 {Dr[m2][r]}, {pr[1]}, {qq[1]}, {Dr[m2][r]}")
            k(f"v_fma_f32 {Di[m2][r]}, {pr[0]}, {qq[1]}, {Di[m2][r]}")
            k(f"v_fma_f32 {Di[m2][r]}, -{pr[1]}, {qq[0]}, {Di[m2][r]}")
    k("s_barrier")
    k.V.free(vb0, ad, *prs, qq)
    k("L_q_done:")
    k.V.free(*Er, *Ei)
    XO = [X[0][0], X[0][1]]
    inv_half(Dr, Di, XO)
    vl, vrd = k.v(), k.v()
    k(f"s_lshl_b32 {t0}, {wv}, 11")
    k(f"v_lshlrev_b32 {vrd}, 4, {lane}")
    k(f"v_add_u32 {vl}, {t0}, {vrd}")
    for nt in range(2):
        k(f"ds_write_b128 {vl}, {XO[nt]} offset:{L_XCH + nt * 1024}")
    k("s_barrier")
    for nt in range(2):
        for kq in range(4):
            k(f"ds_read_b128 {X[nt][kq]}, {vrd} offset:{L_XCH + kq * 2048 + nt * 1024}")
    for nt in range(2):
        for kq in range(4):
            k.mfma(Dr[nt], op_CnS(F[kq]), X[nt][kq], Dr[nt] if kq else None)
            k.mfma(Di[nt], op_SC(F[kq]), X[nt][kq], Di[nt] if kq else None)
    k(f"s_lshl_b32 {t0}, {Lid}, 13")
    k(f"s_lshl_b32 {t1}, {wv}, 11")
    k(f"s_add_u32 {t0}, {t0}, {t1}")
    k(f"s_add_u32 {t0}, {t0}, {itoff}")
    k(f"s_add_u32 {t0}, {t0}, {Z_B}")
    for nt in range(2):
        k.pk(GL[nt][0], Dr[nt][0], Dr[nt][1])
        k.pk(GL[nt][1], Di[nt][0], Di[nt][1])
        k.pk(GL[nt][2], Dr[nt][2], Dr[nt][3])
        k.pk(GL[nt][3], Di[nt][2], Di[nt][3])
        k(f"buffer_store_dwordx4 {GL[nt]}, {vzo}, {sws}, {t0} offen offset:{nt * 512} sc1")
    k.V.free(vo, vl, vrd, *X[0], *X[1], *Dr, *Di)
    k.stamp('CA')
    arrive()
    k.stamp('arr')
    window('2a')
    load_tw(RI['twa'])
    wait()
    k.stamp('wait')

    k(f"s_add_u32 {sb}, {itoff}, {Z_B}")
    gather_issue(GL, sb)
    window('2b')
    k(f"ds_write_b128 {vUl}, {GL[0]} offset:{L_IMG}")
    k(f"ds_write_b128 {vUl}, {GL[1]} offset:{L_IMG + 4096}")
    vz, vx = k.v(), k.v()
    k(f"v_lshlrev_b32 {vz}, 11, {g}")
    k(f"v_lshl_add_u32 {vz}, {n}, 5, {vz}")
    k(f"s_lshl_b32 {t0}, {wv}, 3")
    k(f"v_add_u32 {vz}, {t0}, {vz}")
    k(f"v_lshlrev_b32 {vx}, 11, {g}")
    k(f"v_lshl_add_u32 {vx}, {n}, 4, {vx}")
    k(f"s_lshl_b32 {t0}, {wv}, 2")
    k(f"v_add_u32 {vx}, {t0}, {vx}")
    X = [k.v(4, 2) for _ in range(2)]
    for nt in range(2):
        for r in range(4):
            k(f"ds_read_b32 {X[nt][r]}, {vx} offset:{L_XL + nt * 256 + r * 512}")
    k("s_barrier")
    k.stamp('RIld')
    Lz = [k.v(2, 2) for _ in range(4)]
    for e_ in range(4):
        k(f"ds_read_b64 {Lz[e_]}, {vz} offset:{L_IMG + e_ * 512}")
    k.V.free(vz)
    Aop = [k.v(4, 2) for _ in range(2)]
    for e_ in range(2):
        sel = shi if e_ else slo
        k(f"v_perm_b32 {Aop[e_][0]}, {Lz[1][0]}, {Lz[0][0]}, {sel}")
        k(f"v_perm_b32 {Aop[e_][1]}, {Lz[3][0]}, {Lz[2][0]}, {sel}")
        k(f"v_perm_b32 {Aop[e_][2]}, {Lz[1][1]}, {Lz[0][1]}, {sel}")
        k(f"v_perm_b32 {Aop[e_][3]}, {Lz[3][1]}, {Lz[2][1]}, {sel}")
    szn = k.s()
    k(f"v_readlane_b32 {szn}, {Lz[0][1]}, 0")
    k.V.free(*Lz)
    Vr = [[k.v(4, 2) for _ in range(2)] for _ in range(2)]
    Vi = [[k.v(4, 2) for _ in range(2)] for _ in range(2)]
    for e_ in range(2):
        for nt in range(2):
            k.mfma(Vr[e_][nt], Aop[e_], op_CnS(RI['H'][nt]))
            k.mfma(Vi[e_][nt], Aop[e_], op_SC(RI['H'][nt]))
    Ci = [k.v(4, 2) for _ in range(2)]
    k(f"s_lshl_b32 {t0}, {szn}, 16")
    k(f"s_and_b32 {t1}, {szn}, 0xffff0000")
    for e_ in range(2):
        k(f"v_xor_b32 {Ci[e_][0]}, {t1 if e_ else t0}, {RI['sgn']}")
        for r in range(1, 4):
            k(f"v_mov_b32 {Ci[e_][r]}, {Ci[e_][0]}")
    k.S.free(szn)
    D = [[k.v(4, 2) for _ in range(2)] for _ in range(2)]
    tr = [k.v(4, 2) for _ in range(2)]
    ti = [k.v(4, 2) for _ in range(2)]
    B = [k.v(4, 2) for _ in range(2)]
    for e_ in range(2):
        for nt in range(2):
            for r in range(4):
                k.cmul(tr[nt][r], ti[nt][r], Vr[e_][nt][r], Vi[e_][nt][r], RI['twc'][nt][r], RI['tws'][nt][r], True)
            pack4(k, B[nt], tr[nt], ti[nt])
            k.mfma(D[e_][nt], RI['A2'], B[nt], Ci[e_])
    k.V.free(*tr, *ti, *B, *Ci, *Aop, *Vr[0], *Vr[1], *Vi[0], *Vi[1])
    Sp, Qp = k.v(2, 2), k.v(2, 2)
    XF = [[k.v(2, 2) for _ in range(4)] for _ in range(2)]
    yps = [k.v(2, 2) for _ in range(4)]
    xps = [k.v(2, 2) for _ in range(4)]
    tvs = [k.v() for _ in range(4)]
    for nt in range(2):
        for r in range(4):
            k.pk(tvs[r], D[0][nt][r], D[1][nt][r])
        for r in range(4):
            unpack2(k, yps[r], tvs[r])
            unpack2(k, xps[r], X[nt][r])
        for r in range(4):
            k(f"v_pk_add_f32 {yps[r]}, {yps[r]}, {xps[r]}")
        for r in range(4):
            k.pk(X[nt][r], yps[r][0], yps[r][1])
        for r in range(4):
            k(f"ds_write_b32 {vx}, {X[nt][r]} offset:{L_XL + nt * 256 + r * 512}")
            unpack2(k, XF[nt][r], X[nt][r])
        for r in range(4):
            if nt == 0 and r == 0:
                k(f"v_pk_mul_f32 {Qp}, {XF[nt][r]}, {XF[nt][r]}")
                k(f"v_mov_b32 {Sp[0]}, {XF[nt][r][0]}")
                k(f"v_mov_b32 {Sp[1]}, {XF[nt][r][1]}")
            else:
                k(f"v_pk_fma_f32 {Qp}, {XF[nt][r]}, {XF[nt][r]}, {Qp}")
                k(f"v_pk_add_f32 {Sp}, {Sp}, {XF[nt][r]}")
    k.V.free(*D[0], *D[1])
    R = k.reduce4([Sp[0], Sp[1], Qp[0], Qp[1]])
    k(f"v_add_f32_dpp {R}, {R}, {R} quad_perm:[1,0,3,2] row_mask:0xf bank_mask:0xf")
    R2 = Qp[1]
    k(f"v_mov_b32 {R2}, {R}")
    k(f"v_permlane16_swap_b32 {R}, {R2}")
    mbf, rstd = k.ln_finish(R, R2, tv)
    sm, sr = k.s(2), k.s(2)
    for e_ in range(2):
        k(f"v_readlane_b32 {sm[e_]}, {mbf}, {32 * e_}")
        k(f"v_readlane_b32 {sr[e_]}, {rstd}, {32 * e_}")
    for nt in range(2):
        for r in range(4):
            k(f"v_pk_add_f32 {yps[r]}, {XF[nt][r]}, {sm} neg_lo:[0,1] neg_hi:[0,1]")
        for r in range(4):
            k.pk(tvs[r], yps[r][0], yps[r][1])
        for r in range(4):
            unpack2(k, yps[r], tvs[r])
        for r in range(4):
            k(f"v_pk_mul_f32 {yps[r]}, {yps[r]}, {sr}")
        for r in range(4):
            k.pk(tvs[r], yps[r][0], yps[r][1])
        for r in range(4):
            k(f"ds_write_b32 {vx}, {tvs[r]} offset:{L_XCH + nt * 256 + r * 512}")
    k.S.free(sm, sr)
    k.V.free(Sp, Qp, *XF[0], *XF[1], *X, vx, *yps, *xps, *tvs)
    store_block(L_XCH, U_B)
    k.stamp('RI')
    arrive()
    k.stamp('arr')
    load_tw(TW1a)
    window('3a')
    wait()
    k.stamp('wait')

    k(f"s_add_u32 {sb}, {itoff}, {U_B}")
    gather_issue(GL, sb)
    window('3b')
    vi = k.v()
    k(f"v_lshrrev_b32 {vi}, 1, v0")
    k(f"v_lshlrev_b32 {vi}, 4, {vi}")
    k(f"v_and_b32 {tv}, 1, v0")
    k(f"v_lshl_add_u32 {vi}, {tv}, 12, {vi}")
    k(f"ds_write_b128 {vi}, {GL[0]} offset:{L_IMG}")
    k(f"ds_write_b128 {vi}, {GL[1]} offset:{L_IMG + 2048}")
    k.V.free(vi)
    vo, ve = k.v(), k.v()
    k(f"v_lshlrev_b32 {vo}, 9, {g}")
    k(f"v_lshl_add_u32 {vo}, {n}, 4, {vo}")
    k(f"v_lshrrev_b32 {ve}, 1, {g}")
    k(f"v_lshlrev_b32 {ve}, 9, {ve}")
    k(f"v_lshl_add_u32 {ve}, {n}, 4, {ve}")
    k(f"v_and_b32 {tv}, 1, {g}")
    k(f"v_lshl_add_u32 {ve}, {tv}, 3, {ve}")
    k(f"s_lshl_b32 {t0}, {wv}, 10")
    k(f"v_add_u32 {ve}, {t0}, {ve}")
    vl, vrd = k.v(), k.v()
    k(f"s_lshl_b32 {t0}, {wv}, 11")
    k(f"v_lshlrev_b32 {vrd}, 4, {lane}")
    k(f"v_add_u32 {vl}, {t0}, {vrd}")
    k("s_barrier")
    k.stamp('CBld')
    U = [[[k.v(4, 2) for _ in range(2)] for _ in range(2)] for _ in range(2)]
    for c in range(2):
        for mt in range(2):
            for q in range(2):
                k(f"ds_read_b128 {U[c][mt][q]}, {vo} offset:{L_IMG + c * 4096 + q * 2048 + mt * 256}")
    EU = [[k.v(2, 2) for _ in range(2)] for _ in range(2)]
    for c in range(2):
        for nt in range(2):
            k(f"ds_read_b64 {EU[c][nt]}, {ve} offset:{L_IMG + c * 4096 + nt * 256}")
    k.V.free(vo, ve)
    for c in range(2):
        Dr = [k.v(4, 2) for _ in range(2)]
        Di = [k.v(4, 2) for _ in range(2)]
        for mt in range(2):
            for q in range(2):
                k.mfma(Dr[mt], U[c][mt][q], FC[q], Dr[mt] if q else None)
                k.mfma(Di[mt], U[c][mt][q], FS[q], Di[mt] if q else None)
        Er, Ei = fwd_half(Dr, Di)
        wr = [k.v(4, 2) for _ in range(2)]
        wi = [k.v(4, 2) for _ in range(2)]
        for m2 in range(2):
            for r in range(4):
                for dst, src in ((wr[m2][r], KF[c][m2][r >> 1]), (wi[m2][r], KF[c][m2][2 + (r >> 1)])):
                    if r & 1:
                        k(f"v_and_b32 {dst}, 0xffff0000, {src}")
                    else:
                        k(f"v_lshlrev_b32 {dst}, 16, {src}")
            for r in range(4):
                k.cmul(Dr[m2][r], Di[m2][r], Er[m2][r], Ei[m2][r], wr[m2][r], wi[m2][r], True)
        k.V.free(*wr, *wi, *Er, *Ei)
        XO = [U[c][0][0], U[c][0][1]]
        inv_half(Dr, Di, XO)
        for nt in range(2):
            k(f"ds_write_b128 {vl}, {XO[nt]} offset:{L_XCH + c * 8192 + nt * 1024}")
        k.V.free(*Dr, *Di)
    k("s_barrier")
    D = [[k.v(4, 2) for _ in range(2)] for _ in range(2)]
    Y2 = [[k.v(4, 2) for _ in range(4)] for _ in range(2)]
    Yc = [[[U[0][0][0], U[0][0][1], U[0][1][0], U[0][1][1]], [U[1][0][0], U[1][0][1], U[1][1][0], U[1][1][1]]], Y2]
    for c in range(2):
        for nt in range(2):
            for kq in range(4):
                k(f"ds_read_b128 {Yc[c][nt][kq]}, {vrd} offset:{L_XCH + c * 8192 + kq * 2048 + nt * 1024}")
    for c in range(2):
        for nt in range(2):
            for kq in range(4):
                k.mfma(D[c][nt], I2[kq], Yc[c][nt][kq], D[c][nt] if kq else None)
    k.V.free(*U[0][0], *U[0][1], *U[1][0], *U[1][1], vl, vrd, *Y2[0], *Y2[1])
    ds2 = [k.s(2), k.s(2)]
    k(f"s_lshl_b32 {ds2[0][0]}, {dsk}, 16")
    k(f"s_and_b32 {ds2[1][0]}, {dsk}, 0xffff0000")
    yps = [k.v(2, 2) for _ in range(4)]
    ups = [k.v(2, 2) for _ in range(4)]
    tvs = [k.v() for _ in range(4)]
    for c in range(2):
        idx = [(nt, h) for nt in range(2) for h in range(2)]
        for i, (nt, h) in enumerate(idx):
            unpack2(k, ups[i], EU[c][nt][h])
        for i, (nt, h) in enumerate(idx):
            k(f"v_pk_mul_f32 {ups[i]}, {ups[i]}, {ds2[c]} op_sel_hi:[1,0]")
        for i, (nt, h) in enumerate(idx):
            k.pk(tvs[i], ups[i][0], ups[i][1])
        for i, (nt, h) in enumerate(idx):
            unpack2(k, ups[i], tvs[i])
        for i, (nt, h) in enumerate(idx):
            k.pk(tvs[i], D[c][nt][2 * h], D[c][nt][2 * h + 1])
        for i, (nt, h) in enumerate(idx):
            unpack2(k, yps[i], tvs[i])
        for i, (nt, h) in enumerate(idx):
            k(f"v_pk_add_f32 {yps[i]}, {yps[i]}, {ups[i]}")
        for i, (nt, h) in enumerate(idx):
            k.pk(GL[nt][2 * c + h], yps[i][0], yps[i][1])
    k.S.free(*ds2)
    k.V.free(*yps, *ups, *tvs, *D[0], *D[1], *EU[0], *EU[1])
    k(f"s_lshl_b32 {t0}, {Lid}, 13")
    k(f"s_lshl_b32 {t1}, {wv}, 11")
    k(f"s_add_u32 {t0}, {t0}, {t1}")
    k(f"s_add_u32 {t0}, {t0}, {itoff}")
    k(f"s_add_u32 {t0}, {t0}, {Y_B}")
    for nt in range(2):
        k(f"v_permlane16_swap_b32 {GL[nt][0]}, {GL[nt][2]}")
        k(f"v_permlane16_swap_b32 {GL[nt][1]}, {GL[nt][3]}")
        k(f"buffer_store_dwordx4 {GL[nt]}, {vzo}, {sws}, {t0} offen offset:{nt * 512} sc1")
    k.stamp('CB')
    arrive()
    k.stamp('arr')
    wait()
    k.stamp('wait')

    k(f"s_add_u32 {sb}, {itoff}, {Y_B}")
    gather_issue(GL, sb)
    XV = [k.v(4, 2) for _ in range(2)]
    k(f"ds_read_b128 {XV[0]}, {vUl} offset:{L_XL}")
    k(f"ds_read_b128 {XV[1]}, {vUl} offset:{L_XL + 4096}")
    xps = [[k.v(2, 2) for _ in range(4)] for _ in range(2)]
    yps = [k.v(2, 2) for _ in range(4)]
    for i in range(2):
        for j in range(4):
            unpack2(k, xps[i][j], XV[i][j])
    for i in range(2):
        for j in range(4):
            unpack2(k, yps[j], GL[i][j])
        for j in range(4):
            k(f"v_pk_add_f32 {yps[j]}, {yps[j]}, {xps[i][j]}")
        for j in range(4):
            k.pk(XV[i][j], yps[j][0], yps[j][1])
        k(f"ds_write_b128 {vUl}, {XV[i]} offset:{L_XL + i * 4096}")
    k.V.free(*yps, *xps[0], *xps[1], *XV)
    k("s_barrier")
    k.stamp('resid')
    k(f"s_add_u32 {it}, {it}, 1")
    k(f"s_add_u32 {itoff}, {itoff}, {IT_STRIDE}")
    k(f"s_cmp_lt_u32 {it}, 2")
    k("s_cbranch_scc1 L_layer")

    vt = k.v()
    k(f"v_lshrrev_b32 {tv}, 2, {n}")
    k(f"v_lshlrev_b32 {vt}, 4, {tv}")
    k(f"v_and_b32 {tv}, 1, {n}")
    k(f"v_lshl_add_u32 {vt}, {tv}, 3, {vt}")
    k(f"v_bfe_u32 {tv}, {n}, 1, 1")
    k(f"v_lshl_add_u32 {vt}, {tv}, 7, {vt}")
    k(f"v_lshl_add_u32 {vt}, {g}, 8, {vt}")
    k(f"s_lshl_b32 {t0}, {wv}, 11")
    k(f"v_add_u32 {vt}, {t0}, {vt}")
    OT = [k.v(4, 2) for _ in range(2)]
    for j in range(2):
        for h in range(2):
            k(f"ds_read_b64_tr_b16 {OT[j][2 * h:2 * h + 2]}, {vt} offset:{L_XL + j * 1024 + h * 64}")
    so = scratch_srd('out', 2048 * 512 * 2)
    vo = k.v()
    k(f"v_and_b32 {vo}, 7, {n}")
    k(f"v_lshlrev_b32 {vo}, 15, {vo}")
    k(f"v_lshrrev_b32 {tv}, 3, {n}")
    k(f"v_lshl_add_u32 {vo}, {tv}, 4, {vo}")
    k(f"v_lshl_add_u32 {vo}, {g}, 5, {vo}")
    k(f"s_lshl_b32 {t0}, {a8}, 8")
    k(f"s_add_u32 {t0}, {t0}, {bs}")
    k(f"s_lshl_b32 {t0}, {t0}, 10")
    k(f"s_lshl_b32 {t1}, {wv}, 8")
    k(f"s_add_u32 {t0}, {t0}, {t1}")
    for j in range(2):
        k(f"buffer_store_dwordx4 {OT[j]}, {vo}, {so}, {t0} offen offset:{j * 128}")
    if OPT['stamps']:
        k.stamp('final')
        k.stamp('drain', "s_waitcnt vmcnt(0)")
        k(f"v_lshlrev_b32 {vt}, 2, {lane}")
        k(f"s_lshl_b32 {t0}, s2, 8")
        k(f"s_add_u32 {t0}, {t0}, {TS_OFF}")
        k(f"s_mov_b32 {sws[2]}, {hex(TS_OFF + 0x100000)}")
        k(f"s_cmp_lg_u32 {wv}, 0")
        k("s_cbranch_scc1 L_end")
        k(f"buffer_store_dword {k.v_ts}, {vt}, {sws}, {t0} offen")
    k("L_end:")
    k("s_endpgm")
    k("L_code_end:", manual=True)
    body = k.a.finish()
    print(f"vgpr={k.V.hi} agpr={k.A.hi} sgpr={k.S.hi} lds={LDS_BYTES} instrs={k.a.count()}")
    return k, body


def write(path):
    k, body = build()
    hdr = list(HDR)
    hdr.append(f"; @launch grid=(256,1,1) block=(256,1,1) lds={LDS_BYTES}")
    hdr.append('.amdgcn_target "amdgcn-amd-amdhsa--gfx950"')
    hdr.append('.text')
    txt = '\n'.join(hdr) + '\n' + kernel_text(KN, body)
    txt += '.section .rodata,"a"\n' + descriptor(KN, 256 + max(k.A.hi, 8), max(k.S.hi, 16), accum=256)
    open(path, 'w').write(txt)
    return k


def stamp_sequence(names):
    i0 = names.index('RF')
    i1 = names.index('resid') + 1
    body = names[i0:i1]
    second = [x for x in body if x != 'w1b']
    return names[:i1] + second + names[i1:]


if __name__ == '__main__':
    if len(sys.argv) > 1 and sys.argv[1] == 'stamps':
        OPT['stamps'] = True
        kk = write('pers_ts.s')
        open('pers_ts.names', 'w').write(','.join(stamp_sequence(kk.stamp_names)))
    else:
        write('pers.s')
```

```python
import re

REG_RE = re.compile(r'^(-|abs\()?([vsa])(\d+)\)?$')
RNG_RE = re.compile(r'^(-|abs\()?([vsa])\[(\d+):(\d+)\]\)?$')

TRANS = ('v_exp_f32', 'v_log_f32', 'v_rcp_f32', 'v_rsq_f32', 'v_sqrt_f32', 'v_sin_f32', 'v_cos_f32',
         'v_rcp_iflag_f32')
RMW_DST = ('v_fmac_f32', 'v_dot2c_f32_bf16', 'v_pk_fmac_f16', 'v_writelane_b32', 'v_fmac_f32_e32',
           'v_dot2c_f32_bf16_e32')
NO_DST_S = ('s_cmp', 's_waitcnt', 's_barrier', 's_nop', 's_branch', 's_cbranch', 's_setprio', 's_endpgm',
            's_sleep', 's_setreg', 's_bitcmp', 's_sethalt', 's_setpc')


def regs_of(tok):
    tok = tok.strip()
    m = REG_RE.match(tok)
    if m:
        return {(m.group(2), int(m.group(3)))}
    m = RNG_RE.match(tok)
    if m:
        return {(m.group(2), i) for i in range(int(m.group(3)), int(m.group(4)) + 1)}
    if tok == 'vcc':
        return {('s', 106), ('s', 107)}
    if tok == 'vcc_lo':
        return {('s', 106)}
    if tok == 'vcc_hi':
        return {('s', 107)}
    if tok == 'exec':
        return {('s', 126), ('s', 127)}
    if tok == 'exec_lo':
        return {('s', 126)}
    if tok == 'exec_hi':
        return {('s', 127)}
    if tok == 'm0':
        return {('s', 124)}
    return set()


def split_ops(s):
    out, depth, cur = [], 0, ''
    for ch in s:
        if ch in '[(':
            depth += 1
        if ch in '])':
            depth -= 1
        if ch == ',' and depth == 0:
            out.append(cur.strip())
            cur = ''
        else:
            cur += ch
    if cur.strip():
        out.append(cur.strip())
    return out


class Ins:
    __slots__ = ('text', 'mn', 'ops', 'mods', 'kind', 'R', 'W', 'srcA', 'srcB', 'srcC', 'passes', 'dpp',
                 'trans', 'wide_store', 'lds_dma', 'manual', 'nosched')

    def __init__(self, text, manual=False):
        self.text = text
        self.manual = manual
        self.nosched = False
        t = text.split(';')[0].strip()
        self.R, self.W = set(), set()
        self.srcA = self.srcB = self.srcC = set()
        self.passes = 0
        self.dpp = self.trans = self.wide_store = self.lds_dma = False
        if t.endswith(':'):
            self.kind, self.mn, self.ops, self.mods = 'label', t, [], ''
            return
        if t.startswith('.') or not t:
            self.kind, self.mn, self.ops, self.mods = 'dir', t, [], ''
            return
        parts = t.split(None, 1)
        mn = parts[0]
        self.mn = mn
        rest = parts[1] if len(parts) > 1 else ''
        ops = split_ops(rest)
        mods = ''
        if ops:
            last = ops[-1].split(None, 1)
            if len(last) > 1 and not last[0].startswith('vmcnt') and not last[0].startswith('lgkmcnt'):
                ops[-1], mods = last[0], last[1]
        self.ops, self.mods = ops, mods
        base = re.sub(r'_(e32|e64|dpp|sdwa)$', '', mn)
        rg = [regs_of(o) for o in ops]

        def U(idx):
            s = set()
            for i in idx:
                if i < len(rg):
                    s |= rg[i]
            return s
        n = len(ops)
        if base.startswith('v_mfma'):
            self.kind = 'mfma'
            self.W = rg[0]
            self.srcA, self.srcB, self.srcC = rg[1], rg[2], rg[3]
            self.R = rg[1] | rg[2] | rg[3]
            if '16x16x32' in base or '16x16x16' in base:
                self.passes = 4
            elif '32x32x16' in base or '32x32x8' in base:
                self.passes = 8
            else:
                raise ValueError('unmodelled mfma ' + base)
        elif base.startswith('v_'):
            self.kind = 'valu'
            self.trans = base in TRANS
            self.dpp = mn.endswith('_dpp') or any(k in mods for k in ('row_', 'quad_perm', 'wave_'))
            if base.startswith('v_permlane') and 'swap' in base:
                self.W = U([0, 1])
                self.R = U([0, 1])
            elif base.startswith('v_cmp'):
                self.W = rg[0]
                self.R = U(range(1, n))
            elif base in ('v_add_co_u32', 'v_sub_co_u32', 'v_addc_co_u32', 'v_subb_co_u32', 'v_subrev_co_u32'):
                self.W = U([0, 1])
                self.R = U(range(2, n))
            elif base == 'v_cndmask_b32':
                self.W = rg[0]
                self.R = U(range(1, n))
                if n == 3:
                    self.R |= regs_of('vcc')
            else:
                self.W = rg[0]
                self.R = U(range(1, n))
                if base in RMW_DST or self.dpp:
                    self.R |= rg[0]
            if base == 'v_nop':
                self.W, self.R = set(), set()
        elif base.startswith('ds_'):
            self.kind = 'ds'
            if base.startswith('ds_read') or base.startswith('ds_bpermute') or base.startswith('ds_swizzle') \
                    or base.startswith('ds_permute'):
                self.W = rg[0]
                self.R = U(range(1, n))
                if 'd16' in base:
                    self.R |= rg[0]
            else:
                self.R = U(range(n))
        elif base.startswith('buffer_') or base.startswith('global_'):
            self.kind = 'vmem'
            words = mods.split()
            if base in ('buffer_wbl2', 'buffer_inv'):
                pass
            elif 'lds' in words or '_lds_' in base:
                self.lds_dma = True
                self.R = U(range(n)) | regs_of('m0')
            elif '_load' in base:
                self.W = rg[0]
                self.R = U(range(1, n))
                if 'd16' in base:
                    self.R |= rg[0]
            elif '_atomic' in base:
                self.R = U(range(n))
                if 'sc0' in words:
                    self.W = rg[0]
            else:
                self.R = U(range(n))
                self.wide_store = 'x4' in base or 'x3' in base
                if self.wide_store:
                    self.srcA = rg[0] if base.startswith('buffer_') else rg[1]
        elif base.startswith('s_load') or base.startswith('s_buffer_load') or base in ('s_memtime', 's_memrealtime'):
            self.kind = 'smem'
            self.W = rg[0]
            self.R = U(range(1, n))
        elif base.startswith('s_'):
            self.kind = 'salu'
            if any(base.startswith(p) for p in NO_DST_S):
                self.R = U(range(n))
                if base in ('s_cbranch_vccz', 's_cbranch_vccnz'):
                    self.R |= regs_of('vcc')
                if base in ('s_cbranch_execz', 's_cbranch_execnz'):
                    self.R |= regs_of('exec')
            else:
                self.W = rg[0]
                self.R = U(range(1, n))
                if 'saveexec' in base:
                    self.W |= regs_of('exec')
                    self.R |= regs_of('exec')
                if base in ('s_addk_i32', 's_mulk_i32'):
                    self.R |= rg[0]
        else:
            raise ValueError('unmodelled instruction: ' + text)

    @property
    def is_branch(self):
        return self.kind == 'salu' and (self.mn.startswith('s_branch') or self.mn.startswith('s_cbranch')
                                        or self.mn.startswith('s_endpgm') or self.mn.startswith('s_setpc'))


def is_vgpr(r):
    return r[0] in ('v', 'a')


def wait_text(vm, lg):
    parts = []
    if vm is not None:
        parts.append('vmcnt(%d)' % min(vm, 63))
    if lg is not None:
        parts.append('lgkmcnt(%d)' % min(lg, 15))
    return 's_waitcnt ' + ' '.join(parts)


class Asm:
    def __init__(self):
        self.ins = []

    def __call__(self, text, manual=False):
        for line in text.split('\n'):
            line = line.strip()
            if not line or line.startswith(';'):
                continue
            self.ins.append(Ins(line, manual))

    def label(self, name):
        self.ins.append(Ins(name + ':'))

    def insert_waits(self):
        out = []
        vm = []
        lg = []
        saved = {}
        for i in self.ins:
            if i.kind == 'dir':
                out.append(i)
                continue
            if i.manual and i.is_branch and i.ops:
                saved.setdefault(i.ops[0], []).append(([set(d) for d in vm], [(kd, set(d)) for kd, d in lg]))
            if i.manual and i.kind == 'label':
                states = saved.pop(i.mn[:-1], []) + [(vm, lg)]
                dv, dl, anyv, anyl, sm = set(), set(), False, False, False
                for v_, l_ in states:
                    for d in v_:
                        dv |= d
                        anyv = True
                    for kd, d in l_:
                        dl |= d
                        anyl = True
                        sm = sm or kd == 'smem'
                vm = [dv] if anyv else []
                lg = [('smem' if sm else 'ds', dl)] if anyl else []
                out.append(i)
                continue
            touched = i.R | i.W
            need_vm = need_lg = None
            boundary = i.kind == 'label' or i.is_branch
            if boundary and not i.manual:
                idx = [k for k, d in enumerate(vm) if d]
                if idx:
                    need_vm = len(vm) - 1 - max(idx)
                if any(d for _, d in lg):
                    need_lg = 0
            else:
                for k, d in enumerate(vm):
                    if d & touched:
                        c = len(vm) - 1 - k
                        need_vm = c if need_vm is None else min(need_vm, c)
                smem_out = any(kd == 'smem' for kd, _ in lg)
                for k, (kd, d) in enumerate(lg):
                    if d & touched:
                        c = 0 if smem_out else len(lg) - 1 - k
                        need_lg = c if need_lg is None else min(need_lg, c)
                if i.mn == 's_barrier' and lg:
                    need_lg = 0
            if i.mn == 's_waitcnt':
                m = re.search(r'vmcnt\((\d+)\)', i.text)
                if m:
                    c = int(m.group(1))
                    vm = vm[len(vm) - c:] if c < len(vm) else vm
                    if c == 0:
                        vm = []
                m = re.search(r'lgkmcnt\((\d+)\)', i.text)
                if m:
                    c = int(m.group(1))
                    if c == 0:
                        lg = []
                    elif not any(kd == 'smem' for kd, _ in lg):
                        lg = lg[len(lg) - c:] if c < len(lg) else lg
                out.append(i)
                continue
            if need_vm is not None or need_lg is not None:
                if need_vm is not None:
                    need_vm = min(need_vm, 63)
                if need_lg is not None:
                    need_lg = min(need_lg, 15)
                out.append(Ins(wait_text(need_vm, need_lg)))
                if need_vm is not None:
                    vm = vm[len(vm) - need_vm:] if need_vm > 0 else []
                if need_lg is not None:
                    lg = lg[len(lg) - need_lg:] if need_lg > 0 else []
            out.append(i)
            if i.kind == 'vmem':
                vm.append(set(i.W))
            elif i.kind == 'ds':
                lg.append(('ds', set(i.W)))
            elif i.kind == 'smem':
                lg.append(('smem', set(i.W)))
            if boundary and not i.manual:
                vm = [set() for _ in vm]
                lg = [('smem', set())] if lg else []
        self.ins = out

    @staticmethod
    def required(p, c):
        need = 0
        cw_v = {r for r in c.W if is_vgpr(r)}
        cr_v = {r for r in c.R if is_vgpr(r)}
        pw_v = {r for r in p.W if is_vgpr(r)}
        pw_s = {r for r in p.W if r[0] == 's'}
        cr_s = {r for r in c.R if r[0] == 's'}
        if p.kind == 'valu':
            if c.kind == 'mfma' and pw_v & c.R:
                need = max(need, 2)
            if c.kind == 'valu':
                if p.trans and pw_v & cr_v:
                    need = max(need, 1)
                if c.dpp and pw_v & cr_v:
                    need = max(need, 2)
                if c.mn.startswith('v_permlane') and pw_v & cr_v:
                    need = max(need, 2)
                if (c.mn.startswith('v_readlane') or c.mn.startswith('v_readfirstlane')) and pw_v & cr_v:
                    need = max(need, 1)
                if pw_s & cr_s:
                    need = max(need, 4 if (c.mn.startswith('v_readlane') or c.mn.startswith('v_writelane')) else 2)
                if ('op_sel' in p.mods and not p.mn.startswith('v_pk_')) or 'dst_sel' in p.mods:
                    if pw_v & (cr_v | cw_v):
                        need = max(need, 1)
            if c.kind == 'vmem' and pw_s & cr_s:
                need = max(need, 5)
            if c.kind in ('salu', 'smem') and pw_s & cr_s:
                need = max(need, 4)
            if p.trans and c.kind in ('vmem', 'ds') and pw_v & cr_v:
                need = max(need, 1)
        if p.kind == 'mfma':
            n = p.passes
            if c.kind == 'mfma':
                if p.W & (c.srcA | c.srcB):
                    need = max(need, {4: 8, 8: 12}[n])
                if p.W & c.srcC:
                    if not (p.W == c.srcC and p.passes == c.passes):
                        need = max(need, {4: 6, 8: 10}[n])
                elif p.W & c.W:
                    need = max(need, {4: 8, 8: 12}[n])
            elif c.kind in ('valu', 'vmem', 'ds'):
                if p.W & (cr_v | cw_v):
                    need = max(need, {4: 8, 8: 12}[n])
                if p.srcC & cw_v:
                    need = max(need, {4: 3, 8: 7}[n])
        if p.kind == 'vmem' and p.wide_store and c.kind in ('valu', 'mfma', 'ds', 'vmem'):
            if p.srcA & cw_v:
                need = max(need, 2)
        if p.kind == 'salu' and ('s', 124) in p.W and (c.lds_dma or 'addtid' in c.mn):
            need = max(need, 1)
        if p.kind == 'salu' and pw_s & regs_of('exec') and c.kind == 'valu' and c.dpp:
            need = max(need, 1)
        return need

    @staticmethod
    def residual(p):
        if p.kind == 'mfma':
            return {4: 8, 8: 12}[p.passes]
        if p.kind == 'valu':
            sw = {r for r in p.W if r[0] == 's'}
            if sw and sw <= regs_of('vcc'):
                return 2
            if sw:
                return 5
            return 2 if p.W else 0
        if p.kind == 'vmem' and p.wide_store:
            return 2
        if p.kind == 'salu' and ('s', 124) in p.W:
            return 1
        return 0

    def insert_nops(self):
        out = []
        hist = []
        for i in self.ins:
            if i.kind == 'dir':
                out.append(i)
                continue
            need = 0
            if i.kind == 'label' or (i.is_branch and not i.mn.startswith('s_endpgm')):
                extra = 1 if i.kind != 'label' else 0
                for p, d in hist:
                    need = max(need, self.residual(p) - d - extra)
            else:
                for p, d in hist:
                    need = max(need, self.required(p, i) - d)
            while need > 0:
                k = min(need, 16)
                out.append(Ins('s_nop %d' % (k - 1)))
                hist = [(p, d + k) for p, d in hist]
                need -= k
            out.append(i)
            if i.kind == 'label':
                hist = []
                continue
            step = 1
            if i.mn == 's_nop':
                step = int(i.ops[0]) + 1
            hist = [(p, d + step) for p, d in hist if d + step < 24]
            hist.append((i, 0))
        self.ins = out

    VOP3_MN = ('v_fma_f32', 'v_perm_b32', 'v_cvt_pk_bf16_f32', 'v_lshl_add_u32', 'v_lshl_or_b32', 'v_bfe_u32',
               'v_or3_b32', 'v_dot2_f32_bf16', 'v_readlane_b32', 'v_writelane_b32', 'v_mul_lo_u32', 'v_and_or_b32',
               'v_accvgpr_write_b32', 'v_accvgpr_read_b32', 'v_add3_u32', 'v_mad_u32_u24')

    @classmethod
    def issue_cost(cls, i):
        if i.kind == 'mfma':
            return 8
        if i.kind == 'valu':
            if i.trans or i.mn.startswith('v_permlane'):
                return 8
            if i.mn.startswith('v_pk_') or i.mn in cls.VOP3_MN or i.dpp or ' -v' in i.text or '0x' in i.text:
                return 5
            return 4
        if i.mn == 's_nop':
            return 4 * (int(i.ops[0]) + 1)
        return 4

    @staticmethod
    def lds_cost(i):
        if i.mn.startswith('ds_write'):
            return 52 if 'b128' in i.mn else (24 if 'b64' in i.mn else 16)
        return 16 if 'b128' in i.mn else 8

    @classmethod
    def latency(cls, p, c, raw):
        base = cls.issue_cost(p)
        ws = cls.required(p, c)
        lat = base + 4 * ws
        if raw:
            if p.kind == 'mfma':
                if c.kind == 'mfma' and p.W == c.srcC:
                    lat = max(lat, 16)
                else:
                    lat = max(lat, 36)
            elif p.kind == 'ds':
                lat = max(lat, 128)
            elif p.kind == 'vmem':
                lat = max(lat, 1500)
            elif p.kind == 'smem':
                lat = max(lat, 300)
        return lat

    def schedule_block(self, blk):
        n = len(blk)
        if n < 3:
            return blk
        preds = [dict() for _ in range(n)]
        lastw, readers = {}, {}
        last_salu = last_vmem = last_ldsw = None
        lds_since = []
        for j, c in enumerate(blk):
            def dep(i_, raw):
                if i_ is None or i_ == j:
                    return
                l = self.latency(blk[i_], c, raw)
                preds[j][i_] = max(preds[j].get(i_, 0), l)
            for r in c.R:
                dep(lastw.get(r), True)
            for r in c.W:
                dep(lastw.get(r), False)
                for i_ in readers.get(r, []):
                    dep(i_, False)
            if c.kind in ('salu', 'smem'):
                dep(last_salu, False)
                last_salu = j
            if c.kind == 'vmem':
                dep(last_vmem, False)
                last_vmem = j
            if c.kind == 'ds':
                if c.W and not c.mn.startswith('ds_write'):
                    dep(last_ldsw, False)
                    lds_since.append(j)
                else:
                    dep(last_ldsw, False)
                    for i_ in lds_since:
                        dep(i_, False)
                    last_ldsw = j
                    lds_since = []
            for r in c.R:
                readers.setdefault(r, []).append(j)
            for r in c.W:
                lastw[r] = j
                readers[r] = []
        succs = [[] for _ in range(n)]
        for j in range(n):
            for i_, l in preds[j].items():
                succs[i_].append((j, l))
        prio = [0] * n
        for i_ in range(n - 1, -1, -1):
            prio[i_] = max([l + prio[j] for j, l in succs[i_]] + [self.issue_cost(blk[i_])])
        left = [len(preds[j]) for j in range(n)]
        earliest = [0] * n
        ready = [j for j in range(n) if left[j] == 0]
        t = 0
        mfma_free = 0
        lds_free = 0
        order = []
        while ready:
            best, bkey = None, None
            for j in ready:
                c = blk[j]
                st = max(t, earliest[j])
                if c.kind == 'mfma':
                    st = max(st, mfma_free)
                elif c.mn.startswith('v_pk_'):
                    st = max(st, mfma_free)
                elif c.kind == 'ds':
                    st = max(st, lds_free - 64)
                key = (st if st > t else t, -prio[j], j)
                if bkey is None or key < bkey:
                    best, bkey = j, key
            j = best
            c = blk[j]
            st = bkey[0]
            order.append(c)
            ready.remove(j)
            t = st + self.issue_cost(c)
            if c.kind == 'mfma':
                mfma_free = st + 16
            elif c.mn.startswith('v_pk_'):
                mfma_free = max(mfma_free, t)
            elif c.kind == 'ds':
                lds_free = max(lds_free, st) + self.lds_cost(c)
            for j2, l in succs[j]:
                earliest[j2] = max(earliest[j2], st + l)
                left[j2] -= 1
                if left[j2] == 0:
                    ready.append(j2)
        assert len(order) == n
        self.sched_cycles += t
        return order

    def schedule(self):
        out, blk = [], []
        self.sched_cycles = 0
        for i in self.ins:
            fence = (i.kind in ('label', 'dir') or i.is_branch or i.nosched or
                     i.mn in ('s_barrier', 's_waitcnt', 's_nop', 's_endpgm', 's_getpc_b64', 's_memrealtime', 's_sleep')
                     or 'saveexec' in i.mn or ('s', 126) in i.W or ('s', 124) in i.W)
            if fence:
                out += self.schedule_block(blk)
                blk = []
                out.append(i)
            else:
                blk.append(i)
        out += self.schedule_block(blk)
        self.ins = out

    def finish(self, sched=False):
        if sched:
            self.schedule()
        self.insert_waits()
        self.insert_nops()
        lines = []
        for i in self.ins:
            lines.append(i.text if i.kind in ('label', 'dir') else '    ' + i.text)
        return '\n'.join(lines) + '\n'

    def count(self):
        return sum(1 for i in self.ins if i.kind not in ('label', 'dir'))


class Regs:
    def __init__(self, prefix, first, limit):
        self.p, self.limit = prefix, limit
        self.used = set(range(first))
        self.hi = first

    def alloc(self, n=1, align=None):
        if align is None:
            align = 1 if n == 1 else (2 if self.p == 'v' else (2 if n == 2 else 4))
        b = 0
        while True:
            b = (b + align - 1) // align * align
            if all((b + k) not in self.used for k in range(n)):
                break
            b += 1
        if b + n > self.limit:
            raise RuntimeError('out of %s registers' % self.p)
        self.used |= set(range(b, b + n))
        self.hi = max(self.hi, b + n)
        return Reg(self.p, b, n)

    def free(self, *rs):
        for r in rs:
            self.used -= set(range(r.b, r.b + r.n))


class Reg:
    def __init__(self, p, b, n):
        self.p, self.b, self.n = p, b, n

    def __str__(self):
        return '%s%d' % (self.p, self.b) if self.n == 1 else '%s[%d:%d]' % (self.p, self.b, self.b + self.n - 1)

    def __getitem__(self, k):
        if isinstance(k, slice):
            st = k.start or 0
            en = self.n if k.stop is None else k.stop
            assert 0 <= st < en <= self.n, (st, en, self.n)
            return Reg(self.p, self.b + st, en - st)
        assert 0 <= k < self.n, (k, self.n)
        return Reg(self.p, self.b + k, 1)

    def __format__(self, spec):
        return str(self)
```

```python
import numpy as np

lane = np.arange(64)
N16 = lane & 15
G4 = lane >> 4


def bf16_bits(x):
    u = np.asarray(x, dtype=np.float32).view(np.uint32)
    return ((u + 0x7FFF + ((u >> 16) & 1)) >> 16).astype(np.uint32)


def pk(lo, hi):
    return bf16_bits(lo) | (bf16_bits(hi) << 16)


def f32(x):
    return np.asarray(x, dtype=np.float32).view(np.uint32)


def cs(num, den):
    a = np.asarray(num, dtype=np.float64) / den
    a = a - np.floor(a)
    c, s = np.cos(2 * np.pi * a), np.sin(2 * np.pi * a)
    c[np.abs(c) < 1e-12] = 0.0
    s[np.abs(s) < 1e-12] = 0.0
    return c, s


def blocks(lane_idx, slot0, den):
    c, s = zip(*[cs(lane_idx * (slot0 + j), den) for j in range(4)])
    C = [pk(c[0], c[1]), pk(c[2], c[3])]
    S = [pk(s[0], s[1]), pk(s[2], s[3])]
    nS = [pk(-s[0], -s[1]), pk(-s[2], -s[3])]
    return C + S + C + nS + C


def rf_kt(kt):
    k1 = 16 * kt + N16
    dh = [4 * G4 + j if j < 4 else 16 + 4 * G4 + (j - 4) for j in range(8)]
    c, s = zip(*[cs(dh[j] * k1, 32) for j in range(8)])
    regs = [pk(c[2 * p], c[2 * p + 1]) for p in range(4)] + [pk(-s[2 * p], -s[2 * p + 1]) for p in range(4)]
    tw = [cs((4 * G4 + r) * k1, 512) for r in range(4)]
    return regs + [f32(t[0]) for t in tw] + [f32(t[1]) for t in tw]


def rf_a2():
    k2, cq = N16 >> 1, N16 & 1
    v = [cs((4 * G4 + j) * k2 + 4 * cq, 16) for j in range(4)]
    return [pk(v[0][0], v[1][0]), pk(v[2][0], v[3][0]), pk(v[0][1], v[1][1]), pk(v[2][1], v[3][1])]


def g32():
    return sum([blocks(16 * t + N16, 16 * q + 4 * G4, 32) for t in range(2) for q in range(2)], [])


def ri_common():
    H = sum([blocks(16 * nt + N16, 4 * G4, 32) for nt in range(2)], [])
    v = [cs((4 * G4 + j) * N16, 16) for j in range(4)]
    A2 = [pk(v[0][0], v[1][0]), pk(v[2][0], v[3][0]), pk(-v[0][1], -v[1][1]), pk(-v[2][1], -v[3][1])]
    tw = []
    for nt in range(2):
        t = [cs((4 * G4 + r) * (16 * nt + N16), 512) for r in range(4)]
        tw += [f32(x[0]) for x in t] + [f32(x[1]) for x in t]
    return H + A2 + tw


def f64(w):
    return sum([blocks(16 * w + N16, 16 * q + 4 * G4, 64) for q in range(4)], [])


def tw(w, shift4):
    fc, fs, ic, is_ = [], [], [], []
    for mt in range(2):
        for r in range(4):
            c, s = cs((16 * mt + 4 * G4 + r) * (4 * (16 * w + N16) - shift4), 8192)
            fc.append(f32(c))
            fs.append(f32(s))
    for nt in range(2):
        for r in range(4):
            c, s = cs((16 * nt + N16) * (4 * (16 * w + 4 * G4 + r) - shift4), 8192)
            ic.append(f32(c))
            is_.append(f32(s))
    return fc + fs + ic + is_


def fcs(w):
    out = []
    for q in range(2):
        v = [cs((32 * q + 8 * G4 + j) * (4 * (16 * w + N16) - 1), 256) for j in range(8)]
        out += [pk(v[2 * p][0], v[2 * p + 1][0]) for p in range(4)] + [pk(-v[2 * p][1], -v[2 * p + 1][1]) for p in range(4)]
    return out


def i2(w):
    out = []
    for kq in range(4):
        v = [cs((16 * w + N16) * (4 * (16 * kq + 4 * G4 + j) - 1), 256) for j in range(4)]
        out += [pk(v[0][0], v[1][0]), pk(v[2][0], v[3][0]), pk(-v[0][1], -v[1][1]), pk(-v[2][1], -v[3][1])]
    return out


def chunks(regs):
    regs = [np.asarray(r, dtype=np.uint32) for r in regs]
    assert len(regs) % 4 == 0
    return np.stack([np.stack(regs[i:i + 4], axis=1) for i in range(0, len(regs), 4)])


COMMON = ('rfa2', 4), ('g', 40), ('rih', 20), ('ria2', 4), ('ritw', 16)
PERKT = (('rfb1', 8), ('rftw', 8))
PERW = (('f', 40), ('tw0', 32), ('fcs', 16), ('i2', 16), ('tw1', 32))


def build():
    common = chunks(rf_a2() + g32() + ri_common())
    perkt = [chunks(rf_kt(kt)) for kt in range(2)]
    perw = [chunks(f64(w) + tw(w, 0) + fcs(w) + i2(w) + tw(w, 1)) for w in range(4)]
    return common, perkt, perw


def emit():
    common, perkt, perw = build()
    data = np.concatenate([common.reshape(-1)] + [p.reshape(-1) for p in perkt] + [p.reshape(-1) for p in perw])
    q = data.view(np.uint64)
    lines = []
    for i in range(0, len(q), 16):
        lines.append('.quad ' + ','.join(('0x%x' % int(x)) if x else '0' for x in q[i:i + 16]))
    offs = dict(common=0, perkt=common.nbytes, perkt_stride=perkt[0].nbytes,
                perw=common.nbytes + 2 * perkt[0].nbytes, perw_stride=perw[0].nbytes, total=data.nbytes)
    return '\n'.join(lines) + '\n', offs


if __name__ == '__main__':
    t, o = emit()
    print(len(t), o)
```

```python
import struct
import sys
from common import *
import gen
import tables
from gen import fhex, ROWLANE, pack4, op_CS, op_SC, op_CnS, op_nSC

X1_B, Z_B, U_B, Y_B = 0x0000000, 0x0400000, 0x0800000, 0x0C00000
IT_STRIDE = 0x200000
WT_B, WT_BLK = 0x1000000, 8256
FL_B = 0x1400000
WS_USED = 0x1500000
TS_OFF = 0x2000000
OOB = 0x7FFFFFF0
SPIN_MAX = 1 << 15

L_XL = 0
L_IMG = 8192
L_XCH = 16384
L_WIM = 32768
L_K = 49152
KG_ROW = 528
KG_CH = 96 * KG_ROW
L_KX = L_K + 2 * KG_CH
L_KOP = L_K
LDS_BYTES = L_KX + 4096

OPT = dict(stamps=False, prefetch=True, sched=True, ackfirst=False, masked=False,
           windows={'1a': ['KP', 'KT0'], '1b': ['KT1'], '2': ['KM', 'BAR', 'KE'], '3': ['KX']})


class PK(gen.K):
    def __init__(self, name):
        super().__init__(name, 256, vlimit=256)
        self.A = Regs('a', 0, 256)
        self.S = Regs('s', 4, 102)
        self.stamp_names = []

    def stamp(self, name='', wait=None):
        if not OPT['stamps']:
            return
        if wait:
            self(wait)
        self.stamp_names.append(name)
        t = self.s_tmp2
        self(f"s_memrealtime {t}")
        self("s_waitcnt lgkmcnt(0)")
        self(f"v_writelane_b32 {self.v_ts}, {t[0]}, m0")
        self("s_add_u32 m0, m0, 1")


def build():
    k = PK(KN)
    ttext, toff = tables.emit()
    k("s_cmp_ge_u32 s2, 256")
    k("s_cbranch_scc1 L_end")
    ptr = {}
    big = k.s(16, 4)
    big2 = k.s(8, 4)
    tail = k.s(4, 4)
    k(f"s_load_dwordx16 {big}, s[0:1], 0")
    k(f"s_load_dwordx8 {big2}, s[0:1], 64")
    k(f"s_load_dwordx4 {tail}, s[0:1], 96")
    ptr['ws'] = k.s(2)
    k(f"s_load_dwordx2 {ptr['ws']}, s[0:1], 112")
    for i, nm in enumerate(['A_x', 'A_w_r', 'A_w_i', 'B_u', 'B_A_re', 'B_A_im', 'B_B_re', 'B_B_im']):
        ptr[nm] = big[2 * i:2 * i + 2]
    for i, nm in enumerate(['B_C_re', 'B_C_im', 'B_log_dt', 'B_Dskip']):
        ptr[nm] = big2[2 * i:2 * i + 2]
    ptr['out'], ptr['debug'] = tail[0:2], tail[2:4]
    lane, n, g = k.v(), k.v(), k.v()
    wv = k.s()
    tv = k.v()
    k(f"v_lshrrev_b32 {tv}, 6, v0")
    k(f"v_and_b32 {lane}, 63, v0")
    k(f"v_readfirstlane_b32 {wv}, {tv}")
    k(f"v_and_b32 {n}, 15, v0")
    k(f"v_lshrrev_b32 {g}, 4, {lane}")
    Lid, t0, t1, t2 = k.s(), k.s(), k.s(), k.s()
    k(f"s_and_b32 {Lid}, s2, 7")
    k(f"s_lshl_b32 {Lid}, {Lid}, 5")
    k(f"s_lshr_b32 {t0}, s2, 3")
    k(f"s_add_u32 {Lid}, {Lid}, {t0}")
    bs, a8, it = k.s(), k.s(), k.s()
    k(f"s_and_b32 {bs}, {Lid}, 31")
    k(f"s_lshr_b32 {a8}, {Lid}, 5")
    k(f"s_mov_b32 {it}, 0")
    rg, kt, w16 = k.s(), k.s(), k.s()
    k(f"s_lshr_b32 {rg}, {wv}, 1")
    k(f"s_and_b32 {kt}, {wv}, 1")
    k(f"s_lshl_b32 {w16}, {wv}, 4")
    nonce = k.s()
    pc = k.s(2)
    k(f"s_getpc_b64 {pc}")
    k("L_pc_here:", manual=True)
    tb = k.s(2)
    k(f"s_add_u32 {tb[0]}, {pc[0]}, L_tables-L_pc_here")
    k(f"s_addc_u32 {tb[1]}, {pc[1]}, 0")
    vl16 = k.v()
    k(f"v_lshlrev_b32 {vl16}, 4, {lane}")
    if OPT['stamps']:
        k.s_tmp2, k.v_ts = k.s(2), k.v()
        k("s_mov_b32 m0, 0")
        k(f"v_mov_b32 {k.v_ts}, 0")
        k.stamp('entry')

    ACC = k.A.alloc(84 + 16 + 136, 4)
    cm, pk_, pw = ACC[0:84], ACC[84:100], ACC[100:236]
    RFA2, Gall, RIH, RIA2, RItw = cm[0:4], cm[4:44], cm[44:64], cm[64:68], cm[68:84]
    G = [[Gall[10 * (2 * t + q):10 * (2 * t + q) + 10] for q in range(2)] for t in range(2)]
    H = [RIH[0:10], RIH[10:20]]
    RFB1, RFtw = pk_[0:8], pk_[8:16]
    Fall, TW0a, FCSall, I2all, TW1a = pw[0:40], pw[40:72], pw[72:88], pw[88:104], pw[104:136]
    F = [Fall[10 * q:10 * q + 10] for q in range(4)]
    FC = [FCSall[8 * q:8 * q + 4] for q in range(2)]
    FS = [FCSall[8 * q + 4:8 * q + 8] for q in range(2)]
    I2 = [I2all[4 * q:4 * q + 4] for q in range(4)]
    WQa = k.A.alloc(16, 2)
    vtab = k.v()
    tbase = {'common': k.s(2), 'perkt': k.s(2), 'perw': k.s(2)}
    k(f"s_mov_b32 {tbase['common'][0]}, {tb[0]}")
    k(f"s_mov_b32 {tbase['common'][1]}, {tb[1]}")
    k(f"s_mul_i32 {t0}, {kt}, {toff['perkt_stride']}")
    k(f"s_add_u32 {t0}, {t0}, {toff['perkt']}")
    k(f"s_add_u32 {tbase['perkt'][0]}, {tb[0]}, {t0}")
    k(f"s_addc_u32 {tbase['perkt'][1]}, {tb[1]}, 0")
    k(f"s_mul_i32 {t0}, {wv}, {toff['perw_stride']}")
    k(f"s_add_u32 {t0}, {t0}, {toff['perw']}")
    k(f"s_add_u32 {tbase['perw'][0]}, {tb[0]}, {t0}")
    k(f"s_addc_u32 {tbase['perw'][1]}, {tb[1]}, 0")
    k.S.free(tb)

    def tload(sec, regs, first_reg):
        c0 = first_reg // 4
        last_base = None
        for i in range(regs.n // 4):
            byte = (c0 + i) * 1024
            hi, lo = byte // 4096 * 4096, byte % 4096
            if hi != last_base:
                k(f"v_add_u32 {vtab}, {hi}, {vl16}")
                last_base = hi
            k(f"global_load_dwordx4 {regs[4 * i:4 * i + 4]}, {vtab}, {tbase[sec]} offset:{lo}")

    tload('common', RFA2, 0)
    tload('perkt', pk_, 0)
    k("s_waitcnt lgkmcnt(0)")
    sws = k.srd(ptr['ws'], 0, WS_USED)
    scr = k.s(4)

    def scratch_srd(nm, size):
        k(f"s_mov_b32 {scr[0]}, {ptr[nm][0]}")
        k(f"s_mov_b32 {scr[1]}, {ptr[nm][1]}")
        k(f"s_mov_b32 {scr[2]}, {hex(size)}")
        k(f"s_mov_b32 {scr[3]}, 0x20000")
        return scr
    k.stamp('kernarg')

    XR = [k.v(4, 2) for _ in range(2)]
    va = k.v()
    sx = scratch_srd('A_x', 2048 * 512 * 2)
    k(f"s_lshl_b32 {t0}, {a8}, 8")
    k(f"s_add_u32 {t0}, {t0}, {bs}")
    k(f"s_lshl_b32 {t1}, {wv}, 5")
    k(f"s_add_u32 {t0}, {t0}, {t1}")
    k(f"s_lshl_b32 {t0}, {t0}, 10")
    k(f"s_add_u32 {t1}, {t0}, {4 * 32 * 1024}")
    k(f"buffer_load_dwordx4 {XR[0]}, {vl16}, {sx}, {t0} offen")
    k(f"buffer_load_dwordx4 {XR[1]}, {vl16}, {sx}, {t1} offen")
    sd = scratch_srd('debug', 256)
    k("s_cmp_lg_u32 s2, 0")
    k("s_cbranch_scc1 L_nonce_done", manual=True)
    k(f"s_cmp_lg_u32 {wv}, 0")
    k("s_cbranch_scc1 L_nonce_done", manual=True)
    tm = k.s(2)
    k(f"s_memrealtime {tm}")
    k("s_waitcnt lgkmcnt(0)")
    k(f"s_or_b32 {tm[0]}, {tm[0]}, 1")
    vz = k.v()
    k(f"v_mov_b32 {vz}, {tm[0]}")
    k(f"v_mov_b32 {va}, {hex(OOB)}")
    k(f"v_cmp_eq_u32 vcc, 0, {lane}")
    k(f"v_cndmask_b32 {va}, {va}, 0, vcc")
    k(f"buffer_store_dword {vz}, {va}, {sd}, 0 offen sc1")
    k("s_nop 1")
    k("L_nonce_done:", manual=True)
    k.S.free(tm)
    k.V.free(vz)
    Wraw = [[k.v() for _ in range(2)] for _ in range(8)]
    Wn = [k.v() for _ in range(2)]
    wb = k.s()
    k(f"s_lshr_b32 {t0}, {Lid}, 6")
    k(f"s_lshl_b32 {t0}, {t0}, 9")
    k(f"s_and_b32 {t1}, {Lid}, 63")
    k(f"s_add_u32 {wb}, {t0}, {t1}")
    k(f"s_mul_i32 {wb}, {wb}, 514")
    vin, vny = k.v(), k.v()
    k(f"v_lshlrev_b32 {vin}, 1, v0")
    k(f"v_mul_u32_u24 {vny}, {64 * 514}, v0")
    k(f"v_add_u32 {vny}, 512, {vny}")
    k(f"v_mov_b32 {tv}, {hex(OOB)}")
    k(f"v_cmp_gt_u32 vcc, 8, v0")
    k(f"v_cndmask_b32 {vny}, {tv}, {vny}, vcc")
    wo = [k.s() for _ in range(8)]
    for rho in range(8):
        k(f"s_add_u32 {wo[rho]}, {wb}, {rho * 64 * 514}")
    for c, nm in ((0, 'A_w_r'), (1, 'A_w_i')):
        sr = scratch_srd(nm, 2048 * 257 * 2)
        for rho in range(8):
            k(f"buffer_load_ushort {Wraw[rho][c]}, {vin}, {sr}, {wo[rho]} offen")
        k(f"buffer_load_ushort {Wn[c]}, {vny}, {sr}, {wb} offen")
    k.V.free(vin, vny)
    k.S.free(wb, *wo)
    par = {}
    k(f"s_lshl_b32 {t0}, {Lid}, 9")
    k(f"v_lshlrev_b32 {va}, 1, v0")
    for nm in ('B_A_re', 'B_A_im', 'B_B_re', 'B_B_im', 'B_C_re', 'B_C_im'):
        sr = scratch_srd(nm, 512 * 128 * 2)
        par[nm] = k.v()
        k(f"buffer_load_ushort {par[nm]}, {va}, {sr}, {t0} offen")
    sr = scratch_srd('B_log_dt', 1024)
    ld = k.v()
    k(f"v_lshrrev_b32 {va}, 7, v0")
    k(f"v_lshlrev_b32 {va}, 1, {va}")
    k(f"s_lshl_b32 {t1}, {Lid}, 2")
    k(f"buffer_load_ushort {ld}, {va}, {sr}, {t1} offen")
    dsk = k.s()
    k(f"s_load_dword {dsk}, {ptr['B_Dskip']}, {t1}")
    if OPT['prefetch']:
        vpf = XR[0]
        vpf = k.v(4, 2)
        PF = vpf
        k(f"s_lshr_b32 {t0}, s2, 3")
        k(f"s_lshl_b32 {t0}, {t0}, 10")
        k(f"s_min_u32 {t0}, {t0}, L_code_end-L_pc_here-1024")
        k(f"v_add_u32 {va}, {t0}, {vl16}")
        k(f"global_load_dwordx4 {vpf}, {va}, {pc}")
    k.S.free(pc)
    k.V.free(va)
    tload('perw', pw[0:72], 0)
    tload('common', cm[4:44], 4)
    k.stamp('ldissue')

    TWV = k.v(32, 2)
    TW = [[TWV[8 * i + 4 * j:8 * i + 4 * j + 4] for j in range(2)] for i in range(4)]
    WP = [k.v(8, 2) for _ in range(2)]
    KF = [[k.v(4, 2) for _ in range(2)] for _ in range(2)]
    GL = [PF if OPT['prefetch'] else k.v(4, 2), k.v(4, 2)]
    SENT = k.v(4, 2)
    for i in range(4):
        k(f"v_mov_b32 {SENT[i]}, -1")
    dcm, sgn = k.v(), k.v()
    k(f"s_lshl_b32 {t1}, {kt}, 4")
    k(f"v_add_u32 {dcm}, {t1}, {n}")
    k(f"v_lshl_add_u32 {dcm}, {dcm}, 2, {g}")
    k(f"v_cmp_eq_u32 vcc, 0, {dcm}")
    k(f"v_cndmask_b32 {dcm}, 0, 1.0, vcc")
    k(f"v_lshlrev_b32 {sgn}, 31, {n}")
    vUl, vG, vzo = k.v(), k.v(), k.v()
    k(f"v_lshlrev_b32 {vUl}, 4, v0")
    k(f"v_lshrrev_b32 {vG}, 1, v0")
    k(f"v_lshlrev_b32 {vG}, 13, {vG}")
    k(f"v_and_b32 {tv}, 1, v0")
    k(f"v_lshl_add_u32 {vG}, {tv}, 4, {vG}")
    g1, g2 = k.v(), k.v()
    k(f"v_and_b32 {g1}, 1, {g}")
    k(f"v_lshrrev_b32 {g2}, 1, {g}")
    k(f"v_lshlrev_b32 {vzo}, 10, {g2}")
    k(f"v_lshl_add_u32 {vzo}, {n}, 5, {vzo}")
    k(f"v_lshl_add_u32 {vzo}, {g1}, 4, {vzo}")
    vRFr, vRFs, vCAo, vXw, vRIz, vRIx, vCBi, vCBo, vCBe = [k.v() for _ in range(9)]
    k(f"v_lshlrev_b32 {vRFr}, 10, {g}")
    k(f"v_lshl_add_u32 {vRFr}, {n}, 4, {vRFr}")
    k(f"s_lshl_b32 {t0}, {rg}, 3")
    k(f"v_add_u32 {vRFr}, {t0}, {vRFr}")
    k(f"v_lshl_add_u32 {vRFs}, {g}, 6, {n}")
    k(f"s_lshl_b32 {t0}, {kt}, 4")
    k(f"v_add_u32 {vRFs}, {t0}, {vRFs}")
    k(f"v_lshlrev_b32 {vRFs}, 5, {vRFs}")
    k(f"s_lshl_b32 {t0}, {rg}, 4")
    k(f"v_add_u32 {vRFs}, {t0}, {vRFs}")
    k(f"v_lshl_add_u32 {vCAo}, {g2}, 5, {n}")
    k(f"v_lshlrev_b32 {vCAo}, 5, {vCAo}")
    k(f"v_lshl_add_u32 {vCAo}, {g1}, 4, {vCAo}")
    k(f"s_lshl_b32 {t0}, {wv}, 11")
    k(f"v_add_u32 {vXw}, {t0}, {vl16}")
    k(f"v_lshlrev_b32 {vRIz}, 11, {g}")
    k(f"v_lshl_add_u32 {vRIz}, {n}, 5, {vRIz}")
    k(f"s_lshl_b32 {t0}, {wv}, 3")
    k(f"v_add_u32 {vRIz}, {t0}, {vRIz}")
    k(f"v_lshlrev_b32 {vRIx}, 11, {g}")
    k(f"v_lshl_add_u32 {vRIx}, {n}, 4, {vRIx}")
    k(f"s_lshl_b32 {t0}, {wv}, 2")
    k(f"v_add_u32 {vRIx}, {t0}, {vRIx}")
    k(f"v_lshrrev_b32 {vCBi}, 1, v0")
    k(f"v_lshlrev_b32 {vCBi}, 4, {vCBi}")
    k(f"v_and_b32 {tv}, 1, v0")
    k(f"v_lshl_add_u32 {vCBi}, {tv}, 12, {vCBi}")
    k(f"v_lshlrev_b32 {vCBo}, 9, {g}")
    k(f"v_lshl_add_u32 {vCBo}, {n}, 4, {vCBo}")
    k(f"v_lshlrev_b32 {vCBe}, 9, {g2}")
    k(f"v_lshl_add_u32 {vCBe}, {n}, 4, {vCBe}")
    k(f"v_lshl_add_u32 {vCBe}, {g1}, 3, {vCBe}")
    k(f"s_lshl_b32 {t0}, {wv}, 10")
    k(f"v_add_u32 {vCBe}, {t0}, {vCBe}")
    k.V.free(g1, g2)
    slo, shi, smask, sones = k.s(), k.s(), k.s(), k.s()
    k(f"s_mov_b32 {slo}, 0x05040100")
    k(f"s_mov_b32 {shi}, 0x07060302")
    k(f"s_mov_b32 {smask}, 0xffff0000")
    k(f"s_mov_b32 {sones}, 0x3f803f80")
    sblk, sblkw, sslot = k.s(), k.s(), k.s()
    k(f"s_lshl_b32 {sblk}, {Lid}, 13")
    k(f"s_lshl_b32 {t0}, {wv}, 11")
    k(f"s_add_u32 {sblkw}, {sblk}, {t0}")
    k(f"s_lshl_b32 {sslot}, {Lid}, 5")
    ds2 = [k.s(2), k.s(2)]
    k(f"s_lshl_b32 {ds2[0][0]}, {dsk}, 16")
    k(f"s_and_b32 {ds2[1][0]}, {dsk}, 0xffff0000")
    k.S.free(dsk)
    sga, sgb, sfa, sfb, ssa, ssb = [k.s() for _ in range(6)]
    uid = [0]

    def unpack2(pair, dw):
        k(f"v_lshlrev_b32 {pair[0]}, 16, {dw}")
        k(f"v_and_b32 {pair[1]}, {smask}, {dw}")

    def load_tw(acc):
        for i in range(acc.n):
            k(f"v_accvgpr_read_b32 {TWV[i]}, {acc[i]}")

    def set_offsets(gbase, fbase, sbase, wave_store):
        if gbase is not None:
            k(f"s_add_u32 {sga}, {sslot}, {gbase}")
            k(f"s_add_u32 {sgb}, {sga}, {128 * 8192}")
        if fbase is not None:
            k(f"s_add_u32 {sfa}, {sblk}, {fbase}")
            k(f"s_add_u32 {sfb}, {sfa}, 4096")
        if sbase is not None:
            k(f"s_add_u32 {ssa}, {sblkw if wave_store else sblk}, {sbase}")
            if not wave_store:
                k(f"s_add_u32 {ssb}, {ssa}, 4096")

    def fill():
        k(f"buffer_store_dwordx4 {SENT}, {vUl}, {sws}, {sfa} offen sc1")
        k(f"buffer_store_dwordx4 {SENT}, {vUl}, {sws}, {sfb} offen sc1")

    def gather_issue(first=False):
        if first and OPT['ackfirst']:
            k("s_waitcnt vmcnt(0)")
        k(f"buffer_load_dwordx4 {GL[0]}, {vG}, {sws}, {sga} offen sc1")
        k(f"buffer_load_dwordx4 {GL[1]}, {vG}, {sws}, {sgb} offen sc1")

    def gather_check():
        u = uid[0]
        uid[0] += 1
        x = k.v()
        k(f"s_mov_b32 {t2}, {SPIN_MAX}")
        k(f"L_chk{u}:", manual=True)
        k("s_waitcnt vmcnt(0)")
        k(f"v_max3_u32 {x}, {GL[0][0]}, {GL[0][1]}, {GL[0][2]}")
        k(f"v_max3_u32 {x}, {x}, {GL[0][3]}, {GL[1][0]}")
        k(f"v_max3_u32 {x}, {x}, {GL[1][1]}, {GL[1][2]}")
        k(f"v_max_u32 {x}, {x}, {GL[1][3]}")
        k(f"v_cmp_eq_u32 vcc, -1, {x}")
        k(f"s_cbranch_vccz L_ok{u}")
        k(f"s_sub_u32 {t2}, {t2}, 1")
        k(f"s_cmp_eq_u32 {t2}, 0")
        k(f"s_cbranch_scc1 L_ok{u}")
        if OPT['masked']:
            k(f"s_mov_b64 exec, vcc")
            gather_issue()
            k(f"s_mov_b64 exec, -1")
        else:
            gather_issue()
        k(f"s_branch L_chk{u}", manual=True)
        k(f"L_ok{u}:")
        k.V.free(x)

    KS = {}

    def cstep(dst, z, e, t):
        k(f"v_pk_mul_f32 {t}, {z}, {e} op_sel:[0,0] op_sel_hi:[1,0]")
        k(f"v_pk_fma_f32 {dst}, {z}, {e}, {t} op_sel:[1,1,0] op_sel_hi:[0,1,1] neg_lo:[1,0,0]")

    def kg_params():
        for nm in par:
            k(f"v_lshlrev_b32 {par[nm]}, 16, {par[nm]}")
        k(f"v_lshlrev_b32 {ld}, 16, {ld}")
        L2E = 1.4426950408889634
        hi = struct.unpack('<f', struct.pack('<I', struct.unpack('<I', struct.pack('<f', L2E))[0] & 0xFFFFFF00))[0]
        lo = L2E - hi
        dt, ta, tb_ = k.v(), k.v(), k.v()
        k(f"v_mul_f32 {ta}, {fhex(hi)}, {ld}")
        k(f"v_mul_f32 {tb_}, {fhex(lo * 0.6931471805599453)}, {ld}")
        k(f"v_exp_f32 {ta}, {ta}")
        k(f"v_fma_f32 {dt}, {ta}, {tb_}, {ta}")
        k.round_bf16(dt, dt, ta)
        ar, ai = par['B_A_re'], par['B_A_im']
        br, bi = par['B_B_re'], par['B_B_im']
        cr, ci = par['B_C_re'], par['B_C_im']
        for x in (ar, ai, br, bi):
            k(f"v_mul_f32 {x}, {dt}, {x}")
        cc = k.v(2, 2)
        k(f"v_mul_f32 {cc[0]}, {cr}, {br}")
        k(f"v_mul_f32 {cc[1]}, {cr}, {bi}")
        k(f"v_fma_f32 {cc[0]}, -{ci}, {bi}, {cc[0]}")
        k(f"v_fma_f32 {cc[1]}, {ci}, {br}, {cc[1]}")
        k(f"v_mul_f32 {ar}, {fhex(L2E)}, {ar}")
        k(f"v_mul_f32 {ai}, {fhex(1 / (2 * 3.141592653589793))}, {ai}")
        seeds = {}
        for l in (1, 4, 32, 128, 512):
            e, x, y = k.v(2, 2), k.v(), k.v()
            k(f"v_mul_f32 {x}, {fhex(l)}, {ar}")
            k(f"v_mul_f32 {y}, {fhex(l)}, {ai}")
            k(f"v_exp_f32 {x}, {x}")
            k(f"v_fract_f32 {y}, {y}")
            k(f"v_cos_f32 {e[0]}, {y}")
            k(f"v_sin_f32 {e[1]}, {y}")
            k(f"v_mul_f32 {e[0]}, {x}, {e[0]}")
            k(f"v_mul_f32 {e[1]}, {x}, {e[1]}")
            seeds[l] = (e, x, y)
        for l in seeds:
            k.V.free(seeds[l][1], seeds[l][2])
        E1, E4, E32, E128, E512 = [seeds[l][0] for l in (1, 4, 32, 128, 512)]
        zc1, zc2, zr1, zr2 = k.v(2, 2), k.v(2, 2), k.v(2, 2), k.v(2, 2)
        for z in (zc1, zc2):
            k(f"v_mov_b32 {z[0]}, 1.0")
            k(f"v_mov_b32 {z[1]}, 0")
        k(f"v_mov_b32 {zr1[0]}, {cc[0]}")
        k(f"v_mov_b32 {zr1[1]}, {cc[1]}")
        tp = k.v(2, 2)
        cstep(zr2, cc, E512, tp)
        vw = k.v()
        k(f"v_and_b32 {vw}, 127, v0")
        k(f"v_lshlrev_b32 {vw}, 2, {vw}")
        k(f"v_lshrrev_b32 {ta}, 7, v0")
        k(f"v_mul_u32_u24 {ta}, {KG_CH}, {ta}")
        k(f"v_add_u32 {vw}, {vw}, {ta}")
        R1, C1, R2, C2 = L_K, L_K + 16 * KG_ROW, L_K + 48 * KG_ROW, L_K + 64 * KG_ROW
        wr1, wc1, wr2, wc2 = k.v(), k.v(), k.v(), k.v()
        k(f"v_add_u32 {wr1}, {R1}, {vw}")
        k(f"v_add_u32 {wc1}, {C1}, {vw}")
        k(f"v_add_u32 {wr2}, {R2}, {vw}")
        k(f"v_add_u32 {wc2}, {C2}, {vw}")
        k.V.free(vw, tp, E512, cc, dt, ta, tb_, ld, *par.values())
        KS.update(E=(E1, E4, E32, E128), z=(zc1, zc2, zr1, zr2), w=(wc1, wc2, wr1, wr2))

    def kg_tables(part):
        E1, E4, E32, E128 = KS['E']
        zc1, zc2, zr1, zr2 = KS['z']
        wc1, wc2, wr1, wr2 = KS['w']
        tp = [k.v(2, 2) for _ in range(4)]
        pkd = [k.v() for _ in range(6)]
        k(f"s_mov_b32 {t2}, 8")
        k(f"L_kg_tab{part}:", manual=True)
        k.pk(pkd[0], zc1[0], zc1[1])
        k.pk(pkd[1], zc2[0], zc2[1])
        k.pk(pkd[2], zr1[0], f"-{zr1[1]}")
        k.pk(pkd[3], zr2[0], f"-{zr2[1]}")
        k(f"ds_write_b32 {wc1}, {pkd[0]}")
        k(f"ds_write_b32 {wc2}, {pkd[1]}")
        k(f"ds_write_b32 {wr1}, {pkd[2]}")
        k(f"ds_write_b32 {wr2}, {pkd[3]}")
        cstep(zc1, zc1, E1, tp[0])
        cstep(zc2, zc2, E4, tp[1])
        cstep(zr1, zr1, E32, tp[2])
        cstep(zr2, zr2, E128, tp[3])
        k.pk(pkd[4], zc1[0], zc1[1])
        k.pk(pkd[5], zc2[0], zc2[1])
        k(f"ds_write_b32 {wc1}, {pkd[4]} offset:{KG_ROW}")
        k(f"ds_write_b32 {wc2}, {pkd[5]} offset:{KG_ROW}")
        cstep(zc1, zc1, E1, tp[0])
        cstep(zc2, zc2, E4, tp[1])
        k(f"v_add_u32 {wc1}, {2 * KG_ROW}, {wc1}")
        k(f"v_add_u32 {wc2}, {2 * KG_ROW}, {wc2}")
        k(f"v_add_u32 {wr1}, {KG_ROW}, {wr1}")
        k(f"v_add_u32 {wr2}, {KG_ROW}, {wr2}")
        k(f"s_sub_u32 {t2}, {t2}, 1")
        k(f"s_cmp_lg_u32 {t2}, 0")
        k(f"s_cbranch_scc1 L_kg_tab{part}", manual=True)
        k.V.free(*tp, *pkd)
        if part == 1:
            k.V.free(*KS['E'], *KS['z'], *KS['w'])

    def kg_matmul():
        ch, blkid = rg, kt
        k(f"s_mul_i32 {t0}, {ch}, {KG_CH}")
        k(f"s_mul_i32 {t1}, {blkid}, {48 * KG_ROW}")
        k(f"s_add_u32 {t0}, {t0}, {t1}")
        k(f"s_add_u32 {t0}, {t0}, {L_K}")
        vr = k.v()
        k(f"v_mul_u32_u24 {vr}, {KG_ROW}, {n}")
        k(f"v_lshl_add_u32 {vr}, {g}, 4, {vr}")
        k(f"v_add_u32 {vr}, {t0}, {vr}")
        D = [k.v(4, 2) for _ in range(2)]
        bufs = [[k.v(4, 2) for _ in range(3)] for _ in range(4)]
        for ks in range(8):
            Ar, B0, B1 = bufs[ks % 4]
            k(f"ds_read_b128 {Ar}, {vr} offset:{ks * 64}")
            k(f"ds_read_b128 {B0}, {vr} offset:{16 * KG_ROW + ks * 64}")
            k(f"ds_read_b128 {B1}, {vr} offset:{32 * KG_ROW + ks * 64}")
            k.mfma(D[0], Ar, B0, D[0] if ks else None)
            k.mfma(D[1], Ar, B1, D[1] if ks else None)
        vq = k.v()
        k(f"s_lshl_b32 {t0}, {wv}, 10")
        k(f"s_add_u32 {t0}, {t0}, {L_KX}")
        k(f"v_lshlrev_b32 {vq}, 8, {g}")
        k(f"v_lshl_add_u32 {vq}, {n}, 1, {vq}")
        k(f"v_add_u32 {vq}, {t0}, {vq}")
        tt = [k.v() for _ in range(8)]
        for nt in range(2):
            for r in range(4):
                k.pk(tt[4 * nt + r], D[nt][r], D[nt][r])
                k(f"ds_write_b16 {vq}, {tt[4 * nt + r]} offset:{r * 64 + nt * 32}")
        k.V.free(vr, vq, *tt, *D, *[x for b in bufs for x in b])

    def kg_expand():
        ch, q = rg, kt
        vb, vr = k.v(), k.v()
        k(f"v_lshlrev_b32 {vb}, 8, {g}")
        k(f"v_add_u32 {vb}, {vb}, {n}")
        k(f"s_lshl_b32 {t0}, {q}, 10")
        k(f"v_add_u32 {vb}, {t0}, {vb}")
        kxb = k.s()
        k(f"s_lshl_b32 {kxb}, {ch}, 11")
        k(f"s_add_u32 {kxb}, {kxb}, {L_KX}")
        OPS = [k.v(4, 2) for _ in range(2)]
        vals = [[k.v() for _ in range(8)] for _ in range(2)]
        tas = [k.v() for _ in range(4)]
        for mt in range(2):
            for j in range(8):
                x, ta = vals[mt][j], tas[j % 4]
                k(f"v_add_u32 {x}, {16 * mt + 32 * j}, {vb}")
                k.cvtf(x, x)
                k.pk(x, x, x)
                k(f"v_lshlrev_b32 {x}, 16, {x}")
                k(f"v_cvt_u32_f32 {x}, {x}")
                k(f"v_lshrrev_b32 {ta}, 2, {x}")
                k(f"v_add_u32 {ta}, 384, {ta}")
                k(f"v_min_u32 {x}, {x}, {ta}")
                k(f"v_lshl_add_u32 {x}, {x}, 1, {kxb}")
                k(f"ds_read_u16 {x}, {x}")
        for mt in range(2):
            for jp in range(4):
                k(f"v_lshl_or_b32 {OPS[mt][jp]}, {vals[mt][2 * jp + 1]}, 16, {vals[mt][2 * jp]}")
        k(f"s_lshl_b32 {t0}, {ch}, 12")
        k(f"s_lshl_b32 {t1}, {q}, 10")
        k(f"s_add_u32 {t0}, {t0}, {t1}")
        k(f"s_add_u32 {t0}, {t0}, {L_KOP}")
        k(f"v_add_u32 {vb}, {t0}, {vl16}")
        for mt in range(2):
            k(f"ds_write_b128 {vb}, {OPS[mt]} offset:{mt * 2048}")
        k.V.free(*OPS, vb, vr, *tas, *vals[0], *vals[1])
        k.S.free(kxb)

    class Chan:
        def __init__(self):
            self.D = [[k.v(4, 2) for _ in range(2)] for _ in range(2)]
            self.T = [[k.v(4, 2) for _ in range(2)] for _ in range(2)]
            self.E = self.D
            self.B = [k.v(4, 2) for _ in range(2)]

        def free(self):
            k.V.free(*self.D[0], *self.D[1], *self.T[0], *self.T[1], *self.B)

    def fwd_half(C):
        fc, fs = TW[0], TW[1]
        for mt in range(2):
            for r in range(4):
                k.cmul(C.T[0][mt][r], C.T[1][mt][r], C.D[0][mt][r], C.D[1][mt][r], fc[mt][r], fs[mt][r], False)
            pack4(k, C.B[mt], C.T[0][mt], C.T[1][mt])
        for q in range(2):
            for m2 in range(2):
                k.mfma(C.E[0][m2], op_CS(G[m2][q]), C.B[q], C.E[0][m2] if q else None)
                k.mfma(C.E[1][m2], op_nSC(G[m2][q]), C.B[q], C.E[1][m2] if q else None)

    def inv_half(C, XO):
        ic, is_ = TW[2], TW[3]
        for m2 in range(2):
            pack4(k, C.B[m2], C.T[0][m2], C.T[1][m2])
        for nt in range(2):
            for q in range(2):
                k.mfma(C.D[0][nt], C.B[q], op_CnS(G[nt][q]), C.D[0][nt] if q else None)
                k.mfma(C.D[1][nt], C.B[q], op_SC(G[nt][q]), C.D[1][nt] if q else None)
        for nt in range(2):
            for r in range(4):
                k.cmul(C.T[0][nt][r], C.T[1][nt][r], C.D[0][nt][r], C.D[1][nt][r], ic[nt][r], is_[nt][r], True)
            pack4(k, XO[nt], C.T[0][nt], C.T[1][nt])

    def kg_transform():
        vr = k.v()
        k(f"v_add_u32 {vr}, {L_KOP}, {vl16}")
        sc = fhex(1.0 / 2048)
        Cs = [Chan(), Chan()]
        U = [[[k.v(4, 2) for _ in range(2)] for _ in range(2)] for _ in range(2)]
        for c in range(2):
            for mt in range(2):
                for q in range(2):
                    k(f"ds_read_b128 {U[c][mt][q]}, {vr} offset:{c * 4096 + mt * 2048 + q * 1024}")
        for c in range(2):
            C = Cs[c]
            for mt in range(2):
                for q in range(2):
                    k.mfma(C.D[0][mt], U[c][mt][q], FC[q], C.D[0][mt] if q else None)
                    k.mfma(C.D[1][mt], U[c][mt][q], FS[q], C.D[1][mt] if q else None)
            fwd_half(C)
            for m2 in range(2):
                for r in range(4):
                    k(f"v_mul_f32 {C.E[0][m2][r]}, {sc}, {C.E[0][m2][r]}")
                    k(f"v_mul_f32 {C.E[1][m2][r]}, {sc}, {C.E[1][m2][r]}")
                pack4(k, KF[c][m2], C.E[0][m2], C.E[1][m2])
        for c in range(2):
            Cs[c].free()
            k.V.free(*U[c][0], *U[c][1])
        k.V.free(vr)

    ITEMS = {'KP': kg_params, 'KT0': lambda: kg_tables(0), 'KT1': lambda: kg_tables(1), 'KM': kg_matmul,
             'KE': kg_expand, 'KX': kg_transform, 'BAR': lambda: k("s_barrier"),
             'T3': lambda: tload('common', cm[44:84], 44), 'T4': lambda: tload('perw', pw[72:136], 72)}

    def window(name, pre=()):
        items = list(pre) + OPT['windows'].get(name, [])
        if not items:
            return
        u = uid[0]
        uid[0] += 1
        k(f"s_cmp_lg_u32 {it}, 0")
        k(f"s_cbranch_scc1 L_side{u}", manual=True)
        for nm in items:
            ITEMS[nm]()
        k("s_waitcnt lgkmcnt(0)")
        k("s_nop 7")
        k(f"L_side{u}:", manual=True)
        k.stamp('w' + name)

    k(f"s_lshl_b32 {t0}, {wv}, 10")
    k(f"s_add_u32 {t0}, {t0}, {L_WIM}")
    vt = k.v()
    k(f"v_add_u32 {vt}, {t0}, {vl16}")
    k(f"ds_write_b128 {vt}, {XR[0]}")
    k(f"ds_write_b128 {vt}, {XR[1]} offset:4096")
    Wd = k.v(8, 2)
    for rho in range(0, 8, 2):
        for c in range(2):
            reg = Wd[(rho >> 2) * 4 + c * 2 + ((rho & 3) >> 1)]
            k(f"v_lshl_or_b32 {reg}, {Wraw[rho + 1][c]}, 16, {Wraw[rho][c]}")
    vt2, vt3 = k.v(), k.v()
    k(f"v_lshlrev_b32 {vt2}, 5, v0")
    k(f"ds_write_b128 {vt2}, {Wd[0:4]} offset:{L_XCH}")
    k(f"ds_write_b128 {vt2}, {Wd[4:8]} offset:{L_XCH + 16}")
    k(f"v_lshrrev_b32 {vt3}, 2, v0")
    k(f"v_lshlrev_b32 {vt3}, 4, {vt3}")
    k(f"v_and_b32 {tv}, 3, v0")
    k(f"v_lshl_add_u32 {vt3}, {tv}, 1, {vt3}")
    k(f"v_add_u32 {vt3}, {L_XCH + 8192}, {vt3}")
    k(f"ds_write_b16 {vt3}, {Wn[0]}")
    k(f"ds_write_b16 {vt3}, {Wn[1]} offset:8")
    k.V.free(Wd, vt2, vt3, *Wn, *[x for r in Wraw for x in r])
    k(f"v_lshrrev_b32 {tv}, 2, {n}")
    k(f"v_lshlrev_b32 {vt}, 10, {tv}")
    k(f"v_and_b32 {tv}, 3, {n}")
    k(f"v_lshl_add_u32 {vt}, {tv}, 3, {vt}")
    k(f"v_lshl_add_u32 {vt}, {g}, 5, {vt}")
    k(f"s_lshl_b32 {t0}, {wv}, 8")
    k(f"s_add_u32 {t0}, {t0}, {L_WIM}")
    k(f"v_add_u32 {vt}, {t0}, {vt}")
    k("s_barrier")
    for j in range(2):
        k(f"ds_read_b64_tr_b16 {XR[j][0:2]}, {vt} offset:{j * 128}")
        k(f"ds_read_b64_tr_b16 {XR[j][2:4]}, {vt} offset:{j * 128 + 4096}")
    WO = [k.v(4, 2) for _ in range(3)]
    k(f"ds_read_b128 {WO[0]}, {vUl} offset:{L_XCH}")
    k(f"ds_read_b128 {WO[1]}, {vUl} offset:{L_XCH + 4096}")
    k(f"ds_read_b128 {WO[2]}, {vUl} offset:{L_XCH + 8192}")
    for j in range(2):
        k(f"ds_write_b128 {vXw}, {XR[j]} offset:{L_XL + j * 1024}")
    k(f"v_add_u32 {vt}, 8192, {vUl}")
    k(f"v_mov_b32 {tv}, {hex(OOB)}")
    k(f"v_cmp_gt_u32 vcc, 2, v0")
    k(f"v_cndmask_b32 {vt}, {tv}, {vt}, vcc")
    k(f"s_mul_i32 {t0}, {Lid}, {WT_BLK}")
    k(f"s_add_u32 {t0}, {t0}, {WT_B}")
    k(f"s_add_u32 {t1}, {t0}, 4096")
    k(f"buffer_store_dwordx4 {WO[0]}, {vUl}, {sws}, {t0} offen sc1")
    k(f"buffer_store_dwordx4 {WO[1]}, {vUl}, {sws}, {t1} offen sc1")
    k(f"buffer_store_dwordx4 {WO[2]}, {vt}, {sws}, {t0} offen sc1")
    k.V.free(vt, *WO, *XR)
    load_tw(RFtw)
    set_offsets(None, Z_B, X1_B, False)
    fill()
    k("s_barrier")
    k.stamp('p1a')

    k("L_layer:", manual=True)
    Lr = [k.v(2, 2) for _ in range(8)]
    for j in range(8):
        dh = j if j < 4 else 16 + j - 4
        k(f"ds_read_b64 {Lr[j]}, {vRFr} offset:{L_XL + dh * 256}")
    Aop = [k.v(4, 2) for _ in range(4)]
    for rho in range(4):
        for jp in range(4):
            k(f"v_perm_b32 {Aop[rho][jp]}, {Lr[2 * jp + 1][rho >> 1]}, {Lr[2 * jp][rho >> 1]}, {shi if rho & 1 else slo}")
    k.V.free(*Lr)
    Dr = [k.v(4, 2) for _ in range(4)]
    Di = [k.v(4, 2) for _ in range(4)]
    for rho in range(4):
        k.mfma(Dr[rho], Aop[rho], RFB1[0:4])
        k.mfma(Di[rho], Aop[rho], RFB1[4:8])
    Sx = [k.v() for _ in range(4)]
    Qx = [k.v() for _ in range(4)]
    for rho in range(4):
        k(f"v_dot2_f32_bf16 {Sx[rho]}, {Aop[rho][0]}, {sones}, 0")
        k(f"v_dot2_f32_bf16 {Qx[rho]}, {Aop[rho][0]}, {Aop[rho][0]}, 0")
    for jp in range(1, 4):
        for rho in range(4):
            k(f"v_dot2c_f32_bf16 {Sx[rho]}, {sones}, {Aop[rho][jp]}")
            k(f"v_dot2c_f32_bf16 {Qx[rho]}, {Aop[rho][jp]}, {Aop[rho][jp]}")
    Sr = k.reduce4(Sx)
    Qr = k.reduce4(Qx)
    oth, alt = Sx[1], Sx[2]
    k(f"v_mov_b32_dpp {oth}, {Sr} quad_perm:[1,0,3,2] row_mask:0xf bank_mask:0xf")
    k(f"v_add_f32_dpp {Qr}, {Qr}, {Qr} quad_perm:[1,0,3,2] row_mask:0xf bank_mask:0xf")
    k(f"v_sub_f32 {alt}, {Sr}, {oth}")
    k(f"v_add_f32 {Sr}, {Sr}, {oth}")
    mbf, rstd = k.ln_finish(Sr, Qr, Sx[3])
    k(f"v_mul_f32 {mbf}, {fhex(512.0)}, {mbf}")
    s_r = [k.s(2) for _ in range(4)]
    s_m = [k.s() for _ in range(4)]
    s_a = [k.s() for _ in range(4)]
    for rho in range(4):
        k(f"v_readlane_b32 {s_r[rho][0]}, {rstd}, {ROWLANE[rho]}")
        k(f"v_readlane_b32 {s_m[rho]}, {mbf}, {ROWLANE[rho]}")
        k(f"v_readlane_b32 {s_a[rho]}, {alt}, {ROWLANE[rho]}")
    D2 = [k.v(4, 2) for _ in range(4)]
    tr = [k.v(4, 2) for _ in range(4)]
    ti = [k.v(4, 2) for _ in range(4)]
    B2 = [k.v(4, 2) for _ in range(4)]
    for rho in range(4):
        for r in range(4):
            k.cmul(tr[rho][r], ti[rho][r], Dr[rho][r], Di[rho][r], TWV[r], TWV[4 + r], False)
        pack4(k, B2[rho], tr[rho], ti[rho])
        k.mfma(D2[rho], RFA2, B2[rho])
    k.V.free(*tr, *ti, *B2, *Dr, *Di, *Sx, *Qx, *Aop)
    for rho in range(4):
        k(f"v_fma_f32 {D2[rho][0]}, -{dcm}, {s_m[rho]}, {D2[rho][0]}")
        k(f"v_fma_f32 {D2[rho][1]}, {dcm}, {s_a[rho]}, {D2[rho][1]}")
        for h in range(2):
            k(f"v_pk_mul_f32 {D2[rho][2 * h:2 * h + 2]}, {D2[rho][2 * h:2 * h + 2]}, {s_r[rho]} op_sel_hi:[1,0]")
    k.S.free(*s_r, *s_m, *s_a)
    O = [k.v(4, 2) for _ in range(2)]
    for e in range(2):
        k.pk(O[e][0], D2[0][2 * e], D2[1][2 * e])
        k.pk(O[e][1], D2[2][2 * e], D2[3][2 * e])
        k.pk(O[e][2], D2[0][2 * e + 1], D2[1][2 * e + 1])
        k.pk(O[e][3], D2[2][2 * e + 1], D2[3][2 * e + 1])
        k(f"ds_write_b128 {vRFs}, {O[e]} offset:{L_XCH + e * 1024}")
    k.V.free(*D2)

    def store_block(lds_base):
        k("s_waitcnt vmcnt(0)")
        k("s_barrier")
        k(f"ds_read_b128 {O[0]}, {vUl} offset:{lds_base}")
        k(f"ds_read_b128 {O[1]}, {vUl} offset:{lds_base + 4096}")
        k(f"buffer_store_dwordx4 {O[0]}, {vUl}, {sws}, {ssa} offen sc1")
        k(f"buffer_store_dwordx4 {O[1]}, {vUl}, {sws}, {ssb} offen sc1")
    store_block(L_XCH)
    k.stamp('RF')
    k(f"s_cmp_lg_u32 {it}, 0")
    k("s_cbranch_scc1 L_bar1_done", manual=True)
    sd = scratch_srd('debug', 256)
    x, y = k.v(), k.v()
    q = k.v(4, 2)
    k(f"s_cmp_lg_u32 {wv}, 0")
    k("s_cbranch_scc1 L_tag_done")
    k(f"v_mov_b32 {x}, 0")
    k(f"s_mov_b32 {t2}, {SPIN_MAX}")
    k("L_tag_poll:")
    k(f"buffer_load_dword {y}, {x}, {sd}, 0 offen sc1")
    k(f"s_sub_u32 {t2}, {t2}, 1")
    k(f"s_cmp_eq_u32 {t2}, 0")
    k("s_cbranch_scc1 L_tag_done")
    k(f"v_readfirstlane_b32 {nonce}, {y}")
    k(f"s_cmp_eq_u32 {nonce}, 0")
    k("s_cbranch_scc1 L_tag_poll")
    k("L_tag_done:")
    k("s_waitcnt vmcnt(0)")
    k("s_barrier")
    k(f"s_cmp_lg_u32 {wv}, 0")
    k("s_cbranch_scc1 L_arr_done")
    k(f"v_mov_b32 {y}, {nonce}")
    k(f"v_lshlrev_b32 {x}, 10, {lane}")
    k(f"v_mov_b32 {tv}, {hex(OOB)}")
    k(f"v_cmp_gt_u32 vcc, 8, {lane}")
    k(f"v_cndmask_b32 {x}, {tv}, {x}, vcc")
    k(f"s_lshl_b32 {t1}, {Lid}, 2")
    k(f"s_add_u32 {t0}, {t1}, {FL_B}")
    k(f"buffer_store_dword {y}, {x}, {sws}, {t0} offen sc1")
    k("L_arr_done:")
    k.stamp('arr')
    ITEMS['T3']()
    ITEMS['T4']()
    for nm in OPT['windows'].get('1a', []):
        ITEMS[nm]()
    k.stamp('w1a')
    k(f"s_cmp_lg_u32 {wv}, 0")
    k("s_cbranch_scc1 L_wt_done", manual=True)
    k(f"s_mov_b32 {t2}, {SPIN_MAX}")
    k(f"s_and_b32 {t1}, s2, 7")
    k(f"s_lshl_b32 {t1}, {t1}, 10")
    k(f"s_add_u32 {t0}, {t1}, {FL_B}")
    k("L_wtl:", manual=True)
    k(f"buffer_load_dwordx4 {q}, {vl16}, {sws}, {t0} offen sc1")
    k(f"s_sub_u32 {t2}, {t2}, 1")
    k(f"s_cmp_eq_u32 {t2}, 0")
    k("s_cbranch_scc1 L_wt_done", manual=True)
    k("s_waitcnt vmcnt(0)")
    for i in range(4):
        k(f"v_xor_b32 {q[i]}, {nonce}, {q[i]}")
    k(f"v_or3_b32 {q[0]}, {q[0]}, {q[1]}, {q[2]}")
    k(f"v_or_b32 {q[0]}, {q[0]}, {q[3]}")
    k(f"v_cmp_ne_u32 vcc, 0, {q[0]}")
    k("s_cbranch_vccnz L_wtl", manual=True)
    k("L_wt_done:", manual=True)
    k("s_barrier")
    k.V.free(x, y, q)
    k.stamp('wait')
    k("L_bar1_done:", manual=True)

    sb = k.s()

    def itbase(b):
        k(f"s_mul_i32 {sb}, {it}, {IT_STRIDE}")
        k(f"s_add_u32 {sb}, {sb}, {b}")
        return sb
    itoff = k.s()
    k(f"s_mul_i32 {itoff}, {it}, {IT_STRIDE}")

    def offs(gb, fb, sbs, wave_store):
        k(f"s_add_u32 {sga}, {sslot}, {itoff}")
        k(f"s_add_u32 {sga}, {sga}, {gb}")
        k(f"s_add_u32 {sgb}, {sga}, {128 * 8192}")
        gather_issue(True)
        if fb is not None:
            k(f"s_add_u32 {sfa}, {sblk}, {itoff}")
            k(f"s_add_u32 {sfa}, {sfa}, {fb}")
            k(f"s_add_u32 {sfb}, {sfa}, 4096")
            fill()
        if sbs is not None:
            k(f"s_add_u32 {ssa}, {sblkw if wave_store else sblk}, {itoff}")
            k(f"s_add_u32 {ssa}, {ssa}, {sbs}")
            if not wave_store:
                k(f"s_add_u32 {ssb}, {ssa}, 4096")
    offs(X1_B, U_B, Z_B, True)
    load_tw(TW0a)
    k(f"s_cmp_lg_u32 {it}, 0")
    k("s_cbranch_scc1 L_w_done", manual=True)
    GW = [k.v(4, 2) for _ in range(4)]
    vGW = k.v()
    k(f"v_lshrrev_b32 {vGW}, 1, v0")
    k(f"v_mul_u32_u24 {vGW}, {WT_BLK}, {vGW}")
    k(f"v_and_b32 {tv}, 1, v0")
    k(f"v_lshl_add_u32 {vGW}, {tv}, 4, {vGW}")
    k(f"s_add_u32 {t0}, {sslot}, {WT_B}")
    k(f"s_add_u32 {t1}, {t0}, {128 * WT_BLK}")
    k(f"buffer_load_dwordx4 {GW[0]}, {vGW}, {sws}, {t0} offen sc1")
    k(f"buffer_load_dwordx4 {GW[1]}, {vGW}, {sws}, {t1} offen sc1")
    k(f"s_mov_b32 {t0}, {WT_B + 256 * 32}")
    k(f"s_mov_b32 {t1}, {WT_B + 256 * 32 + 128 * WT_BLK}")
    k(f"buffer_load_dwordx4 {GW[2]}, {vGW}, {sws}, {t0} offen sc1")
    k(f"buffer_load_dwordx4 {GW[3]}, {vGW}, {sws}, {t1} offen sc1")
    for nm in OPT['windows'].get('1b', []):
        ITEMS[nm]()
    k.stamp('w1b')
    for i in range(4):
        k(f"ds_write_b128 {vUl}, {GW[i]} offset:{L_WIM + i * 4096}")
    k.V.free(vGW, *GW)
    k("s_barrier")
    vw = k.v()
    k(f"v_lshrrev_b32 {vw}, 1, {g}")
    k(f"v_lshlrev_b32 {vw}, 6, {vw}")
    k(f"v_add_u32 {vw}, {vw}, {n}")
    k(f"v_add_u32 {vw}, {w16}, {vw}")
    k(f"v_lshlrev_b32 {vw}, 5, {vw}")
    k(f"v_and_b32 {tv}, 1, {g}")
    k(f"v_lshl_add_u32 {vw}, {tv}, 4, {vw}")
    Wr = [k.v(4, 2) for _ in range(2)]
    for m2 in range(2):
        k(f"ds_read_b128 {Wr[m2]}, {vw} offset:{L_WIM + m2 * 4096}")
    sc = k.s()
    k(f"s_mov_b32 {sc}, {fhex(2.0 / (2048 * 512))}")
    for m2 in range(2):
        for r in range(4):
            for c in range(2):
                dst, src = WP[m2][4 * c + r], Wr[m2][2 * c + (r >> 1)]
                if r & 1:
                    k(f"v_and_b32 {dst}, {smask}, {src}")
                else:
                    k(f"v_lshlrev_b32 {dst}, 16, {src}")
                k(f"v_mul_f32 {dst}, {sc}, {dst}")
    k(f"s_cmp_lg_u32 {Lid}, 0")
    k("s_cbranch_scc1 L_wq_done", manual=True)
    vb0 = k.v()
    k(f"v_lshlrev_b32 {vb0}, 8, {g}")
    k(f"v_add_u32 {vb0}, {vb0}, {n}")
    k(f"v_add_u32 {vb0}, {w16}, {vb0}")
    e = {nm: k.v() for nm in ('ks', 'k1', 'k2', 'ad', 'x')}
    val = {nm: k.v() for nm in ('a_r', 'a_i', 'ar_r', 'ar_i', 'b_r', 'b_i', 'br_r', 'br_i')}
    q4 = fhex(0.25 / (2048 * 512))

    def elem_addr(ks):
        k(f"v_and_b32 {e['k1']}, 63, {ks}")
        k(f"v_lshrrev_b32 {e['k2']}, 6, {ks}")
        k(f"v_lshrrev_b32 {e['ad']}, 3, {e['k2']}")
        k(f"v_lshl_add_u32 {e['ad']}, {e['ad']}, 6, {e['k1']}")
        k(f"v_lshlrev_b32 {e['ad']}, 5, {e['ad']}")
        k(f"v_bfe_u32 {e['x']}, {e['k2']}, 2, 1")
        k(f"v_lshl_add_u32 {e['ad']}, {e['x']}, 4, {e['ad']}")
        k(f"v_and_b32 {e['x']}, 3, {e['k2']}")
        k(f"v_lshl_add_u32 {e['ad']}, {e['x']}, 1, {e['ad']}")
    for m2 in range(2):
        for r in range(4):
            k(f"v_add_u32 {e['ks']}, {64 * (16 * m2 + r)}, {vb0}")
            elem_addr(e['ks'])
            k(f"ds_read_u16 {val['a_r']}, {e['ad']} offset:{L_WIM}")
            k(f"ds_read_u16 {val['a_i']}, {e['ad']} offset:{L_WIM + 8}")
            k(f"ds_read_u16 {val['b_r']}, {e['ad']} offset:{L_WIM + 8192}")
            k(f"ds_read_u16 {val['b_i']}, {e['ad']} offset:{L_WIM + 8192 + 8}")
            k(f"v_sub_u32 {e['ks']}, 2048, {e['ks']}")
            k(f"v_and_b32 {e['ks']}, 2047, {e['ks']}")
            elem_addr(e['ks'])
            k(f"ds_read_u16 {val['ar_r']}, {e['ad']} offset:{L_WIM}")
            k(f"ds_read_u16 {val['ar_i']}, {e['ad']} offset:{L_WIM + 8}")
            k(f"ds_read_u16 {val['br_r']}, {e['ad']} offset:{L_WIM + 8192}")
            k(f"ds_read_u16 {val['br_i']}, {e['ad']} offset:{L_WIM + 8192 + 8}")
            for nm in val:
                k(f"v_lshlrev_b32 {val[nm]}, 16, {val[nm]}")
            k(f"v_add_f32 {val['a_r']}, {val['a_r']}, {val['ar_r']}")
            k(f"v_sub_f32 {val['a_i']}, {val['a_i']}, {val['ar_i']}")
            k(f"v_add_f32 {val['b_r']}, {val['b_r']}, {val['br_r']}")
            k(f"v_sub_f32 {val['b_i']}, {val['b_i']}, {val['br_i']}")
            k(f"v_add_f32 {WP[m2][r]}, {val['a_r']}, {val['b_r']}")
            k(f"v_add_f32 {WP[m2][4 + r]}, {val['a_i']}, {val['b_i']}")
            k(f"v_sub_f32 {val['ar_r']}, {val['a_r']}, {val['b_r']}")
            k(f"v_sub_f32 {val['ar_i']}, {val['a_i']}, {val['b_i']}")
            for x in (WP[m2][r], WP[m2][4 + r], val['ar_r'], val['ar_i']):
                k(f"v_mul_f32 {x}, {q4}, {x}")
            k(f"v_accvgpr_write_b32 {WQa[8 * m2 + r]}, {val['ar_r']}")
            k(f"v_accvgpr_write_b32 {WQa[8 * m2 + 4 + r]}, {val['ar_i']}")
    k("s_waitcnt lgkmcnt(0)")
    k("L_wq_done:", manual=True)
    k.V.free(vb0, *e.values(), *val.values(), vw, *Wr)
    k.S.free(sc)
    k("s_waitcnt lgkmcnt(0)")
    k("s_nop 3")
    k("L_w_done:", manual=True)
    gather_check()
    k(f"ds_write_b128 {vUl}, {GL[0]} offset:{L_IMG}")
    k(f"ds_write_b128 {vUl}, {GL[1]} offset:{L_IMG + 4096}")
    k("s_barrier")
    k.stamp('CAld')
    X = [[k.v(4, 2) for _ in range(4)] for _ in range(2)]
    for mt in range(2):
        for q in range(4):
            k(f"ds_read_b128 {X[mt][q]}, {vCAo} offset:{L_IMG + q * 2048 + mt * 512}")
    C = Chan()
    for mt in range(2):
        for q in range(4):
            k.mfma(C.D[0][mt], X[mt][q], op_CS(F[q]), C.D[0][mt] if q else None)
            k.mfma(C.D[1][mt], X[mt][q], op_nSC(F[q]), C.D[1][mt] if q else None)
    fwd_half(C)
    for m2 in range(2):
        for r in range(4):
            k.cmul(C.T[0][m2][r], C.T[1][m2][r], C.E[0][m2][r], C.E[1][m2][r], WP[m2][r], WP[m2][4 + r], True)
    k(f"s_cmp_lg_u32 {Lid}, 0")
    k("s_cbranch_scc1 L_q_done", manual=True)
    vb0, ad = k.v(), k.v()
    k(f"v_lshlrev_b32 {vb0}, 8, {g}")
    k(f"v_add_u32 {vb0}, {vb0}, {n}")
    k(f"v_add_u32 {vb0}, {w16}, {vb0}")
    prs = [k.v(2, 2) for _ in range(8)]
    qq = k.v(2, 2)
    for m2 in range(2):
        for r in range(4):
            pr = prs[4 * m2 + r]
            k(f"v_add_u32 {ad}, {64 * (16 * m2 + r)}, {vb0}")
            k(f"v_lshlrev_b32 {ad}, 3, {ad}")
            k(f"v_mov_b32 {pr[0]}, {C.E[0][m2][r]}")
            k(f"v_mov_b32 {pr[1]}, {C.E[1][m2][r]}")
            k(f"ds_write_b64 {ad}, {pr} offset:{L_XCH}")
    k("s_barrier")
    for m2 in range(2):
        for r in range(4):
            k(f"v_sub_u32 {ad}, {2048 - 64 * (16 * m2 + r)}, {vb0}")
            k(f"v_and_b32 {ad}, 2047, {ad}")
            k(f"v_lshlrev_b32 {ad}, 3, {ad}")
            k(f"ds_read_b64 {prs[4 * m2 + r]}, {ad} offset:{L_XCH}")
    for m2 in range(2):
        for r in range(4):
            pr = prs[4 * m2 + r]
            k(f"v_accvgpr_read_b32 {qq[0]}, {WQa[8 * m2 + r]}")
            k(f"v_accvgpr_read_b32 {qq[1]}, {WQa[8 * m2 + 4 + r]}")
            k(f"v_fma_f32 {C.T[0][m2][r]}, {pr[0]}, {qq[0]}, {C.T[0][m2][r]}")
            k(f"v_fma_f32 {C.T[0][m2][r]}, {pr[1]}, {qq[1]}, {C.T[0][m2][r]}")
            k(f"v_fma_f32 {C.T[1][m2][r]}, {pr[0]}, {qq[1]}, {C.T[1][m2][r]}")
            k(f"v_fma_f32 {C.T[1][m2][r]}, -{pr[1]}, {qq[0]}, {C.T[1][m2][r]}")
    k("s_barrier")
    k.V.free(vb0, ad, *prs, qq)
    k("L_q_done:", manual=True)
    XO = [X[0][0], X[0][1]]
    inv_half(C, XO)
    for nt in range(2):
        k(f"ds_write_b128 {vXw}, {XO[nt]} offset:{L_XCH + nt * 1024}")
    k("s_waitcnt vmcnt(0)")
    k("s_barrier")
    for nt in range(2):
        for kq in range(4):
            k(f"ds_read_b128 {X[nt][kq]}, {vl16} offset:{L_XCH + kq * 2048 + nt * 1024}")
    for nt in range(2):
        for kq in range(4):
            k.mfma(C.D[0][nt], op_CnS(F[kq]), X[nt][kq], C.D[0][nt] if kq else None)
            k.mfma(C.D[1][nt], op_SC(F[kq]), X[nt][kq], C.D[1][nt] if kq else None)
    for nt in range(2):
        k.pk(O[nt][0], C.D[0][nt][0], C.D[0][nt][1])
        k.pk(O[nt][1], C.D[1][nt][0], C.D[1][nt][1])
        k.pk(O[nt][2], C.D[0][nt][2], C.D[0][nt][3])
        k.pk(O[nt][3], C.D[1][nt][2], C.D[1][nt][3])
        k(f"buffer_store_dwordx4 {O[nt]}, {vzo}, {sws}, {ssa} offen offset:{nt * 512} sc1")
    C.free()
    k.V.free(*X[0], *X[1])
    k.stamp('CA')

    offs(Z_B, Y_B, U_B, False)
    load_tw(RItw)
    window('2')
    X = [k.v(4, 2) for _ in range(2)]
    for nt in range(2):
        for r in range(4):
            k(f"ds_read_b32 {X[nt][r]}, {vRIx} offset:{L_XL + nt * 256 + r * 512}")
    XP = [[k.v(2, 2) for _ in range(4)] for _ in range(2)]
    for nt in range(2):
        for r in range(4):
            unpack2(XP[nt][r], X[nt][r])
    gather_check()
    k(f"ds_write_b128 {vUl}, {GL[0]} offset:{L_IMG}")
    k(f"ds_write_b128 {vUl}, {GL[1]} offset:{L_IMG + 4096}")
    k("s_barrier")
    k.stamp('RIld')
    Lz = [k.v(2, 2) for _ in range(4)]
    for e_ in range(4):
        k(f"ds_read_b64 {Lz[e_]}, {vRIz} offset:{L_IMG + e_ * 512}")
    Aop = [k.v(4, 2) for _ in range(2)]
    for e_ in range(2):
        sel = shi if e_ else slo
        k(f"v_perm_b32 {Aop[e_][0]}, {Lz[1][0]}, {Lz[0][0]}, {sel}")
        k(f"v_perm_b32 {Aop[e_][1]}, {Lz[3][0]}, {Lz[2][0]}, {sel}")
        k(f"v_perm_b32 {Aop[e_][2]}, {Lz[1][1]}, {Lz[0][1]}, {sel}")
        k(f"v_perm_b32 {Aop[e_][3]}, {Lz[3][1]}, {Lz[2][1]}, {sel}")
    szn = k.s()
    k(f"v_readlane_b32 {szn}, {Lz[0][1]}, 0")
    Vr = [[k.v(4, 2) for _ in range(2)] for _ in range(2)]
    Vi = [[k.v(4, 2) for _ in range(2)] for _ in range(2)]
    for e_ in range(2):
        for nt in range(2):
            k.mfma(Vr[e_][nt], Aop[e_], op_CnS(H[nt]))
            k.mfma(Vi[e_][nt], Aop[e_], op_SC(H[nt]))
    Ci = [k.v(4, 2) for _ in range(2)]
    k(f"s_lshl_b32 {t0}, {szn}, 16")
    k(f"s_and_b32 {t1}, {szn}, 0xffff0000")
    for e_ in range(2):
        k(f"v_xor_b32 {Ci[e_][0]}, {t1 if e_ else t0}, {sgn}")
        for r in range(1, 4):
            k(f"v_mov_b32 {Ci[e_][r]}, {Ci[e_][0]}")
    k.S.free(szn)
    D = [[k.v(4, 2) for _ in range(2)] for _ in range(2)]
    tr = [[k.v(4, 2) for _ in range(2)] for _ in range(2)]
    ti = [[k.v(4, 2) for _ in range(2)] for _ in range(2)]
    B = [[k.v(4, 2) for _ in range(2)] for _ in range(2)]
    for e_ in range(2):
        for nt in range(2):
            for r in range(4):
                k.cmul(tr[e_][nt][r], ti[e_][nt][r], Vr[e_][nt][r], Vi[e_][nt][r], TWV[8 * nt + r], TWV[8 * nt + 4 + r], True)
            pack4(k, B[e_][nt], tr[e_][nt], ti[e_][nt])
            k.mfma(D[e_][nt], RIA2, B[e_][nt], Ci[e_])
    k.V.free(*tr[0], *tr[1], *ti[0], *ti[1], *B[0], *B[1], *Ci, *Aop, *Vr[0], *Vr[1], *Vi[0], *Vi[1], *Lz)
    Sp = [k.v(2, 2) for _ in range(2)]
    Qp = [k.v(2, 2) for _ in range(2)]
    for nt in range(2):
        for r in range(4):
            k(f"v_add_f32 {XP[nt][r][0]}, {XP[nt][r][0]}, {D[0][nt][r]}")
            k(f"v_add_f32 {XP[nt][r][1]}, {XP[nt][r][1]}, {D[1][nt][r]}")
            k.pk(X[nt][r], XP[nt][r][0], XP[nt][r][1])
            k(f"ds_write_b32 {vRIx}, {X[nt][r]} offset:{L_XL + nt * 256 + r * 512}")
            unpack2(XP[nt][r], X[nt][r])
        k(f"v_pk_add_f32 {Sp[nt]}, {XP[nt][0]}, {XP[nt][1]}")
        k(f"v_pk_mul_f32 {Qp[nt]}, {XP[nt][0]}, {XP[nt][0]}")
        k(f"v_pk_add_f32 {Sp[nt]}, {Sp[nt]}, {XP[nt][2]}")
        k(f"v_pk_fma_f32 {Qp[nt]}, {XP[nt][1]}, {XP[nt][1]}, {Qp[nt]}")
        k(f"v_pk_add_f32 {Sp[nt]}, {Sp[nt]}, {XP[nt][3]}")
        k(f"v_pk_fma_f32 {Qp[nt]}, {XP[nt][2]}, {XP[nt][2]}, {Qp[nt]}")
        k(f"v_pk_fma_f32 {Qp[nt]}, {XP[nt][3]}, {XP[nt][3]}, {Qp[nt]}")
    k(f"v_pk_add_f32 {Sp[0]}, {Sp[0]}, {Sp[1]}")
    k(f"v_pk_add_f32 {Qp[0]}, {Qp[0]}, {Qp[1]}")
    k.V.free(*D[0], *D[1])
    R = k.reduce4([Sp[0][0], Sp[0][1], Qp[0][0], Qp[0][1]])
    k(f"v_add_f32_dpp {R}, {R}, {R} quad_perm:[1,0,3,2] row_mask:0xf bank_mask:0xf")
    R2 = Qp[0][1]
    k(f"v_mov_b32 {R2}, {R}")
    k(f"v_permlane16_swap_b32 {R}, {R2}")
    mbf, rstd = k.ln_finish(R, R2, tv)
    k(f"v_mul_f32 {mbf}, {mbf}, {rstd}")
    sm, sr = k.s(2), k.s(2)
    for e_ in range(2):
        k(f"v_readlane_b32 {sm[e_]}, {mbf}, {32 * e_}")
        k(f"v_readlane_b32 {sr[e_]}, {rstd}, {32 * e_}")
    mr = Sp[1]
    k(f"v_mov_b32 {mr[0]}, {sm[0]}")
    k(f"v_mov_b32 {mr[1]}, {sm[1]}")
    for nt in range(2):
        for r in range(4):
            k(f"v_pk_fma_f32 {XP[nt][r]}, {XP[nt][r]}, {sr}, {mr} neg_lo:[0,0,1] neg_hi:[0,0,1]")
            k.pk(X[nt][r], XP[nt][r][0], XP[nt][r][1])
            k(f"ds_write_b32 {vRIx}, {X[nt][r]} offset:{L_XCH + nt * 256 + r * 512}")
    k.S.free(sm, sr)
    k.V.free(*Sp, *Qp, *XP[0], *XP[1], *X)
    store_block(L_XCH)
    k.stamp('RI')

    k(f"s_add_u32 {sga}, {sslot}, {itoff}")
    k(f"s_add_u32 {sga}, {sga}, {U_B}")
    k(f"s_add_u32 {sgb}, {sga}, {128 * 8192}")
    gather_issue(True)
    k(f"s_add_u32 {sfa}, {sblk}, {itoff}")
    k(f"s_add_u32 {sfa}, {sfa}, {X1_B + IT_STRIDE}")
    k(f"s_add_u32 {sfb}, {sfa}, 4096")
    k(f"s_cmp_lg_u32 {it}, 0")
    k("s_cbranch_scc1 L_nofill", manual=True)
    fill()
    k("s_nop 1")
    k("L_nofill:", manual=True)
    k(f"s_add_u32 {ssa}, {sblkw}, {itoff}")
    k(f"s_add_u32 {ssa}, {ssa}, {Y_B}")
    load_tw(TW1a)
    window('3')
    gather_check()
    k(f"ds_write_b128 {vCBi}, {GL[0]} offset:{L_IMG}")
    k(f"ds_write_b128 {vCBi}, {GL[1]} offset:{L_IMG + 2048}")
    k("s_barrier")
    k.stamp('CBld')
    U = [[[k.v(4, 2) for _ in range(2)] for _ in range(2)] for _ in range(2)]
    for c in range(2):
        for mt in range(2):
            for q in range(2):
                k(f"ds_read_b128 {U[c][mt][q]}, {vCBo} offset:{L_IMG + c * 4096 + q * 2048 + mt * 256}")
    EU = [[k.v(2, 2) for _ in range(2)] for _ in range(2)]
    for c in range(2):
        for nt in range(2):
            k(f"ds_read_b64 {EU[c][nt]}, {vCBe} offset:{L_IMG + c * 4096 + nt * 256}")
    Cs = [Chan(), Chan()]
    for c in range(2):
        C = Cs[c]
        for mt in range(2):
            for q in range(2):
                k.mfma(C.D[0][mt], U[c][mt][q], FC[q], C.D[0][mt] if q else None)
                k.mfma(C.D[1][mt], U[c][mt][q], FS[q], C.D[1][mt] if q else None)
        fwd_half(C)
        for m2 in range(2):
            kr, ki = U[c][m2][0], U[c][m2][1]
            for r in range(4):
                for dst, src in ((kr[r], KF[c][m2][r >> 1]), (ki[r], KF[c][m2][2 + (r >> 1)])):
                    if r & 1:
                        k(f"v_and_b32 {dst}, {smask}, {src}")
                    else:
                        k(f"v_lshlrev_b32 {dst}, 16, {src}")
            for r in range(4):
                k.cmul(C.T[0][m2][r], C.T[1][m2][r], C.E[0][m2][r], C.E[1][m2][r], kr[r], ki[r], True)
        XO = [U[c][0][0], U[c][0][1]]
        inv_half(C, XO)
        for nt in range(2):
            k(f"ds_write_b128 {vXw}, {XO[nt]} offset:{L_XCH + c * 8192 + nt * 1024}")
        for nt in range(2):
            for h in range(2):
                unpack2(U[c][1][nt][2 * h:2 * h + 2], EU[c][nt][h])
    k("s_waitcnt vmcnt(0)")
    k("s_barrier")
    Yc = [[[Cs[c].T[0][0], Cs[c].T[0][1], Cs[c].T[1][0], Cs[c].T[1][1]],
           [Cs[c].D[1][0], Cs[c].D[1][1], Cs[c].B[0], Cs[c].B[1]]] for c in range(2)]
    for c in range(2):
        for nt in range(2):
            for kq in range(4):
                k(f"ds_read_b128 {Yc[c][nt][kq]}, {vl16} offset:{L_XCH + c * 8192 + kq * 2048 + nt * 1024}")
    UP = [[[U[c][1][0][0:2], U[c][1][0][2:4]], [U[c][1][1][0:2], U[c][1][1][2:4]]] for c in range(2)]
    for c in range(2):
        D = Cs[c].D[0]
        for nt in range(2):
            for kq in range(4):
                k.mfma(D[nt], I2[kq], Yc[c][nt][kq], D[nt] if kq else None)
    for c in range(2):
        D = Cs[c].D[0]
        for nt in range(2):
            for h in range(2):
                for e_ in range(2):
                    k(f"v_fmac_f32 {D[nt][2 * h + e_]}, {ds2[c][0]}, {UP[c][nt][h][e_]}")
                k.pk(O[nt][2 * c + h], D[nt][2 * h], D[nt][2 * h + 1])
    for nt in range(2):
        k(f"v_permlane16_swap_b32 {O[nt][0]}, {O[nt][2]}")
        k(f"v_permlane16_swap_b32 {O[nt][1]}, {O[nt][3]}")
        k(f"buffer_store_dwordx4 {O[nt]}, {vzo}, {sws}, {ssa} offen offset:{nt * 512} sc1")
    for c in range(2):
        Cs[c].free()
        k.V.free(*U[c][0], *U[c][1], *EU[c])
    k.stamp('CB')

    k(f"s_add_u32 {sga}, {sslot}, {itoff}")
    k(f"s_add_u32 {sga}, {sga}, {Y_B}")
    k(f"s_add_u32 {sgb}, {sga}, {128 * 8192}")
    gather_issue(True)
    k(f"s_add_u32 {sfa}, {sblk}, {itoff}")
    k(f"s_add_u32 {sfa}, {sfa}, {Z_B + IT_STRIDE}")
    k(f"s_add_u32 {sfb}, {sfa}, 4096")
    k(f"s_cmp_lg_u32 {it}, 0")
    k("s_cbranch_scc1 L_nofill2", manual=True)
    fill()
    k("s_nop 1")
    k("L_nofill2:", manual=True)
    k(f"s_add_u32 {ssa}, {sblk}, {itoff}")
    k(f"s_add_u32 {ssa}, {ssa}, {X1_B + IT_STRIDE}")
    k(f"s_add_u32 {ssb}, {ssa}, 4096")
    load_tw(RFtw)
    XV = [k.v(4, 2) for _ in range(2)]
    k(f"ds_read_b128 {XV[0]}, {vUl} offset:{L_XL}")
    k(f"ds_read_b128 {XV[1]}, {vUl} offset:{L_XL + 4096}")
    xps = [[k.v(2, 2) for _ in range(4)] for _ in range(2)]
    yps = [[k.v(2, 2) for _ in range(4)] for _ in range(2)]
    for i in range(2):
        for j in range(4):
            unpack2(xps[i][j], XV[i][j])
    gather_check()
    for i in range(2):
        for j in range(4):
            unpack2(yps[i][j], GL[i][j])
            k(f"v_pk_add_f32 {yps[i][j]}, {yps[i][j]}, {xps[i][j]}")
            k.pk(XV[i][j], yps[i][j][0], yps[i][j][1])
        k(f"ds_write_b128 {vUl}, {XV[i]} offset:{L_XL + i * 4096}")
    k.V.free(*yps[0], *yps[1], *xps[0], *xps[1], *XV)
    k("s_barrier")
    k.stamp('resid')
    k(f"s_add_u32 {it}, {it}, 1")
    k(f"s_cmp_lt_u32 {it}, 2")
    k("s_cbranch_scc1 L_layer", manual=True)

    vt = k.v()
    k(f"v_lshrrev_b32 {tv}, 2, {n}")
    k(f"v_lshlrev_b32 {vt}, 4, {tv}")
    k(f"v_and_b32 {tv}, 1, {n}")
    k(f"v_lshl_add_u32 {vt}, {tv}, 3, {vt}")
    k(f"v_bfe_u32 {tv}, {n}, 1, 1")
    k(f"v_lshl_add_u32 {vt}, {tv}, 7, {vt}")
    k(f"v_lshl_add_u32 {vt}, {g}, 8, {vt}")
    k(f"s_lshl_b32 {t0}, {wv}, 11")
    k(f"v_add_u32 {vt}, {t0}, {vt}")
    OT = [k.v(4, 2) for _ in range(2)]
    for j in range(2):
        for h in range(2):
            k(f"ds_read_b64_tr_b16 {OT[j][2 * h:2 * h + 2]}, {vt} offset:{L_XL + j * 1024 + h * 64}")
    so = scratch_srd('out', 2048 * 512 * 2)
    vo = k.v()
    k(f"v_and_b32 {vo}, 7, {n}")
    k(f"v_lshlrev_b32 {vo}, 15, {vo}")
    k(f"v_lshrrev_b32 {tv}, 3, {n}")
    k(f"v_lshl_add_u32 {vo}, {tv}, 4, {vo}")
    k(f"v_lshl_add_u32 {vo}, {g}, 5, {vo}")
    k(f"s_lshl_b32 {t0}, {a8}, 8")
    k(f"s_add_u32 {t0}, {t0}, {bs}")
    k(f"s_lshl_b32 {t0}, {t0}, 10")
    k(f"s_lshl_b32 {t1}, {wv}, 8")
    k(f"s_add_u32 {t0}, {t0}, {t1}")
    for j in range(2):
        k(f"buffer_store_dwordx4 {OT[j]}, {vo}, {so}, {t0} offen offset:{j * 128}")
    if OPT['stamps']:
        k.stamp('final')
        k.stamp('drain', "s_waitcnt vmcnt(0)")
        k(f"v_lshlrev_b32 {vt}, 2, {lane}")
        k(f"s_lshl_b32 {t0}, s2, 8")
        k(f"s_add_u32 {t0}, {t0}, {TS_OFF}")
        k(f"s_mov_b32 {sws[2]}, {hex(TS_OFF + 0x100000)}")
        k(f"s_cmp_lg_u32 {wv}, 0")
        k("s_cbranch_scc1 L_end")
        k(f"buffer_store_dword {k.v_ts}, {vt}, {sws}, {t0} offen")
    k("L_end:")
    k("s_endpgm")
    k("L_code_end:", manual=True)
    body = k.a.finish(sched=OPT['sched'])
    body += ".p2align 8\n.type L_tables,@object\nL_tables:\n" + ttext + f".size L_tables, {toff['total']}\n"
    print(f"vgpr={k.V.hi} agpr={k.A.hi} sgpr={k.S.hi} lds={LDS_BYTES} instrs={k.a.count()}")
    return k, body


def write(path):
    k, body = build()
    hdr = list(HDR)
    hdr.append(f"; @launch grid=(256,1,1) block=(256,1,1) lds={LDS_BYTES}")
    hdr.append('.amdgcn_target "amdgcn-amd-amdhsa--gfx950"')
    hdr.append('.text')
    txt = '\n'.join(hdr) + '\n' + kernel_text(KN, body)
    txt += '.section .rodata,"a"\n' + descriptor(KN, 256 + max(k.A.hi, 8), max(k.S.hi, 16), accum=256)
    open(path, 'w').write(txt)
    return k


def stamp_sequence(names):
    i0 = names.index('RF')
    i1 = names.index('resid') + 1
    body = names[i0:i1]
    second = [x for x in body if x not in ('w1b', 'arr', 'w1a', 'wait')]
    return names[:i1] + second + names[i1:]


if __name__ == '__main__':
    for a_ in sys.argv[2:]:
        kk_, vv_ = a_.split('=')
        OPT[kk_] = eval(vv_)
    if len(sys.argv) > 1 and sys.argv[1] not in ('stamps', 'plain'):
        write(sys.argv[1])
    elif len(sys.argv) > 1 and sys.argv[1] == 'stamps':
        OPT['stamps'] = True
        kk = write('p3_ts.s')
        open('p3_ts.names', 'w').write(','.join(stamp_sequence(kk.stamp_names)))
    else:
        write('p3.s')
```

```python
import re

REG_RE = re.compile(r'^(-|abs\()?([vsa])(\d+)\)?$')
RNG_RE = re.compile(r'^(-|abs\()?([vsa])\[(\d+):(\d+)\]\)?$')

TRANS = ('v_exp_f32', 'v_log_f32', 'v_rcp_f32', 'v_rsq_f32', 'v_sqrt_f32', 'v_sin_f32', 'v_cos_f32',
         'v_rcp_iflag_f32')
RMW_DST = ('v_fmac_f32', 'v_dot2c_f32_bf16', 'v_pk_fmac_f16', 'v_writelane_b32', 'v_fmac_f32_e32',
           'v_dot2c_f32_bf16_e32')
NO_DST_S = ('s_cmp', 's_waitcnt', 's_barrier', 's_nop', 's_branch', 's_cbranch', 's_setprio', 's_endpgm',
            's_sleep', 's_setreg', 's_bitcmp', 's_sethalt', 's_setpc')


def regs_of(tok):
    tok = tok.strip()
    m = REG_RE.match(tok)
    if m:
        return {(m.group(2), int(m.group(3)))}
    m = RNG_RE.match(tok)
    if m:
        return {(m.group(2), i) for i in range(int(m.group(3)), int(m.group(4)) + 1)}
    if tok == 'vcc':
        return {('s', 106), ('s', 107)}
    if tok == 'vcc_lo':
        return {('s', 106)}
    if tok == 'vcc_hi':
        return {('s', 107)}
    if tok == 'exec':
        return {('s', 126), ('s', 127)}
    if tok == 'exec_lo':
        return {('s', 126)}
    if tok == 'exec_hi':
        return {('s', 127)}
    if tok == 'm0':
        return {('s', 124)}
    return set()


def split_ops(s):
    out, depth, cur = [], 0, ''
    for ch in s:
        if ch in '[(':
            depth += 1
        if ch in '])':
            depth -= 1
        if ch == ',' and depth == 0:
            out.append(cur.strip())
            cur = ''
        else:
            cur += ch
    if cur.strip():
        out.append(cur.strip())
    return out


class Ins:
    __slots__ = ('text', 'mn', 'ops', 'mods', 'kind', 'R', 'W', 'srcA', 'srcB', 'srcC', 'passes', 'dpp',
                 'trans', 'wide_store', 'lds_dma', 'manual', 'nosched')

    def __init__(self, text, manual=False):
        self.text = text
        self.manual = manual
        self.nosched = False
        t = text.split(';')[0].strip()
        self.R, self.W = set(), set()
        self.srcA = self.srcB = self.srcC = set()
        self.passes = 0
        self.dpp = self.trans = self.wide_store = self.lds_dma = False
        if t.endswith(':'):
            self.kind, self.mn, self.ops, self.mods = 'label', t, [], ''
            return
        if t.startswith('.') or not t:
            self.kind, self.mn, self.ops, self.mods = 'dir', t, [], ''
            return
        parts = t.split(None, 1)
        mn = parts[0]
        self.mn = mn
        rest = parts[1] if len(parts) > 1 else ''
        ops = split_ops(rest)
        mods = ''
        if ops:
            last = ops[-1].split(None, 1)
            if len(last) > 1 and not last[0].startswith('vmcnt') and not last[0].startswith('lgkmcnt'):
                ops[-1], mods = last[0], last[1]
        self.ops, self.mods = ops, mods
        base = re.sub(r'_(e32|e64|dpp|sdwa)$', '', mn)
        rg = [regs_of(o) for o in ops]

        def U(idx):
            s = set()
            for i in idx:
                if i < len(rg):
                    s |= rg[i]
            return s
        n = len(ops)
        if base.startswith('v_mfma'):
            self.kind = 'mfma'
            self.W = rg[0]
            self.srcA, self.srcB, self.srcC = rg[1], rg[2], rg[3]
            self.R = rg[1] | rg[2] | rg[3]
            if '16x16x32' in base or '16x16x16' in base:
                self.passes = 4
            elif '32x32x16' in base or '32x32x8' in base:
                self.passes = 8
            else:
                raise ValueError('unmodelled mfma ' + base)
        elif base.startswith('v_'):
            self.kind = 'valu'
            self.trans = base in TRANS
            self.dpp = mn.endswith('_dpp') or any(k in mods for k in ('row_', 'quad_perm', 'wave_'))
            if base.startswith('v_permlane') and 'swap' in base:
                self.W = U([0, 1])
                self.R = U([0, 1])
            elif base.startswith('v_cmp'):
                self.W = rg[0]
                self.R = U(range(1, n))
            elif base in ('v_add_co_u32', 'v_sub_co_u32', 'v_addc_co_u32', 'v_subb_co_u32', 'v_subrev_co_u32'):
                self.W = U([0, 1])
                self.R = U(range(2, n))
            elif base == 'v_cndmask_b32':
                self.W = rg[0]
                self.R = U(range(1, n))
                if n == 3:
                    self.R |= regs_of('vcc')
            else:
                self.W = rg[0]
                self.R = U(range(1, n))
                if base in RMW_DST or self.dpp:
                    self.R |= rg[0]
            if base == 'v_nop':
                self.W, self.R = set(), set()
        elif base.startswith('ds_'):
            self.kind = 'ds'
            if base.startswith('ds_read') or base.startswith('ds_bpermute') or base.startswith('ds_swizzle') \
                    or base.startswith('ds_permute'):
                self.W = rg[0]
                self.R = U(range(1, n))
                if 'd16' in base:
                    self.R |= rg[0]
            else:
                self.R = U(range(n))
        elif base.startswith('buffer_') or base.startswith('global_'):
            self.kind = 'vmem'
            words = mods.split()
            if base in ('buffer_wbl2', 'buffer_inv'):
                pass
            elif 'lds' in words or '_lds_' in base:
                self.lds_dma = True
                self.R = U(range(n)) | regs_of('m0')
            elif '_load' in base:
                self.W = rg[0]
                self.R = U(range(1, n))
                if 'd16' in base:
                    self.R |= rg[0]
            elif '_atomic' in base:
                self.R = U(range(n))
                if 'sc0' in words:
                    self.W = rg[0]
            else:
                self.R = U(range(n))
                self.wide_store = 'x4' in base or 'x3' in base
                if self.wide_store:
                    self.srcA = rg[0] if base.startswith('buffer_') else rg[1]
        elif base.startswith('s_load') or base.startswith('s_buffer_load') or base in ('s_memtime', 's_memrealtime'):
            self.kind = 'smem'
            self.W = rg[0]
            self.R = U(range(1, n))
        elif base.startswith('s_'):
            self.kind = 'salu'
            if any(base.startswith(p) for p in NO_DST_S):
                self.R = U(range(n))
                if base in ('s_cbranch_vccz', 's_cbranch_vccnz'):
                    self.R |= regs_of('vcc')
                if base in ('s_cbranch_execz', 's_cbranch_execnz'):
                    self.R |= regs_of('exec')
            else:
                self.W = rg[0]
                self.R = U(range(1, n))
                if 'saveexec' in base:
                    self.W |= regs_of('exec')
                    self.R |= regs_of('exec')
                if base in ('s_addk_i32', 's_mulk_i32'):
                    self.R |= rg[0]
        else:
            raise ValueError('unmodelled instruction: ' + text)

    @property
    def is_branch(self):
        return self.kind == 'salu' and (self.mn.startswith('s_branch') or self.mn.startswith('s_cbranch')
                                        or self.mn.startswith('s_endpgm') or self.mn.startswith('s_setpc'))


def is_vgpr(r):
    return r[0] in ('v', 'a')


def wait_text(vm, lg):
    parts = []
    if vm is not None:
        parts.append('vmcnt(%d)' % min(vm, 63))
    if lg is not None:
        parts.append('lgkmcnt(%d)' % min(lg, 15))
    return 's_waitcnt ' + ' '.join(parts)


class Asm:
    def __init__(self):
        self.ins = []

    def __call__(self, text, manual=False):
        for line in text.split('\n'):
            line = line.strip()
            if not line or line.startswith(';'):
                continue
            self.ins.append(Ins(line, manual))

    def label(self, name):
        self.ins.append(Ins(name + ':'))

    def insert_waits(self):
        out = []
        vm = []
        lg = []
        saved = {}
        for i in self.ins:
            if i.kind == 'dir' and i.text.startswith('.forget_vm'):
                vm = [set() for _ in vm]
                continue
            if i.kind == 'dir':
                out.append(i)
                continue
            if i.manual and i.is_branch and i.ops:
                saved.setdefault(i.ops[0], []).append(([set(d) for d in vm], [(kd, set(d)) for kd, d in lg]))
            if i.manual and i.kind == 'label':
                states = saved.pop(i.mn[:-1], []) + [(vm, lg)]
                dv, dl, anyv, anyl, sm = set(), set(), False, False, False
                for v_, l_ in states:
                    for d in v_:
                        dv |= d
                        anyv = True
                    for kd, d in l_:
                        dl |= d
                        anyl = True
                        sm = sm or kd == 'smem'
                vm = [dv] if anyv else []
                lg = [('smem' if sm else 'ds', dl)] if anyl else []
                out.append(i)
                continue
            touched = i.R | i.W
            need_vm = need_lg = None
            boundary = i.kind == 'label' or i.is_branch
            if boundary and not i.manual:
                idx = [k for k, d in enumerate(vm) if d]
                if idx:
                    need_vm = len(vm) - 1 - max(idx)
                if any(d for _, d in lg):
                    need_lg = 0
            else:
                for k, d in enumerate(vm):
                    if d & touched:
                        c = len(vm) - 1 - k
                        need_vm = c if need_vm is None else min(need_vm, c)
                smem_out = any(kd == 'smem' for kd, _ in lg)
                for k, (kd, d) in enumerate(lg):
                    if d & touched:
                        c = 0 if smem_out else len(lg) - 1 - k
                        need_lg = c if need_lg is None else min(need_lg, c)
                if i.mn == 's_barrier' and lg:
                    need_lg = 0
            if i.mn == 's_waitcnt':
                m = re.search(r'vmcnt\((\d+)\)', i.text)
                if m:
                    c = int(m.group(1))
                    vm = vm[len(vm) - c:] if c < len(vm) else vm
                    if c == 0:
                        vm = []
                m = re.search(r'lgkmcnt\((\d+)\)', i.text)
                if m:
                    c = int(m.group(1))
                    if c == 0:
                        lg = []
                    elif not any(kd == 'smem' for kd, _ in lg):
                        lg = lg[len(lg) - c:] if c < len(lg) else lg
                out.append(i)
                continue
            if need_vm is not None or need_lg is not None:
                if need_vm is not None:
                    need_vm = min(need_vm, 63)
                if need_lg is not None:
                    need_lg = min(need_lg, 15)
                out.append(Ins(wait_text(need_vm, need_lg)))
                if need_vm is not None:
                    vm = vm[len(vm) - need_vm:] if need_vm > 0 else []
                if need_lg is not None:
                    lg = lg[len(lg) - need_lg:] if need_lg > 0 else []
            out.append(i)
            if i.kind == 'vmem':
                vm.append(set(i.W))
            elif i.kind == 'ds':
                lg.append(('ds', set(i.W)))
            elif i.kind == 'smem':
                lg.append(('smem', set(i.W)))
            if boundary and not i.manual:
                vm = [set() for _ in vm]
                lg = [('smem', set())] if lg else []
        self.ins = out

    @staticmethod
    def required(p, c):
        need = 0
        cw_v = {r for r in c.W if is_vgpr(r)}
        cr_v = {r for r in c.R if is_vgpr(r)}
        pw_v = {r for r in p.W if is_vgpr(r)}
        pw_s = {r for r in p.W if r[0] == 's'}
        cr_s = {r for r in c.R if r[0] == 's'}
        if p.kind == 'valu':
            if c.kind == 'mfma' and pw_v & c.R:
                need = max(need, 2)
            if c.kind == 'valu':
                if p.trans and pw_v & cr_v:
                    need = max(need, 1)
                if c.dpp and pw_v & cr_v:
                    need = max(need, 2)
                if c.mn.startswith('v_permlane') and pw_v & cr_v:
                    need = max(need, 2)
                if (c.mn.startswith('v_readlane') or c.mn.startswith('v_readfirstlane')) and pw_v & cr_v:
                    need = max(need, 1)
                if pw_s & cr_s:
                    need = max(need, 4 if (c.mn.startswith('v_readlane') or c.mn.startswith('v_writelane')) else 2)
                if ('op_sel' in p.mods and not p.mn.startswith('v_pk_')) or 'dst_sel' in p.mods:
                    if pw_v & (cr_v | cw_v):
                        need = max(need, 1)
            if c.kind == 'vmem' and pw_s & cr_s:
                need = max(need, 5)
            if c.kind in ('salu', 'smem') and pw_s & cr_s:
                need = max(need, 4)
            if p.trans and c.kind in ('vmem', 'ds') and pw_v & cr_v:
                need = max(need, 1)
        if p.kind == 'mfma':
            n = p.passes
            if c.kind == 'mfma':
                if p.W & (c.srcA | c.srcB):
                    need = max(need, {4: 8, 8: 12}[n])
                if p.W & c.srcC:
                    if not (p.W == c.srcC and p.passes == c.passes):
                        need = max(need, {4: 6, 8: 10}[n])
                elif p.W & c.W:
                    need = max(need, {4: 8, 8: 12}[n])
            elif c.kind in ('valu', 'vmem', 'ds'):
                if p.W & (cr_v | cw_v):
                    need = max(need, {4: 8, 8: 12}[n])
                if p.srcC & cw_v:
                    need = max(need, {4: 3, 8: 7}[n])
        if p.kind == 'vmem' and p.wide_store and c.kind in ('valu', 'mfma', 'ds', 'vmem'):
            if p.srcA & cw_v:
                need = max(need, 2)
        if p.kind == 'salu' and ('s', 124) in p.W and (c.lds_dma or 'addtid' in c.mn):
            need = max(need, 1)
        if p.kind == 'salu' and pw_s & regs_of('exec') and c.kind == 'valu' and c.dpp:
            need = max(need, 1)
        return need

    @staticmethod
    def residual(p):
        if p.kind == 'mfma':
            return {4: 8, 8: 12}[p.passes]
        if p.kind == 'valu':
            sw = {r for r in p.W if r[0] == 's'}
            if sw and sw <= regs_of('vcc'):
                return 2
            if sw:
                return 5
            return 2 if p.W else 0
        if p.kind == 'vmem' and p.wide_store:
            return 2
        if p.kind == 'salu' and ('s', 124) in p.W:
            return 1
        return 0

    def insert_nops(self):
        out = []
        hist = []
        for i in self.ins:
            if i.kind == 'dir':
                out.append(i)
                continue
            need = 0
            if i.kind == 'label' or (i.is_branch and not i.mn.startswith('s_endpgm')):
                extra = 1 if i.kind != 'label' else 0
                for p, d in hist:
                    need = max(need, self.residual(p) - d - extra)
            else:
                for p, d in hist:
                    need = max(need, self.required(p, i) - d)
            while need > 0:
                k = min(need, 16)
                out.append(Ins('s_nop %d' % (k - 1)))
                hist = [(p, d + k) for p, d in hist]
                need -= k
            out.append(i)
            if i.kind == 'label':
                hist = []
                continue
            step = 1
            if i.mn == 's_nop':
                step = int(i.ops[0]) + 1
            hist = [(p, d + step) for p, d in hist if d + step < 24]
            hist.append((i, 0))
        self.ins = out

    VOP3_MN = ('v_fma_f32', 'v_perm_b32', 'v_cvt_pk_bf16_f32', 'v_lshl_add_u32', 'v_lshl_or_b32', 'v_bfe_u32',
               'v_or3_b32', 'v_dot2_f32_bf16', 'v_readlane_b32', 'v_writelane_b32', 'v_mul_lo_u32', 'v_and_or_b32',
               'v_accvgpr_write_b32', 'v_accvgpr_read_b32', 'v_add3_u32', 'v_mad_u32_u24')

    @classmethod
    def issue_cost(cls, i):
        if i.kind == 'mfma':
            return 8
        if i.kind == 'valu':
            if i.trans or i.mn.startswith('v_permlane'):
                return 8
            if i.mn.startswith('v_pk_') or i.mn in cls.VOP3_MN or i.dpp or ' -v' in i.text or '0x' in i.text:
                return 5
            return 4
        if i.mn == 's_nop':
            return 4 * (int(i.ops[0]) + 1)
        if i.kind == 'ds':
            if i.mn.startswith('ds_write'):
                return 28 if 'b128' in i.mn else (20 if 'b64' in i.mn else 16)
            return 12 if 'b128' in i.mn else 8
        if i.kind == 'vmem':
            if '_load' in i.mn:
                return 12
            return 48 if 'x4' in i.mn else 16
        return 4

    @staticmethod
    def lds_cost(i):
        if i.mn.startswith('ds_write'):
            return 52 if 'b128' in i.mn else (24 if 'b64' in i.mn else 16)
        return 16 if 'b128' in i.mn else 8

    @classmethod
    def latency(cls, p, c, raw):
        base = cls.issue_cost(p)
        ws = cls.required(p, c)
        lat = base + 4 * ws
        if raw:
            if p.kind == 'mfma':
                if c.kind == 'mfma' and p.W == c.srcC:
                    lat = max(lat, 16)
                else:
                    lat = max(lat, 36)
            elif p.kind == 'ds':
                lat = max(lat, 128)
            elif p.kind == 'vmem':
                lat = max(lat, 1500)
            elif p.kind == 'smem':
                lat = max(lat, 300)
        return lat

    def schedule_block(self, blk):
        n = len(blk)
        if n < 3:
            return blk
        preds = [dict() for _ in range(n)]
        lastw, readers = {}, {}
        last_salu = last_vmem = last_ldsw = None
        lds_since = []
        for j, c in enumerate(blk):
            def dep(i_, raw):
                if i_ is None or i_ == j:
                    return
                l = self.latency(blk[i_], c, raw)
                preds[j][i_] = max(preds[j].get(i_, 0), l)
            for r in c.R:
                dep(lastw.get(r), True)
            for r in c.W:
                dep(lastw.get(r), False)
                for i_ in readers.get(r, []):
                    dep(i_, False)
            if c.kind in ('salu', 'smem'):
                dep(last_salu, False)
                last_salu = j
            if c.kind == 'vmem':
                dep(last_vmem, False)
                last_vmem = j
            if c.kind == 'ds':
                if c.W and not c.mn.startswith('ds_write'):
                    dep(last_ldsw, False)
                    lds_since.append(j)
                else:
                    dep(last_ldsw, False)
                    for i_ in lds_since:
                        dep(i_, False)
                    last_ldsw = j
                    lds_since = []
            for r in c.R:
                readers.setdefault(r, []).append(j)
            for r in c.W:
                lastw[r] = j
                readers[r] = []
        succs = [[] for _ in range(n)]
        for j in range(n):
            for i_, l in preds[j].items():
                succs[i_].append((j, l))
        prio = [0] * n
        for i_ in range(n - 1, -1, -1):
            prio[i_] = max([l + prio[j] for j, l in succs[i_]] + [self.issue_cost(blk[i_])])
            if blk[i_].kind == 'vmem':
                prio[i_] += 100000
        left = [len(preds[j]) for j in range(n)]
        earliest = [0] * n
        ready = [j for j in range(n) if left[j] == 0]
        t = 0
        mfma_free = 0
        lds_free = 0
        vm_free = 0
        order = []
        while ready:
            best, bkey = None, None
            for j in ready:
                c = blk[j]
                st = max(t, earliest[j])
                if c.kind == 'mfma':
                    st = max(st, mfma_free)
                elif c.mn.startswith('v_pk_'):
                    st = max(st, mfma_free)
                elif c.kind == 'ds':
                    st = max(st, lds_free - 64)
                elif c.kind == 'vmem':
                    st = max(st, vm_free)
                pr = prio[j]
                key = (st if st > t else t, -pr, j)
                if bkey is None or key < bkey:
                    best, bkey = j, key
            j = best
            c = blk[j]
            st = bkey[0]
            order.append(c)
            ready.remove(j)
            t = st + self.issue_cost(c)
            if c.kind == 'mfma':
                mfma_free = st + 16
            elif c.mn.startswith('v_pk_'):
                mfma_free = max(mfma_free, t)
            elif c.kind == 'ds':
                lds_free = max(lds_free, st) + self.lds_cost(c)
            elif c.kind == 'vmem':
                vm_free = st + (64 if 'x4' in c.mn else 24)
            for j2, l in succs[j]:
                earliest[j2] = max(earliest[j2], st + l)
                left[j2] -= 1
                if left[j2] == 0:
                    ready.append(j2)
        assert len(order) == n
        self.sched_cycles += t
        return order

    def schedule(self):
        out, blk = [], []
        self.sched_cycles = 0
        for i in self.ins:
            fence = (i.kind in ('label', 'dir') or i.is_branch or i.nosched or
                     i.mn in ('s_barrier', 's_waitcnt', 's_nop', 's_endpgm', 's_getpc_b64', 's_memrealtime', 's_sleep')
                     or 'saveexec' in i.mn or ('s', 126) in i.W or ('s', 124) in i.W)
            if fence:
                out += self.schedule_block(blk)
                blk = []
                out.append(i)
            else:
                blk.append(i)
        out += self.schedule_block(blk)
        self.ins = out

    def finish(self, sched=False):
        if sched:
            self.schedule()
        self.insert_waits()
        self.insert_nops()
        lines = []
        for i in self.ins:
            lines.append(i.text if i.kind in ('label', 'dir') else '    ' + i.text)
        return '\n'.join(lines) + '\n'

    def count(self):
        return sum(1 for i in self.ins if i.kind not in ('label', 'dir'))


class Regs:
    def __init__(self, prefix, first, limit):
        self.p, self.limit = prefix, limit
        self.used = set(range(first))
        self.hi = first

    def alloc(self, n=1, align=None):
        if align is None:
            align = 1 if n == 1 else (2 if self.p == 'v' else (2 if n == 2 else 4))
        b = 0
        while True:
            b = (b + align - 1) // align * align
            if all((b + k) not in self.used for k in range(n)):
                break
            b += 1
        if b + n > self.limit:
            raise RuntimeError('out of %s registers' % self.p)
        self.used |= set(range(b, b + n))
        self.hi = max(self.hi, b + n)
        return Reg(self.p, b, n)

    def free(self, *rs):
        for r in rs:
            self.used -= set(range(r.b, r.b + r.n))


class Reg:
    def __init__(self, p, b, n):
        self.p, self.b, self.n = p, b, n

    def __str__(self):
        return '%s%d' % (self.p, self.b) if self.n == 1 else '%s[%d:%d]' % (self.p, self.b, self.b + self.n - 1)

    def __getitem__(self, k):
        if isinstance(k, slice):
            st = k.start or 0
            en = self.n if k.stop is None else k.stop
            assert 0 <= st < en <= self.n, (st, en, self.n)
            return Reg(self.p, self.b + st, en - st)
        assert 0 <= k < self.n, (k, self.n)
        return Reg(self.p, self.b + k, 1)

    def __format__(self, spec):
        return str(self)
```

```python
import numpy as np

lane = np.arange(64)
N16 = lane & 15
G4 = lane >> 4


def bf16_bits(x):
    u = np.asarray(x, dtype=np.float32).view(np.uint32)
    return ((u + 0x7FFF + ((u >> 16) & 1)) >> 16).astype(np.uint32)


def pk(lo, hi):
    return bf16_bits(lo) | (bf16_bits(hi) << 16)


def f32(x):
    return np.asarray(x, dtype=np.float32).view(np.uint32)


def cs(num, den):
    a = np.asarray(num, dtype=np.float64) / den
    a = a - np.floor(a)
    c, s = np.cos(2 * np.pi * a), np.sin(2 * np.pi * a)
    c[np.abs(c) < 1e-12] = 0.0
    s[np.abs(s) < 1e-12] = 0.0
    return c, s


def blocks(lane_idx, slot0, den):
    c, s = zip(*[cs(lane_idx * (slot0 + j), den) for j in range(4)])
    C = [pk(c[0], c[1]), pk(c[2], c[3])]
    S = [pk(s[0], s[1]), pk(s[2], s[3])]
    nS = [pk(-s[0], -s[1]), pk(-s[2], -s[3])]
    return C + S + C + nS + C


def rf_kt(kt):
    k1 = 16 * kt + N16
    dh = [4 * G4 + j if j < 4 else 16 + 4 * G4 + (j - 4) for j in range(8)]
    c, s = zip(*[cs(dh[j] * k1, 32) for j in range(8)])
    regs = [pk(c[2 * p], c[2 * p + 1]) for p in range(4)] + [pk(-s[2 * p], -s[2 * p + 1]) for p in range(4)]
    tw = [cs((4 * G4 + r) * k1, 512) for r in range(4)]
    return regs + [f32(t[0]) for t in tw] + [f32(t[1]) for t in tw]


def rf_a2():
    k2, cq = N16 >> 1, N16 & 1
    v = [cs((4 * G4 + j) * k2 + 4 * cq, 16) for j in range(4)]
    return [pk(v[0][0], v[1][0]), pk(v[2][0], v[3][0]), pk(v[0][1], v[1][1]), pk(v[2][1], v[3][1])]


def g32():
    return sum([blocks(16 * t + N16, 16 * q + 4 * G4, 32) for t in range(2) for q in range(2)], [])


def ri_common():
    H = sum([blocks(16 * nt + N16, 4 * G4, 32) for nt in range(2)], [])
    v = [cs((4 * G4 + j) * N16, 16) for j in range(4)]
    A2 = [pk(v[0][0], v[1][0]), pk(v[2][0], v[3][0]), pk(-v[0][1], -v[1][1]), pk(-v[2][1], -v[3][1])]
    tw = []
    for nt in range(2):
        t = [cs((4 * G4 + r) * (16 * nt + N16), 512) for r in range(4)]
        tw += [f32(x[0]) for x in t] + [f32(x[1]) for x in t]
    return H + A2 + tw


def f64(w):
    return sum([blocks(16 * w + N16, 16 * q + 4 * G4, 64) for q in range(4)], [])


def tw(w, shift4):
    fc, fs, ic, is_ = [], [], [], []
    for mt in range(2):
        for r in range(4):
            c, s = cs((16 * mt + 4 * G4 + r) * (4 * (16 * w + N16) - shift4), 8192)
            fc.append(f32(c))
            fs.append(f32(s))
    for nt in range(2):
        for r in range(4):
            c, s = cs((16 * nt + N16) * (4 * (16 * w + 4 * G4 + r) - shift4), 8192)
            ic.append(f32(c))
            is_.append(f32(s))
    return fc + fs + ic + is_


def fcs(w):
    out = []
    for q in range(2):
        v = [cs((32 * q + 8 * G4 + j) * (4 * (16 * w + N16) - 1), 256) for j in range(8)]
        out += [pk(v[2 * p][0], v[2 * p + 1][0]) for p in range(4)] + [pk(-v[2 * p][1], -v[2 * p + 1][1]) for p in range(4)]
    return out


def i2(w):
    out = []
    for kq in range(4):
        v = [cs((16 * w + N16) * (4 * (16 * kq + 4 * G4 + j) - 1), 256) for j in range(4)]
        out += [pk(v[0][0], v[1][0]), pk(v[2][0], v[3][0]), pk(-v[0][1], -v[1][1]), pk(-v[2][1], -v[3][1])]
    return out


def ke_index(q):
    regs = []
    for mt in range(2):
        idx = []
        for j in range(8):
            t_ = 16 * mt + N16 + 32 * (32 * q + 8 * G4 + j)
            th = (bf16_bits(t_.astype(np.float32)) << 16).astype(np.uint32).view(np.float32).astype(np.int64)
            idx.append(np.where(th < 512, th, 384 + th // 4) * 2)
        regs += [(idx[2 * p] | (idx[2 * p + 1] << 16)).astype(np.uint32) for p in range(4)]
    return regs


def chunks(regs):
    regs = [np.asarray(r, dtype=np.uint32) for r in regs]
    assert len(regs) % 4 == 0
    return np.stack([np.stack(regs[i:i + 4], axis=1) for i in range(0, len(regs), 4)])


COMMON = ('rfa2', 4), ('g', 40), ('rih', 20), ('ria2', 4), ('ritw', 16)
PERKT = (('rfb1', 8), ('rftw', 8))
PERW = (('f', 40), ('tw0', 32), ('fcs', 16), ('i2', 16), ('tw1', 32))


def build():
    common = chunks(rf_a2() + g32() + ri_common())
    perkt = [chunks(rf_kt(kt) + ke_index(kt)) for kt in range(2)]
    perw = [chunks(f64(w) + tw(w, 0) + fcs(w) + i2(w) + tw(w, 1)) for w in range(4)]
    return common, perkt, perw


def emit():
    common, perkt, perw = build()
    data = np.concatenate([common.reshape(-1)] + [p.reshape(-1) for p in perkt] + [p.reshape(-1) for p in perw])
    q = data.view(np.uint64)
    lines = []
    for i in range(0, len(q), 16):
        lines.append('.quad ' + ','.join(('0x%x' % int(x)) if x else '0' for x in q[i:i + 16]))
    offs = dict(common=0, perkt=common.nbytes, perkt_stride=perkt[0].nbytes,
                perw=common.nbytes + 2 * perkt[0].nbytes, perw_stride=perw[0].nbytes, total=data.nbytes)
    return '\n'.join(lines) + '\n', offs


if __name__ == '__main__':
    t, o = emit()
    print(len(t), o)
```

```python
import struct
import sys
from common import *
import gen
import tables
from gen import fhex, ROWLANE, pack4, op_CS, op_SC, op_CnS, op_nSC

X1_B, Z_B, U_B, Y_B = 0x0000000, 0x0400000, 0x0800000, 0x0C00000
IT_STRIDE = 0x200000
WT_B, WT_BLK = 0x1000000, 8256
FL_B = 0x1400000
WS_USED = 0x1500000
TS_OFF = 0x2000000
OOB = 0x7FFFFFF0
SPIN_MAX = 1 << 15

L_XL = 0
L_IMG = 8192
L_XCH = 16384
L_WIM = 32768
L_WST = L_WIM
L_QX = L_WIM - 64
L_K = 49152
KG_ROW = 528
KG_CH = 96 * KG_ROW
L_KX = L_K + 2 * KG_CH
L_KOP = L_K
LDS_BYTES = L_KX + 4096

OPT = dict(stamps=False, prefetch=True, sched=True, ackfirst=True, latefill=True, depth=1, sleep=0, presleep=0,
           windows={'1a': ['T2', 'KP', 'KT0'], '1b': ['T3'], '2p': ['T4', 'KT1'], '2': ['BAR', 'KM'], '3p': ['KE'], '3': ['BAR', 'KX']})


class PK(gen.K):
    def __init__(self, name):
        super().__init__(name, 256, vlimit=256)
        self.A = Regs('a', 0, 256)
        self.S = Regs('s', 4, 102)
        self.stamp_names = []

    def stamp(self, name='', wait=None):
        if not OPT['stamps']:
            return
        if wait:
            self(wait)
        self.stamp_names.append(name)
        t = self.s_tmp2
        self(f"s_memrealtime {t}")
        self("s_waitcnt lgkmcnt(0)")
        self(f"v_writelane_b32 {self.v_ts}, {t[0]}, m0")
        self("s_add_u32 m0, m0, 1")


def build():
    k = PK(KN)
    ttext, toff = tables.emit()
    k("s_cmp_ge_u32 s2, 256")
    k("s_cbranch_scc1 L_end")
    ptr = {}
    big = k.s(16, 4)
    big2 = k.s(8, 4)
    tail = k.s(4, 4)
    k(f"s_load_dwordx16 {big}, s[0:1], 0")
    k(f"s_load_dwordx8 {big2}, s[0:1], 64")
    k(f"s_load_dwordx4 {tail}, s[0:1], 96")
    ptr['ws'] = k.s(2)
    k(f"s_load_dwordx2 {ptr['ws']}, s[0:1], 112")
    for i, nm in enumerate(['A_x', 'A_w_r', 'A_w_i', 'B_u', 'B_A_re', 'B_A_im', 'B_B_re', 'B_B_im']):
        ptr[nm] = big[2 * i:2 * i + 2]
    for i, nm in enumerate(['B_C_re', 'B_C_im', 'B_log_dt', 'B_Dskip']):
        ptr[nm] = big2[2 * i:2 * i + 2]
    ptr['out'], ptr['debug'] = tail[0:2], tail[2:4]
    lane, n, g = k.v(), k.v(), k.v()
    wv = k.s()
    tv = k.v()
    k(f"v_lshrrev_b32 {tv}, 6, v0")
    k(f"v_and_b32 {lane}, 63, v0")
    k(f"v_readfirstlane_b32 {wv}, {tv}")
    k(f"v_and_b32 {n}, 15, v0")
    k(f"v_lshrrev_b32 {g}, 4, {lane}")
    Lid, t0, t1, t2 = k.s(), k.s(), k.s(), k.s()
    k(f"s_and_b32 {Lid}, s2, 7")
    k(f"s_lshl_b32 {Lid}, {Lid}, 5")
    k(f"s_lshr_b32 {t0}, s2, 3")
    k(f"s_add_u32 {Lid}, {Lid}, {t0}")
    bs, a8, it = k.s(), k.s(), k.s()
    k(f"s_and_b32 {bs}, {Lid}, 31")
    k(f"s_lshr_b32 {a8}, {Lid}, 5")
    k(f"s_mov_b32 {it}, 0")
    rg, kt, w16 = k.s(), k.s(), k.s()
    k(f"s_lshr_b32 {rg}, {wv}, 1")
    k(f"s_and_b32 {kt}, {wv}, 1")
    k(f"s_lshl_b32 {w16}, {wv}, 4")
    nonce = k.s()
    pc = k.s(2)
    k(f"s_getpc_b64 {pc}")
    k("L_pc_here:", manual=True)
    tb = k.s(2)
    k(f"s_add_u32 {tb[0]}, {pc[0]}, L_tables-L_pc_here")
    k(f"s_addc_u32 {tb[1]}, {pc[1]}, 0")
    vl16 = k.v()
    k(f"v_lshlrev_b32 {vl16}, 4, {lane}")
    if OPT['stamps']:
        k.s_tmp2, k.v_ts = k.s(2), k.v()
        k("s_mov_b32 m0, 0")
        k(f"v_mov_b32 {k.v_ts}, 0")
        k.stamp('entry')

    ACC = k.A.alloc(84 + 16 + 136, 4)
    cm, pk_, pw = ACC[0:84], ACC[84:100], ACC[100:236]
    RFA2, Gall, RIH, RIA2, RItw = cm[0:4], cm[4:44], cm[44:64], cm[64:68], cm[68:84]
    G = [[Gall[10 * (2 * t + q):10 * (2 * t + q) + 10] for q in range(2)] for t in range(2)]
    H = [RIH[0:10], RIH[10:20]]
    RFB1, RFtw = pk_[0:8], pk_[8:16]
    Fall, TW0a, FCSall, I2all, TW1a = pw[0:40], pw[40:72], pw[72:88], pw[88:104], pw[104:136]
    F = [Fall[10 * q:10 * q + 10] for q in range(4)]
    FC = [FCSall[8 * q:8 * q + 4] for q in range(2)]
    FS = [FCSall[8 * q + 4:8 * q + 8] for q in range(2)]
    I2 = [I2all[4 * q:4 * q + 4] for q in range(4)]
    WQa = k.A.alloc(16, 2)
    tbase = {'common': k.s(2), 'perkt': k.s(2), 'perw': k.s(2)}
    k(f"s_mov_b32 {tbase['common'][0]}, {tb[0]}")
    k(f"s_mov_b32 {tbase['common'][1]}, {tb[1]}")
    k(f"s_mul_i32 {t0}, {kt}, {toff['perkt_stride']}")
    k(f"s_add_u32 {t0}, {t0}, {toff['perkt']}")
    k(f"s_add_u32 {tbase['perkt'][0]}, {tb[0]}, {t0}")
    k(f"s_addc_u32 {tbase['perkt'][1]}, {tb[1]}, 0")
    k(f"s_mul_i32 {t0}, {wv}, {toff['perw_stride']}")
    k(f"s_add_u32 {t0}, {t0}, {toff['perw']}")
    k(f"s_add_u32 {tbase['perw'][0]}, {tb[0]}, {t0}")
    k(f"s_addc_u32 {tbase['perw'][1]}, {tb[1]}, 0")
    k.S.free(tb)

    HELD = []

    def release():
        k.V.free(*HELD)
        del HELD[:]

    def tload(sec, regs, first_reg):
        c0 = first_reg // 4
        vt_ = {}
        for i in range(regs.n // 4):
            byte = (c0 + i) * 1024
            hi, lo = byte // 4096 * 4096, byte % 4096
            if hi not in vt_:
                vt_[hi] = k.v()
                k(f"v_add_u32 {vt_[hi]}, {hi}, {vl16}")
            k(f"global_load_dwordx4 {regs[4 * i:4 * i + 4]}, {vt_[hi]}, {tbase[sec]} offset:{lo}")
        HELD.extend(vt_.values())

    tload('common', RFA2, 0)
    tload('perkt', pk_, 0)
    release()
    k("s_waitcnt lgkmcnt(0)")
    sws = k.srd(ptr['ws'], 0, WS_USED)
    scr = k.s(4)

    def scratch_srd(nm, size):
        k(f"s_mov_b32 {scr[0]}, {ptr[nm][0]}")
        k(f"s_mov_b32 {scr[1]}, {ptr[nm][1]}")
        k(f"s_mov_b32 {scr[2]}, {hex(size)}")
        k(f"s_mov_b32 {scr[3]}, 0x20000")
        return scr
    k.stamp('kernarg')

    XR = [k.v(4, 2) for _ in range(2)]
    va = k.v()
    sx = scratch_srd('A_x', 2048 * 512 * 2)
    k(f"s_lshl_b32 {t0}, {a8}, 8")
    k(f"s_add_u32 {t0}, {t0}, {bs}")
    k(f"s_lshl_b32 {t1}, {wv}, 5")
    k(f"s_add_u32 {t0}, {t0}, {t1}")
    k(f"s_lshl_b32 {t0}, {t0}, 10")
    k(f"s_add_u32 {t1}, {t0}, {4 * 32 * 1024}")
    k(f"buffer_load_dwordx4 {XR[0]}, {vl16}, {sx}, {t0} offen")
    k(f"buffer_load_dwordx4 {XR[1]}, {vl16}, {sx}, {t1} offen")
    sd = scratch_srd('debug', 256)
    k("s_cmp_lg_u32 s2, 0")
    k("s_cbranch_scc1 L_nonce_done", manual=True)
    k(f"s_cmp_lg_u32 {wv}, 0")
    k("s_cbranch_scc1 L_nonce_done", manual=True)
    tm = k.s(2)
    k(f"s_memrealtime {tm}")
    k("s_waitcnt lgkmcnt(0)")
    k(f"s_or_b32 {tm[0]}, {tm[0]}, 1")
    vz = k.v()
    k(f"v_mov_b32 {vz}, {tm[0]}")
    k(f"v_mov_b32 {va}, {hex(OOB)}")
    k(f"v_cmp_eq_u32 vcc, 0, {lane}")
    k(f"v_cndmask_b32 {va}, {va}, 0, vcc")
    k(f"buffer_store_dword {vz}, {va}, {sd}, 0 offen sc1")
    k("s_nop 1")
    k("L_nonce_done:", manual=True)
    k.S.free(tm)
    k.V.free(vz)
    Wraw = [[k.v() for _ in range(2)] for _ in range(8)]
    wb = k.s()
    k(f"s_lshr_b32 {t0}, {Lid}, 6")
    k(f"s_lshl_b32 {t0}, {t0}, 9")
    k(f"s_and_b32 {t1}, {Lid}, 63")
    k(f"s_add_u32 {wb}, {t0}, {t1}")
    k(f"s_mul_i32 {wb}, {wb}, 514")
    vin, vny, vnm = k.v(), k.v(), k.v()
    k(f"v_lshlrev_b32 {vin}, 1, v0")
    ksb = k.s()
    k(f"s_add_u32 {ksb}, {t0}, {t1}")
    k(f"v_lshlrev_b32 {vny}, 6, v0")
    k(f"v_add_u32 {vny}, {ksb}, {vny}")
    k(f"v_sub_u32 {vnm}, 2048, {vny}")
    k(f"v_and_b32 {vnm}, 2047, {vnm}")
    k(f"v_mul_u32_u24 {vny}, 514, {vny}")
    k(f"v_mul_u32_u24 {vnm}, 514, {vnm}")
    k(f"v_mov_b32 {tv}, {hex(OOB)}")
    k(f"v_cmp_gt_u32 vcc, 8, v0")
    k(f"v_cndmask_b32 {vny}, {tv}, {vny}, vcc")
    k(f"v_cndmask_b32 {vnm}, {tv}, {vnm}, vcc")
    k.S.free(ksb)
    wo = [k.s() for _ in range(8)]
    for rho in range(8):
        k(f"s_add_u32 {wo[rho]}, {wb}, {rho * 64 * 514}")
    WE = {}
    for c, nm in ((0, 'A_w_r'), (1, 'A_w_i')):
        sr = scratch_srd(nm, 2048 * 257 * 2)
        for rho in range(8):
            k(f"buffer_load_ushort {Wraw[rho][c]}, {vin}, {sr}, {wo[rho]} offen")
        for nm2, vv, off in (('a', vny, 0), ('b', vny, 512), ('ar', vnm, 0), ('br', vnm, 512)):
            WE[nm2, c] = k.v()
            k(f"buffer_load_ushort {WE[nm2, c]}, {vv}, {sr}, 0 offen offset:{off}")
    k.V.free(vin, vny, vnm)
    k.S.free(wb, *wo)
    par = {}
    k(f"s_lshl_b32 {t0}, {Lid}, 9")
    k(f"s_lshl_b32 {t1}, {rg}, 8")
    k(f"s_add_u32 {t0}, {t0}, {t1}")
    k(f"v_lshlrev_b32 {va}, 2, {lane}")
    for nm in ('B_A_re', 'B_A_im', 'B_B_re', 'B_B_im', 'B_C_re', 'B_C_im'):
        sr = scratch_srd(nm, 512 * 128 * 2)
        par[nm] = k.v()
        k(f"buffer_load_dword {par[nm]}, {va}, {sr}, {t0} offen")
    sr = scratch_srd('B_log_dt', 1024)
    ld = k.v()
    k(f"s_lshl_b32 {t1}, {Lid}, 2")
    k(f"s_lshl_b32 {t0}, {rg}, 1")
    k(f"s_add_u32 {t0}, {t0}, {t1}")
    k(f"v_mov_b32 {va}, 0")
    k(f"buffer_load_ushort {ld}, {va}, {sr}, {t0} offen")
    dsk = k.s()
    k(f"s_load_dword {dsk}, {ptr['B_Dskip']}, {t1}")
    PF = [k.v(4, 2), k.v(4, 2)]
    k(f"s_lshr_b32 {t0}, s2, 3")
    k(f"s_lshl_b32 {t0}, {t0}, 2")
    k(f"s_add_u32 {t0}, {t0}, {wv}")
    k(f"s_lshl_b32 {t0}, {t0}, 11")
    k(f"s_min_u32 {t0}, {t0}, L_tables_end-L_pc_here-2048")
    k(f"v_add_u32 {va}, {t0}, {vl16}")
    k(f"global_load_dwordx4 {PF[0]}, {va}, {pc}")
    k(f"global_load_dwordx4 {PF[1]}, {va}, {pc} offset:1024")
    k.S.free(pc)
    k.V.free(va)
    k.stamp('ldissue')

    TWV = k.v(32, 2)
    TW = [[TWV[8 * i + 4 * j:8 * i + 4 * j + 4] for j in range(2)] for i in range(4)]
    WP = [k.v(8, 2) for _ in range(2)]
    KF = [[k.v(4, 2) for _ in range(2)] for _ in range(2)]
    GL = PF
    SENT = k.v(4, 2)
    for i in range(4):
        k(f"v_mov_b32 {SENT[i]}, -1")
    dcm, sgn = k.v(), k.v()
    k(f"s_lshl_b32 {t1}, {kt}, 4")
    k(f"v_add_u32 {dcm}, {t1}, {n}")
    k(f"v_lshl_add_u32 {dcm}, {dcm}, 2, {g}")
    k(f"v_cmp_eq_u32 vcc, 0, {dcm}")
    k(f"v_cndmask_b32 {dcm}, 0, 1.0, vcc")
    k(f"v_lshlrev_b32 {sgn}, 31, {n}")
    vUl, vG, vzo = k.v(), k.v(), k.v()
    k(f"v_lshlrev_b32 {vUl}, 4, v0")
    k(f"v_lshrrev_b32 {vG}, 1, v0")
    k(f"v_lshlrev_b32 {vG}, 13, {vG}")
    k(f"v_and_b32 {tv}, 1, v0")
    k(f"v_lshl_add_u32 {vG}, {tv}, 4, {vG}")
    g1, g2 = k.v(), k.v()
    k(f"v_and_b32 {g1}, 1, {g}")
    k(f"v_lshrrev_b32 {g2}, 1, {g}")
    k(f"v_lshlrev_b32 {vzo}, 10, {g2}")
    k(f"v_lshl_add_u32 {vzo}, {n}, 5, {vzo}")
    k(f"v_lshl_add_u32 {vzo}, {g1}, 4, {vzo}")
    vRFr, vRFs, vCAo, vXw, vRIz, vRIx, vCBi, vCBo, vCBe = [k.v() for _ in range(9)]
    k(f"v_lshlrev_b32 {vRFr}, 10, {g}")
    k(f"v_lshl_add_u32 {vRFr}, {n}, 4, {vRFr}")
    k(f"s_lshl_b32 {t0}, {rg}, 3")
    k(f"v_add_u32 {vRFr}, {t0}, {vRFr}")
    k(f"v_lshl_add_u32 {vRFs}, {g}, 6, {n}")
    k(f"s_lshl_b32 {t0}, {kt}, 4")
    k(f"v_add_u32 {vRFs}, {t0}, {vRFs}")
    k(f"v_lshlrev_b32 {vRFs}, 5, {vRFs}")
    k(f"s_lshl_b32 {t0}, {rg}, 4")
    k(f"v_add_u32 {vRFs}, {t0}, {vRFs}")
    k(f"v_lshl_add_u32 {vCAo}, {g2}, 5, {n}")
    k(f"v_lshlrev_b32 {vCAo}, 5, {vCAo}")
    k(f"v_lshl_add_u32 {vCAo}, {g1}, 4, {vCAo}")
    k(f"s_lshl_b32 {t0}, {wv}, 11")
    k(f"v_add_u32 {vXw}, {t0}, {vl16}")
    k(f"v_lshlrev_b32 {vRIz}, 11, {g}")
    k(f"v_lshl_add_u32 {vRIz}, {n}, 5, {vRIz}")
    k(f"s_lshl_b32 {t0}, {wv}, 3")
    k(f"v_add_u32 {vRIz}, {t0}, {vRIz}")
    k(f"v_lshlrev_b32 {vRIx}, 11, {g}")
    k(f"v_lshl_add_u32 {vRIx}, {n}, 4, {vRIx}")
    k(f"s_lshl_b32 {t0}, {wv}, 2")
    k(f"v_add_u32 {vRIx}, {t0}, {vRIx}")
    k(f"v_lshrrev_b32 {vCBi}, 1, v0")
    k(f"v_lshlrev_b32 {vCBi}, 4, {vCBi}")
    k(f"v_and_b32 {tv}, 1, v0")
    k(f"v_lshl_add_u32 {vCBi}, {tv}, 12, {vCBi}")
    k(f"v_lshlrev_b32 {vCBo}, 9, {g}")
    k(f"v_lshl_add_u32 {vCBo}, {n}, 4, {vCBo}")
    k(f"v_lshlrev_b32 {vCBe}, 9, {g2}")
    k(f"v_lshl_add_u32 {vCBe}, {n}, 4, {vCBe}")
    k(f"v_lshl_add_u32 {vCBe}, {g1}, 3, {vCBe}")
    k(f"s_lshl_b32 {t0}, {wv}, 10")
    k(f"v_add_u32 {vCBe}, {t0}, {vCBe}")
    k.V.free(g1, g2)
    slo, shi, smask, sones = k.s(), k.s(), k.s(), k.s()
    k(f"s_mov_b32 {slo}, 0x05040100")
    k(f"s_mov_b32 {shi}, 0x07060302")
    k(f"s_mov_b32 {smask}, 0xffff0000")
    k(f"s_mov_b32 {sones}, 0x3f803f80")
    sblk, sblkw, sslot = k.s(), k.s(), k.s()
    k(f"s_lshl_b32 {sblk}, {Lid}, 13")
    k(f"s_lshl_b32 {t0}, {wv}, 11")
    k(f"s_add_u32 {sblkw}, {sblk}, {t0}")
    k(f"s_lshl_b32 {sslot}, {Lid}, 5")
    ds2 = [k.s(2), k.s(2)]
    k(f"s_lshl_b32 {ds2[0][0]}, {dsk}, 16")
    k(f"s_and_b32 {ds2[1][0]}, {dsk}, 0xffff0000")
    k.S.free(dsk)
    sga, sgb, sfa, sfb, ssa, ssb = [k.s() for _ in range(6)]
    uid = [0]
    npoll = [0]

    def unpack2(pair, dw):
        k(f"v_lshlrev_b32 {pair[0]}, 16, {dw}")
        k(f"v_and_b32 {pair[1]}, {smask}, {dw}")

    def load_tw(acc):
        for i in range(acc.n):
            k(f"v_accvgpr_read_b32 {TWV[i]}, {acc[i]}")

    def set_offsets(gbase, fbase, sbase, wave_store):
        if gbase is not None:
            k(f"s_add_u32 {sga}, {sslot}, {gbase}")
            k(f"s_add_u32 {sgb}, {sga}, {128 * 8192}")
        if fbase is not None:
            k(f"s_add_u32 {sfa}, {sblk}, {fbase}")
            k(f"s_add_u32 {sfb}, {sfa}, 4096")
        if sbase is not None:
            k(f"s_add_u32 {ssa}, {sblkw if wave_store else sblk}, {sbase}")
            if not wave_store:
                k(f"s_add_u32 {ssb}, {ssa}, 4096")

    def fill():
        k(f"buffer_store_dwordx4 {SENT}, {vUl}, {sws}, {sfa} offen sc1")
        k(f"buffer_store_dwordx4 {SENT}, {vUl}, {sws}, {sfb} offen sc1")

    def gather_issue(first=False):
        if first and OPT['ackfirst']:
            k("s_waitcnt vmcnt(0)")
        if first and OPT['presleep']:
            k(f"s_sleep {OPT['presleep']}")
        k(f"buffer_load_dwordx4 {GL[0]}, {vG}, {sws}, {sga} offen sc1")
        k(f"buffer_load_dwordx4 {GL[1]}, {vG}, {sws}, {sgb} offen sc1")

    def gather_check():
        u = uid[0]
        uid[0] += 1
        x = k.v()
        depth = OPT['depth']
        k(f"s_mov_b32 {t2}, {SPIN_MAX}")
        for d in range(depth - 1):
            if OPT['sleep']:
                k(f"s_sleep {OPT['sleep']}")
            k(".forget_vm")
            gather_issue()
        k(f"L_chk{u}:", manual=True)
        k(f"s_waitcnt vmcnt({2 * (depth - 1)})")
        k(".forget_vm")
        k(f"v_max3_u32 {x}, {GL[0][0]}, {GL[0][1]}, {GL[0][2]}")
        k(f"v_max3_u32 {x}, {x}, {GL[0][3]}, {GL[1][0]}")
        k(f"v_max3_u32 {x}, {x}, {GL[1][1]}, {GL[1][2]}")
        k(f"v_max_u32 {x}, {x}, {GL[1][3]}")
        k(f"v_cmp_eq_u32 vcc, -1, {x}")
        k(f"s_cbranch_vccz L_ok{u}", manual=True)
        k(f"s_sub_u32 {t2}, {t2}, 1")
        k(f"s_cmp_eq_u32 {t2}, 0")
        k(f"s_cbranch_scc1 L_ok{u}", manual=True)
        gather_issue()
        k(".forget_vm")
        k(f"s_branch L_chk{u}", manual=True)
        k(f"L_ok{u}:", manual=True)
        k(".forget_vm")
        if OPT['stamps']:
            k(f"s_sub_u32 {t2}, {SPIN_MAX + 1}, {t2}")
            k(f"s_lshl_b32 {t1}, {it}, 2")
            k(f"s_add_u32 {t1}, {t1}, {48 + npoll[0]}")
            k(f"s_mov_b32 {k.s_tmp2[1]}, m0")
            k(f"s_mov_b32 m0, {t1}")
            k(f"v_writelane_b32 {k.v_ts}, {t2}, m0")
            k(f"s_mov_b32 m0, {k.s_tmp2[1]}")
            npoll[0] += 1
        k.V.free(x)

    KS = {}

    def cstep(dst, z, e, t):
        k(f"v_pk_mul_f32 {t}, {z}, {e} op_sel:[0,0] op_sel_hi:[1,0]")
        k(f"v_pk_fma_f32 {dst}, {z}, {e}, {t} op_sel:[1,1,0] op_sel_hi:[0,1,1] neg_lo:[1,0,0]")

    def kg_params():
        k(f"v_lshlrev_b32 {ld}, 16, {ld}")
        L2E = 1.4426950408889634
        hi = struct.unpack('<f', struct.pack('<I', struct.unpack('<I', struct.pack('<f', L2E))[0] & 0xFFFFFF00))[0]
        lo = L2E - hi
        dt, ta, tb_ = k.v(), k.v(), k.v()
        k(f"v_mul_f32 {ta}, {fhex(hi)}, {ld}")
        k(f"v_mul_f32 {tb_}, {fhex(lo * 0.6931471805599453)}, {ld}")
        k(f"v_exp_f32 {ta}, {ta}")
        k(f"v_fma_f32 {dt}, {ta}, {tb_}, {ta}")
        k.round_bf16(dt, dt, ta)
        slc, slr, sl0 = k.s(), k.s(), k.s()
        k(f"s_cmp_eq_u32 {kt}, 0")
        k(f"s_cselect_b32 {slc}, 1.0, 4.0")
        k(f"s_mov_b32 {slr}, {fhex(32.0)}")
        k(f"s_cselect_b32 {slr}, {slr}, {fhex(128.0)}")
        k(f"s_cselect_b32 {sl0}, 0, {fhex(512.0)}")
        Ec, Er_, zc, zr, tmps = [], [], [], [], []
        for md in range(2):
            p_ = {}
            for nm in par:
                p_[nm] = k.v()
                if md == 0:
                    k(f"v_lshlrev_b32 {p_[nm]}, 16, {par[nm]}")
                else:
                    k(f"v_and_b32 {p_[nm]}, {smask}, {par[nm]}")
            ar, ai = p_['B_A_re'], p_['B_A_im']
            br, bi = p_['B_B_re'], p_['B_B_im']
            cr, ci = p_['B_C_re'], p_['B_C_im']
            for x in (ar, ai, br, bi):
                k(f"v_mul_f32 {x}, {dt}, {x}")
            cc = k.v(2, 2)
            k(f"v_mul_f32 {cc[0]}, {cr}, {br}")
            k(f"v_mul_f32 {cc[1]}, {cr}, {bi}")
            k(f"v_fma_f32 {cc[0]}, -{ci}, {bi}, {cc[0]}")
            k(f"v_fma_f32 {cc[1]}, {ci}, {br}, {cc[1]}")
            k(f"v_mul_f32 {ar}, {fhex(L2E)}, {ar}")
            k(f"v_mul_f32 {ai}, {fhex(1 / (2 * 3.141592653589793))}, {ai}")
            es = []
            for sl in (slc, slr, sl0):
                e, x, y = k.v(2, 2), k.v(), k.v()
                k(f"v_mul_f32 {x}, {sl}, {ar}")
                k(f"v_mul_f32 {y}, {sl}, {ai}")
                k(f"v_exp_f32 {x}, {x}")
                k(f"v_fract_f32 {y}, {y}")
                k(f"v_cos_f32 {e[0]}, {y}")
                k(f"v_sin_f32 {e[1]}, {y}")
                k(f"v_mul_f32 {e[0]}, {x}, {e[0]}")
                k(f"v_mul_f32 {e[1]}, {x}, {e[1]}")
                es.append(e)
                tmps += [x, y]
            z1, z2, tp = k.v(2, 2), k.v(2, 2), k.v(2, 2)
            k(f"v_mov_b32 {z1[0]}, 1.0")
            k(f"v_mov_b32 {z1[1]}, 0")
            cstep(z2, cc, es[2], tp)
            tmps += [tp, cc, es[2]] + list(p_.values())
            Ec.append(es[0])
            Er_.append(es[1])
            zc.append(z1)
            zr.append(z2)
        vw = k.v()
        k(f"s_mul_i32 {t0}, {rg}, {KG_CH}")
        k(f"s_mul_i32 {t1}, {kt}, {48 * KG_ROW}")
        k(f"s_add_u32 {t0}, {t0}, {t1}")
        k(f"s_add_u32 {t0}, {t0}, {L_K}")
        k(f"v_lshlrev_b32 {vw}, 3, {lane}")
        k(f"v_add_u32 {vw}, {t0}, {vw}")
        k.V.free(dt, ta, tb_, ld, *tmps, *par.values())
        k.S.free(slc, slr, sl0)
        KS.update(Ec=Ec, Er=Er_, zc=zc, zr=zr, w=vw)

    def kg_tables(part):
        Ec, Er_, zc, zr, vw = KS['Ec'], KS['Er'], KS['zc'], KS['zr'], KS['w']
        tp = [k.v(2, 2) for _ in range(4)]
        pkd = [k.v(2, 2) for _ in range(6)]
        for i in range(8 * part, 8 * part + 8):
            pp = pkd[3 * (i & 1):3 * (i & 1) + 3]
            for md in range(2):
                k.pk(pp[0][md], zr[md][0], f"-{zr[md][1]}")
                k.pk(pp[1][md], zc[md][0], zc[md][1])
            k(f"ds_write_b64 {vw}, {pp[0]} offset:{i * KG_ROW}")
            k(f"ds_write_b64 {vw}, {pp[1]} offset:{(16 + 2 * i) * KG_ROW}")
            for md in range(2):
                cstep(zc[md], zc[md], Ec[md], tp[md])
                if i < 15:
                    cstep(zr[md], zr[md], Er_[md], tp[2 + md])
            for md in range(2):
                k.pk(pp[2][md], zc[md][0], zc[md][1])
            k(f"ds_write_b64 {vw}, {pp[2]} offset:{(17 + 2 * i) * KG_ROW}")
            if i < 15:
                for md in range(2):
                    cstep(zc[md], zc[md], Ec[md], tp[md])
        k.V.free(*tp, *pkd)
        if part == 1:
            k.V.free(*Ec, *Er_, *zc, *zr, vw)

    def kg_matmul():
        ch, blkid = rg, kt
        k(f"s_mul_i32 {t0}, {ch}, {KG_CH}")
        k(f"s_mul_i32 {t1}, {blkid}, {48 * KG_ROW}")
        k(f"s_add_u32 {t0}, {t0}, {t1}")
        k(f"s_add_u32 {t0}, {t0}, {L_K}")
        vr = k.v()
        k(f"v_mul_u32_u24 {vr}, {KG_ROW}, {n}")
        k(f"v_lshl_add_u32 {vr}, {g}, 4, {vr}")
        k(f"v_add_u32 {vr}, {t0}, {vr}")
        D = [k.v(4, 2) for _ in range(2)]
        bufs = [[k.v(4, 2) for _ in range(3)] for _ in range(4)]
        for ks in range(8):
            Ar, B0, B1 = bufs[ks % 4]
            k(f"ds_read_b128 {Ar}, {vr} offset:{ks * 64}")
            k(f"ds_read_b128 {B0}, {vr} offset:{16 * KG_ROW + ks * 64}")
            k(f"ds_read_b128 {B1}, {vr} offset:{32 * KG_ROW + ks * 64}")
            k.mfma(D[0], Ar, B0, D[0] if ks else None)
            k.mfma(D[1], Ar, B1, D[1] if ks else None)
        vq = k.v()
        k(f"s_lshl_b32 {t0}, {wv}, 10")
        k(f"s_add_u32 {t0}, {t0}, {L_KX}")
        k(f"v_lshlrev_b32 {vq}, 8, {g}")
        k(f"v_lshl_add_u32 {vq}, {n}, 1, {vq}")
        k(f"v_add_u32 {vq}, {t0}, {vq}")
        tt = [k.v() for _ in range(8)]
        for nt in range(2):
            for r in range(4):
                k.pk(tt[4 * nt + r], D[nt][r], D[nt][r])
                k(f"ds_write_b16 {vq}, {tt[4 * nt + r]} offset:{r * 64 + nt * 32}")
        k.V.free(vr, vq, *tt, *D, *[x for b in bufs for x in b])

    def kg_expand():
        ch, q = rg, kt
        IDX = k.v(8, 2)
        va_ = k.v()
        k(f"v_add_u32 {va_}, 4096, {vl16}")
        k(f"global_load_dwordx4 {IDX[0:4]}, {va_}, {tbase['perkt']} offset:0")
        k(f"global_load_dwordx4 {IDX[4:8]}, {va_}, {tbase['perkt']} offset:1024")
        kxb = k.s()
        k(f"s_lshl_b32 {kxb}, {ch}, 11")
        k(f"s_add_u32 {kxb}, {kxb}, {L_KX}")
        OPS = [k.v(4, 2) for _ in range(2)]
        vals = [[k.v() for _ in range(8)] for _ in range(2)]
        slow16 = k.s()
        k(f"s_mov_b32 {slow16}, 0xffff")
        for mt in range(2):
            for j in range(8):
                x, src = vals[mt][j], IDX[4 * mt + (j >> 1)]
                if j & 1:
                    k(f"v_lshrrev_b32 {x}, 16, {src}")
                else:
                    k(f"v_and_b32 {x}, {slow16}, {src}")
                k(f"v_add_u32 {x}, {kxb}, {x}")
                k(f"ds_read_u16 {x}, {x}")
        for mt in range(2):
            for jp in range(4):
                k(f"v_lshl_or_b32 {OPS[mt][jp]}, {vals[mt][2 * jp + 1]}, 16, {vals[mt][2 * jp]}")
        vb = k.v()
        k(f"s_lshl_b32 {t0}, {ch}, 12")
        k(f"s_lshl_b32 {t1}, {q}, 10")
        k(f"s_add_u32 {t0}, {t0}, {t1}")
        k(f"s_add_u32 {t0}, {t0}, {L_KOP}")
        k(f"v_add_u32 {vb}, {t0}, {vl16}")
        for mt in range(2):
            k(f"ds_write_b128 {vb}, {OPS[mt]} offset:{mt * 2048}")
        k.V.free(*OPS, vb, va_, IDX, *vals[0], *vals[1])
        k.S.free(kxb, slow16)

    class Chan:
        def __init__(self):
            self.D = [[k.v(4, 2) for _ in range(2)] for _ in range(2)]
            self.T = [[k.v(4, 2) for _ in range(2)] for _ in range(2)]
            self.E = self.D
            self.B = [k.v(4, 2) for _ in range(2)]

        def free(self):
            k.V.free(*self.D[0], *self.D[1], *self.T[0], *self.T[1], *self.B)

    def fwd_half(C):
        fc, fs = TW[0], TW[1]
        for mt in range(2):
            for r in range(4):
                k.cmul(C.T[0][mt][r], C.T[1][mt][r], C.D[0][mt][r], C.D[1][mt][r], fc[mt][r], fs[mt][r], False)
            pack4(k, C.B[mt], C.T[0][mt], C.T[1][mt])
        for q in range(2):
            for m2 in range(2):
                k.mfma(C.E[0][m2], op_CS(G[m2][q]), C.B[q], C.E[0][m2] if q else None)
                k.mfma(C.E[1][m2], op_nSC(G[m2][q]), C.B[q], C.E[1][m2] if q else None)

    def inv_half(C, XO):
        ic, is_ = TW[2], TW[3]
        for m2 in range(2):
            pack4(k, C.B[m2], C.T[0][m2], C.T[1][m2])
        for nt in range(2):
            for q in range(2):
                k.mfma(C.D[0][nt], C.B[q], op_CnS(G[nt][q]), C.D[0][nt] if q else None)
                k.mfma(C.D[1][nt], C.B[q], op_SC(G[nt][q]), C.D[1][nt] if q else None)
        for nt in range(2):
            for r in range(4):
                k.cmul(C.T[0][nt][r], C.T[1][nt][r], C.D[0][nt][r], C.D[1][nt][r], ic[nt][r], is_[nt][r], True)
            pack4(k, XO[nt], C.T[0][nt], C.T[1][nt])

    def kg_transform():
        vr = k.v()
        k(f"v_add_u32 {vr}, {L_KOP}, {vl16}")
        sc = fhex(1.0 / 2048)
        Cs = [Chan(), Chan()]
        U = [[[k.v(4, 2) for _ in range(2)] for _ in range(2)] for _ in range(2)]
        for c in range(2):
            for mt in range(2):
                for q in range(2):
                    k(f"ds_read_b128 {U[c][mt][q]}, {vr} offset:{c * 4096 + mt * 2048 + q * 1024}")
        for c in range(2):
            C = Cs[c]
            for mt in range(2):
                for q in range(2):
                    k.mfma(C.D[0][mt], U[c][mt][q], FC[q], C.D[0][mt] if q else None)
                    k.mfma(C.D[1][mt], U[c][mt][q], FS[q], C.D[1][mt] if q else None)
            fwd_half(C)
            for m2 in range(2):
                for r in range(4):
                    k(f"v_mul_f32 {C.E[0][m2][r]}, {sc}, {C.E[0][m2][r]}")
                    k(f"v_mul_f32 {C.E[1][m2][r]}, {sc}, {C.E[1][m2][r]}")
                pack4(k, KF[c][m2], C.E[0][m2], C.E[1][m2])
        for c in range(2):
            Cs[c].free()
            k.V.free(*U[c][0], *U[c][1])
        k.V.free(vr)

    ITEMS = {'KP': kg_params, 'KT0': lambda: kg_tables(0), 'KT1': lambda: kg_tables(1), 'KM': kg_matmul,
             'KE': kg_expand, 'KX': kg_transform, 'BAR': lambda: k("s_barrier"),
             'T2': lambda: (tload('perw', pw[0:72], 0), tload('common', cm[4:44], 4)),
             'T3': lambda: tload('common', cm[44:84], 44), 'T4': lambda: tload('perw', pw[72:136], 72)}

    def window(name, pre=()):
        items = list(pre) + OPT['windows'].get(name, [])
        if not items:
            return
        u = uid[0]
        uid[0] += 1
        k(f"s_cmp_lg_u32 {it}, 0")
        k(f"s_cbranch_scc1 L_side{u}", manual=True)
        for nm in items:
            ITEMS[nm]()
            if OPT.get('fine') and not nm.startswith('T') and nm != 'BAR':
                k.stamp('i_' + nm)
        release()
        k("s_waitcnt lgkmcnt(0)")
        k("s_nop 7")
        k(f"L_side{u}:", manual=True)
        k.stamp('w' + name)

    k(f"s_lshl_b32 {t0}, {wv}, 10")
    k(f"s_add_u32 {t0}, {t0}, {L_WIM}")
    vt = k.v()
    k(f"v_add_u32 {vt}, {t0}, {vl16}")
    k(f"ds_write_b128 {vt}, {XR[0]}")
    k(f"ds_write_b128 {vt}, {XR[1]} offset:4096")
    k(f"v_lshrrev_b32 {tv}, 2, {n}")
    k(f"v_lshlrev_b32 {vt}, 10, {tv}")
    k(f"v_and_b32 {tv}, 3, {n}")
    k(f"v_lshl_add_u32 {vt}, {tv}, 3, {vt}")
    k(f"v_lshl_add_u32 {vt}, {g}, 5, {vt}")
    k(f"s_lshl_b32 {t0}, {wv}, 8")
    k(f"s_add_u32 {t0}, {t0}, {L_WIM}")
    k(f"v_add_u32 {vt}, {t0}, {vt}")
    k("s_barrier")
    for j in range(2):
        k(f"ds_read_b64_tr_b16 {XR[j][0:2]}, {vt} offset:{j * 128}")
        k(f"ds_read_b64_tr_b16 {XR[j][2:4]}, {vt} offset:{j * 128 + 4096}")
    for j in range(2):
        k(f"ds_write_b128 {vXw}, {XR[j]} offset:{L_XL + j * 1024}")
    k.V.free(vt, *XR)
    vtag, vzero = k.v(), k.v()
    sd = scratch_srd('debug', 256)
    k(f"v_mov_b32 {vzero}, 0")
    k(f"buffer_load_dword {vtag}, {vzero}, {sd}, 0 offen sc1")
    load_tw(RFtw)
    set_offsets(None, Z_B, X1_B, False)
    fill()
    k("s_barrier")
    k.stamp('p1a')

    def w_transpose():
        Wd = k.v(8, 2)
        for rho in range(0, 8, 2):
            for c in range(2):
                reg = Wd[(rho >> 2) * 4 + c * 2 + ((rho & 3) >> 1)]
                k(f"v_lshl_or_b32 {reg}, {Wraw[rho + 1][c]}, 16, {Wraw[rho][c]}")
        vt2, vt3 = k.v(), k.v()
        k(f"v_lshlrev_b32 {vt2}, 5, v0")
        k(f"ds_write_b128 {vt2}, {Wd[0:4]} offset:{L_WST}")
        k(f"ds_write_b128 {vt2}, {Wd[4:8]} offset:{L_WST + 16}")
        for key in WE:
            k(f"v_lshlrev_b32 {WE[key]}, 16, {WE[key]}")
        k(f"v_add_f32 {WE['a', 0]}, {WE['a', 0]}, {WE['ar', 0]}")
        k(f"v_sub_f32 {WE['a', 1]}, {WE['a', 1]}, {WE['ar', 1]}")
        k(f"v_add_f32 {WE['b', 0]}, {WE['b', 0]}, {WE['br', 0]}")
        k(f"v_sub_f32 {WE['b', 1]}, {WE['b', 1]}, {WE['br', 1]}")
        for c in range(2):
            k(f"v_add_f32 {WE['ar', c]}, {WE['a', c]}, {WE['b', c]}")
            k(f"v_sub_f32 {WE['br', c]}, {WE['a', c]}, {WE['b', c]}")
            k(f"v_mul_f32 {WE['ar', c]}, {fhex(0.125)}, {WE['ar', c]}")
            k(f"v_mul_f32 {WE['br', c]}, {fhex(0.125)}, {WE['br', c]}")
            k.pk(WE['ar', c], WE['ar', c], WE['ar', c])
            k.pk(WE['br', c], WE['br', c], WE['br', c])
        k(f"v_lshrrev_b32 {vt3}, 2, v0")
        k(f"v_lshlrev_b32 {vt3}, 4, {vt3}")
        k(f"v_and_b32 {tv}, 3, v0")
        k(f"v_lshl_add_u32 {vt3}, {tv}, 1, {vt3}")
        vt4 = k.v()
        k(f"v_add_u32 {vt4}, {8192 + 64}, {vt3}")
        k(f"v_cmp_gt_u32 vcc, 8, v0")
        k(f"v_cndmask_b32 {vt4}, {vt4}, {vt3}, vcc")
        k(f"v_add_u32 {vt3}, 8192, {vt3}")
        for c in range(2):
            k(f"ds_write_b16 {vt4}, {WE['ar', c]} offset:{L_WST + 8 * c}")
            k(f"ds_write_b16 {vt3}, {WE['br', c]} offset:{L_WST + 8 * c}")
        k.V.free(Wd, vt2, vt3, vt4, *WE.values(), *[x for r in Wraw for x in r])
        k("s_barrier")
        vt = k.v()
        WO = [k.v(4, 2) for _ in range(3)]
        k(f"ds_read_b128 {WO[0]}, {vUl} offset:{L_WST}")
        k(f"ds_read_b128 {WO[1]}, {vUl} offset:{L_WST + 4096}")
        k(f"ds_read_b128 {WO[2]}, {vUl} offset:{L_WST + 8192}")
        k(f"v_add_u32 {vt}, 8192, {vUl}")
        k(f"v_mov_b32 {tv}, {hex(OOB)}")
        k(f"v_cmp_gt_u32 vcc, 2, v0")
        k(f"v_cndmask_b32 {vt}, {tv}, {vt}, vcc")
        k(f"s_mul_i32 {t0}, {Lid}, {WT_BLK}")
        k(f"s_add_u32 {t0}, {t0}, {WT_B}")
        k(f"s_add_u32 {t1}, {t0}, 4096")
        k(f"buffer_store_dwordx4 {WO[0]}, {vUl}, {sws}, {t0} offen sc1")
        k(f"buffer_store_dwordx4 {WO[1]}, {vUl}, {sws}, {t1} offen sc1")
        k(f"buffer_store_dwordx4 {WO[2]}, {vt}, {sws}, {t0} offen sc1")
        k.V.free(vt, *WO)

    k("L_layer:", manual=True)
    Lr = [k.v(2, 2) for _ in range(8)]
    for j in range(8):
        dh = j if j < 4 else 16 + j - 4
        k(f"ds_read_b64 {Lr[j]}, {vRFr} offset:{L_XL + dh * 256}")
    Aop = [k.v(4, 2) for _ in range(4)]
    for rho in range(4):
        for jp in range(4):
            k(f"v_perm_b32 {Aop[rho][jp]}, {Lr[2 * jp + 1][rho >> 1]}, {Lr[2 * jp][rho >> 1]}, {shi if rho & 1 else slo}")
    k.V.free(*Lr)
    Dr = [k.v(4, 2) for _ in range(4)]
    Di = [k.v(4, 2) for _ in range(4)]
    for rho in range(4):
        k.mfma(Dr[rho], Aop[rho], RFB1[0:4])
        k.mfma(Di[rho], Aop[rho], RFB1[4:8])
    Sx = [k.v() for _ in range(4)]
    Qx = [k.v() for _ in range(4)]
    for rho in range(4):
        k(f"v_dot2_f32_bf16 {Sx[rho]}, {Aop[rho][0]}, {sones}, 0")
        k(f"v_dot2_f32_bf16 {Qx[rho]}, {Aop[rho][0]}, {Aop[rho][0]}, 0")
    for jp in range(1, 4):
        for rho in range(4):
            k(f"v_dot2c_f32_bf16 {Sx[rho]}, {sones}, {Aop[rho][jp]}")
            k(f"v_dot2c_f32_bf16 {Qx[rho]}, {Aop[rho][jp]}, {Aop[rho][jp]}")
    Sr = k.reduce4(Sx)
    Qr = k.reduce4(Qx)
    oth, alt = Sx[1], Sx[2]
    k(f"v_mov_b32_dpp {oth}, {Sr} quad_perm:[1,0,3,2] row_mask:0xf bank_mask:0xf")
    k(f"v_add_f32_dpp {Qr}, {Qr}, {Qr} quad_perm:[1,0,3,2] row_mask:0xf bank_mask:0xf")
    k(f"v_sub_f32 {alt}, {Sr}, {oth}")
    k(f"v_add_f32 {Sr}, {Sr}, {oth}")
    mbf, rstd = k.ln_finish(Sr, Qr, Sx[3])
    k(f"v_mul_f32 {mbf}, {fhex(512.0)}, {mbf}")
    s_r = [k.s(2) for _ in range(4)]
    s_m = [k.s() for _ in range(4)]
    s_a = [k.s() for _ in range(4)]
    for rho in range(4):
        k(f"v_readlane_b32 {s_r[rho][0]}, {rstd}, {ROWLANE[rho]}")
        k(f"v_readlane_b32 {s_m[rho]}, {mbf}, {ROWLANE[rho]}")
        k(f"v_readlane_b32 {s_a[rho]}, {alt}, {ROWLANE[rho]}")
    D2 = [k.v(4, 2) for _ in range(4)]
    tr = [k.v(4, 2) for _ in range(4)]
    ti = [k.v(4, 2) for _ in range(4)]
    B2 = [k.v(4, 2) for _ in range(4)]
    for rho in range(4):
        for r in range(4):
            k.cmul(tr[rho][r], ti[rho][r], Dr[rho][r], Di[rho][r], TWV[r], TWV[4 + r], False)
        pack4(k, B2[rho], tr[rho], ti[rho])
        k.mfma(D2[rho], RFA2, B2[rho])
    k.V.free(*tr, *ti, *B2, *Dr, *Di, *Sx, *Qx, *Aop)
    for rho in range(4):
        k(f"v_fma_f32 {D2[rho][0]}, -{dcm}, {s_m[rho]}, {D2[rho][0]}")
        k(f"v_fma_f32 {D2[rho][1]}, {dcm}, {s_a[rho]}, {D2[rho][1]}")
        for h in range(2):
            k(f"v_pk_mul_f32 {D2[rho][2 * h:2 * h + 2]}, {D2[rho][2 * h:2 * h + 2]}, {s_r[rho]} op_sel_hi:[1,0]")
    k.S.free(*s_r, *s_m, *s_a)
    O = [k.v(4, 2) for _ in range(2)]
    for e in range(2):
        k.pk(O[e][0], D2[0][2 * e], D2[1][2 * e])
        k.pk(O[e][1], D2[2][2 * e], D2[3][2 * e])
        k.pk(O[e][2], D2[0][2 * e + 1], D2[1][2 * e + 1])
        k.pk(O[e][3], D2[2][2 * e + 1], D2[3][2 * e + 1])
        k(f"ds_write_b128 {vRFs}, {O[e]} offset:{L_XCH + e * 1024}")
    k.V.free(*D2)

    def store_block(lds_base):
        k("s_waitcnt vmcnt(0)")
        k("s_barrier")
        k(f"ds_read_b128 {O[0]}, {vUl} offset:{lds_base}")
        k(f"ds_read_b128 {O[1]}, {vUl} offset:{lds_base + 4096}")
        k(f"buffer_store_dwordx4 {O[0]}, {vUl}, {sws}, {ssa} offen sc1")
        k(f"buffer_store_dwordx4 {O[1]}, {vUl}, {sws}, {ssb} offen sc1")
    store_block(L_XCH)
    k.stamp('RF')
    k(f"s_cmp_lg_u32 {it}, 0")
    k("s_cbranch_scc1 L_bar1_done", manual=True)
    w_transpose()
    if OPT.get('fine'):
        k.stamp('i_wt')
    sd = scratch_srd('debug', 256)
    x, y = k.v(), k.v()
    q = k.v(4, 2)
    k(f"s_cmp_lg_u32 {wv}, 0")
    k("s_cbranch_scc1 L_tag_done")
    k(f"s_mov_b32 {t2}, {SPIN_MAX}")
    k("L_tag_poll:")
    k(f"v_readfirstlane_b32 {nonce}, {vtag}")
    k(f"s_cmp_lg_u32 {nonce}, 0")
    k("s_cbranch_scc1 L_tag_done")
    k(f"s_sub_u32 {t2}, {t2}, 1")
    k(f"s_cmp_eq_u32 {t2}, 0")
    k("s_cbranch_scc1 L_tag_done")
    k(f"buffer_load_dword {vtag}, {vzero}, {sd}, 0 offen sc1")
    k("s_branch L_tag_poll")
    k("L_tag_done:")
    k("s_waitcnt vmcnt(0)")
    k("s_barrier")
    k(f"s_cmp_lg_u32 {wv}, 0")
    k("s_cbranch_scc1 L_arr_done")
    k(f"v_mov_b32 {y}, {nonce}")
    k(f"v_lshlrev_b32 {x}, 10, {lane}")
    k(f"v_mov_b32 {tv}, {hex(OOB)}")
    k(f"v_cmp_gt_u32 vcc, 8, {lane}")
    k(f"v_cndmask_b32 {x}, {tv}, {x}, vcc")
    k(f"s_lshl_b32 {t1}, {Lid}, 2")
    k(f"s_add_u32 {t0}, {t1}, {FL_B}")
    k(f"buffer_store_dword {y}, {x}, {sws}, {t0} offen sc1")
    k("L_arr_done:")
    k.stamp('arr')
    for nm in OPT['windows'].get('1a', []):
        ITEMS[nm]()
        if OPT.get('fine') and not nm.startswith('T'):
            k.stamp('i_' + nm)
    release()
    k.stamp('w1a')
    k(f"s_cmp_lg_u32 {wv}, 0")
    k("s_cbranch_scc1 L_wt_done", manual=True)
    k(f"s_mov_b32 {t2}, {SPIN_MAX}")
    k(f"s_and_b32 {t1}, s2, 7")
    k(f"s_lshl_b32 {t1}, {t1}, 10")
    k(f"s_add_u32 {t0}, {t1}, {FL_B}")
    k("L_wtl:", manual=True)
    k(f"buffer_load_dwordx4 {q}, {vl16}, {sws}, {t0} offen sc1")
    k(f"s_sub_u32 {t2}, {t2}, 1")
    k(f"s_cmp_eq_u32 {t2}, 0")
    k("s_cbranch_scc1 L_wt_done", manual=True)
    k("s_waitcnt vmcnt(0)")
    for i in range(4):
        k(f"v_xor_b32 {q[i]}, {nonce}, {q[i]}")
    k(f"v_or3_b32 {q[0]}, {q[0]}, {q[1]}, {q[2]}")
    k(f"v_or_b32 {q[0]}, {q[0]}, {q[3]}")
    k(f"v_cmp_ne_u32 vcc, 0, {q[0]}")
    k("s_cbranch_vccnz L_wtl", manual=True)
    k("L_wt_done:", manual=True)
    k("s_barrier")
    k.V.free(x, y, q, vtag, vzero)
    k.stamp('wait')
    k("L_bar1_done:", manual=True)

    sb = k.s()

    def itbase(b):
        k(f"s_mul_i32 {sb}, {it}, {IT_STRIDE}")
        k(f"s_add_u32 {sb}, {sb}, {b}")
        return sb
    itoff = k.s()
    k(f"s_mul_i32 {itoff}, {it}, {IT_STRIDE}")

    def offs(gb, fb, sbs, wave_store):
        k(f"s_add_u32 {sga}, {sslot}, {itoff}")
        k(f"s_add_u32 {sga}, {sga}, {gb}")
        k(f"s_add_u32 {sgb}, {sga}, {128 * 8192}")
        gather_issue(True)
        if fb is not None:
            k(f"s_add_u32 {sfa}, {sblk}, {itoff}")
            k(f"s_add_u32 {sfa}, {sfa}, {fb}")
            k(f"s_add_u32 {sfb}, {sfa}, 4096")
            if not OPT['latefill']:
                fill()
        if sbs is not None:
            k(f"s_add_u32 {ssa}, {sblkw if wave_store else sblk}, {itoff}")
            k(f"s_add_u32 {ssa}, {ssa}, {sbs}")
            if not wave_store:
                k(f"s_add_u32 {ssb}, {ssa}, 4096")
    offs(X1_B, U_B, Z_B, True)
    load_tw(TW0a)
    k(f"s_cmp_lg_u32 {it}, 0")
    k("s_cbranch_scc1 L_w_done", manual=True)
    GW = [k.v(4, 2) for _ in range(4)]
    vGW = k.v()
    k(f"v_lshrrev_b32 {vGW}, 1, v0")
    k(f"v_mul_u32_u24 {vGW}, {WT_BLK}, {vGW}")
    k(f"v_and_b32 {tv}, 1, v0")
    k(f"v_lshl_add_u32 {vGW}, {tv}, 4, {vGW}")
    k(f"s_add_u32 {t0}, {sslot}, {WT_B}")
    k(f"s_add_u32 {t1}, {t0}, {128 * WT_BLK}")
    k(f"buffer_load_dwordx4 {GW[0]}, {vGW}, {sws}, {t0} offen sc1")
    k(f"buffer_load_dwordx4 {GW[1]}, {vGW}, {sws}, {t1} offen sc1")
    k(f"s_mov_b32 {t0}, {WT_B + 256 * 32}")
    k(f"s_mov_b32 {t1}, {WT_B + 256 * 32 + 128 * WT_BLK}")
    k(f"buffer_load_dwordx4 {GW[2]}, {vGW}, {sws}, {t0} offen sc1")
    k(f"buffer_load_dwordx4 {GW[3]}, {vGW}, {sws}, {t1} offen sc1")
    for nm in OPT['windows'].get('1b', []):
        ITEMS[nm]()
    release()
    k.stamp('w1b')
    for i in range(4):
        k(f"ds_write_b128 {vUl}, {GW[i]} offset:{L_WIM + i * 4096}")
    k.V.free(vGW, *GW)
    k("s_barrier")
    vw = k.v()
    k(f"v_lshrrev_b32 {vw}, 1, {g}")
    k(f"v_lshlrev_b32 {vw}, 6, {vw}")
    k(f"v_add_u32 {vw}, {vw}, {n}")
    k(f"v_add_u32 {vw}, {w16}, {vw}")
    k(f"v_lshlrev_b32 {vw}, 5, {vw}")
    k(f"v_and_b32 {tv}, 1, {g}")
    k(f"v_lshl_add_u32 {vw}, {tv}, 4, {vw}")
    Wr = [k.v(4, 2) for _ in range(4)]
    for m2 in range(2):
        k(f"ds_read_b128 {Wr[m2]}, {vw} offset:{L_WIM + m2 * 4096}")
        k(f"ds_read_b128 {Wr[2 + m2]}, {vw} offset:{L_WIM + 8192 + m2 * 4096}")
    sc = k.s()
    k(f"s_mov_b32 {sc}, {fhex(2.0 / (2048 * 512))}")
    qt = [k.v() for _ in range(16)]
    for m2 in range(2):
        for r in range(4):
            for c in range(2):
                for dst, src in ((WP[m2][4 * c + r], Wr[m2][2 * c + (r >> 1)]),
                                 (qt[8 * m2 + 4 * c + r], Wr[2 + m2][2 * c + (r >> 1)])):
                    if r & 1:
                        k(f"v_and_b32 {dst}, {smask}, {src}")
                    else:
                        k(f"v_lshlrev_b32 {dst}, 16, {src}")
                    k(f"v_mul_f32 {dst}, {sc}, {dst}")
    for i in range(16):
        k(f"v_accvgpr_write_b32 {WQa[i]}, {qt[i]}")
    k.V.free(vw, *Wr, *qt)
    k.S.free(sc)
    k("s_waitcnt lgkmcnt(0)")
    k("s_nop 3")
    k("L_w_done:", manual=True)
    gather_check()
    k(f"ds_write_b128 {vUl}, {GL[0]} offset:{L_IMG}")
    k(f"ds_write_b128 {vUl}, {GL[1]} offset:{L_IMG + 4096}")
    if OPT['latefill']:
        fill()
    k("s_barrier")
    k.stamp('CAld')
    X = [[k.v(4, 2) for _ in range(4)] for _ in range(2)]
    for mt in range(2):
        for q in range(4):
            k(f"ds_read_b128 {X[mt][q]}, {vCAo} offset:{L_IMG + q * 2048 + mt * 512}")
    C = Chan()
    for mt in range(2):
        for q in range(4):
            k.mfma(C.D[0][mt], X[mt][q], op_CS(F[q]), C.D[0][mt] if q else None)
            k.mfma(C.D[1][mt], X[mt][q], op_nSC(F[q]), C.D[1][mt] if q else None)
    fwd_half(C)
    for m2 in range(2):
        for r in range(4):
            k.cmul(C.T[0][m2][r], C.T[1][m2][r], C.E[0][m2][r], C.E[1][m2][r], WP[m2][r], WP[m2][4 + r], True)
    k(f"s_cmp_lg_u32 {Lid}, 0")
    k("s_cbranch_scc1 L_q_done", manual=True)
    vb0, vbw, vbr, vb2 = k.v(), k.v(), k.v(), k.v()
    k(f"v_lshlrev_b32 {vb0}, 8, {g}")
    k(f"v_add_u32 {vb0}, {vb0}, {n}")
    k(f"v_add_u32 {vb0}, {w16}, {vb0}")
    k(f"v_lshlrev_b32 {vbw}, 3, {vb0}")
    k(f"v_sub_u32 {vbr}, {(2048 - 64 * 19) * 8}, {vbw}")
    k(f"v_cmp_eq_u32 vcc, 0, {vb0}")
    k(f"v_mov_b32 {vb2}, {2050 * 8}")
    k(f"v_mov_b32 {tv}, {2048 * 8}")
    k(f"v_cndmask_b32 {vb2}, {vb2}, {tv}, vcc")
    prs = [k.v(2, 2) for _ in range(8)]
    qq = [k.v(2, 2) for _ in range(8)]
    for m2 in range(2):
        for r in range(4):
            pr = prs[4 * m2 + r]
            k(f"v_mov_b32 {pr[0]}, {C.E[0][m2][r]}")
            k(f"v_mov_b32 {pr[1]}, {C.E[1][m2][r]}")
            k(f"ds_write_b64 {vbw}, {pr} offset:{L_QX + 512 * (16 * m2 + r)}")
            k(f"v_accvgpr_read_b32 {qq[4 * m2 + r][0]}, {WQa[8 * m2 + r]}")
            k(f"v_accvgpr_read_b32 {qq[4 * m2 + r][1]}, {WQa[8 * m2 + 4 + r]}")
    k(f"ds_write_b64 {vb2}, {prs[0]} offset:{L_QX}")
    k("s_barrier")
    for m2 in range(2):
        for r in range(4):
            k(f"ds_read_b64 {prs[4 * m2 + r]}, {vbr} offset:{L_QX + 512 * (19 - (16 * m2 + r))}")
    for m2 in range(2):
        for r in range(4):
            pr, q_ = prs[4 * m2 + r], qq[4 * m2 + r]
            k(f"v_fmac_f32 {C.T[0][m2][r]}, {pr[0]}, {q_[0]}")
            k(f"v_fmac_f32 {C.T[1][m2][r]}, {pr[0]}, {q_[1]}")
            k(f"v_fmac_f32 {C.T[0][m2][r]}, {pr[1]}, {q_[1]}")
            k(f"v_fma_f32 {C.T[1][m2][r]}, -{pr[1]}, {q_[0]}, {C.T[1][m2][r]}")
    k("s_waitcnt lgkmcnt(0)")
    k.V.free(vb0, vbw, vbr, vb2, *prs, *qq)
    k("L_q_done:", manual=True)
    XO = [X[0][0], X[0][1]]
    inv_half(C, XO)
    for nt in range(2):
        k(f"ds_write_b128 {vXw}, {XO[nt]} offset:{L_XCH + nt * 1024}")
    k("s_waitcnt vmcnt(0)")
    k("s_barrier")
    for nt in range(2):
        for kq in range(4):
            k(f"ds_read_b128 {X[nt][kq]}, {vl16} offset:{L_XCH + kq * 2048 + nt * 1024}")
    for nt in range(2):
        for kq in range(4):
            k.mfma(C.D[0][nt], op_CnS(F[kq]), X[nt][kq], C.D[0][nt] if kq else None)
            k.mfma(C.D[1][nt], op_SC(F[kq]), X[nt][kq], C.D[1][nt] if kq else None)
    for nt in range(2):
        k.pk(O[nt][0], C.D[0][nt][0], C.D[0][nt][1])
        k.pk(O[nt][1], C.D[1][nt][0], C.D[1][nt][1])
        k.pk(O[nt][2], C.D[0][nt][2], C.D[0][nt][3])
        k.pk(O[nt][3], C.D[1][nt][2], C.D[1][nt][3])
        k(f"buffer_store_dwordx4 {O[nt]}, {vzo}, {sws}, {ssa} offen offset:{nt * 512} sc1")
    C.free()
    k.V.free(*X[0], *X[1])
    k.stamp('CA')

    window('2p')
    offs(Z_B, Y_B, U_B, False)
    load_tw(RItw)
    window('2')
    X = [k.v(4, 2) for _ in range(2)]
    for nt in range(2):
        for r in range(4):
            k(f"ds_read_b32 {X[nt][r]}, {vRIx} offset:{L_XL + nt * 256 + r * 512}")
    XP = [[k.v(2, 2) for _ in range(4)] for _ in range(2)]
    for nt in range(2):
        for r in range(4):
            unpack2(XP[nt][r], X[nt][r])
    gather_check()
    k(f"ds_write_b128 {vUl}, {GL[0]} offset:{L_IMG}")
    k(f"ds_write_b128 {vUl}, {GL[1]} offset:{L_IMG + 4096}")
    if OPT['latefill']:
        fill()
    k("s_barrier")
    k.stamp('RIld')
    Lz = [k.v(2, 2) for _ in range(4)]
    for e_ in range(4):
        k(f"ds_read_b64 {Lz[e_]}, {vRIz} offset:{L_IMG + e_ * 512}")
    Aop = [k.v(4, 2) for _ in range(2)]
    for e_ in range(2):
        sel = shi if e_ else slo
        k(f"v_perm_b32 {Aop[e_][0]}, {Lz[1][0]}, {Lz[0][0]}, {sel}")
        k(f"v_perm_b32 {Aop[e_][1]}, {Lz[3][0]}, {Lz[2][0]}, {sel}")
        k(f"v_perm_b32 {Aop[e_][2]}, {Lz[1][1]}, {Lz[0][1]}, {sel}")
        k(f"v_perm_b32 {Aop[e_][3]}, {Lz[3][1]}, {Lz[2][1]}, {sel}")
    szn = k.s()
    k(f"v_readlane_b32 {szn}, {Lz[0][1]}, 0")
    Vr = [[k.v(4, 2) for _ in range(2)] for _ in range(2)]
    Vi = [[k.v(4, 2) for _ in range(2)] for _ in range(2)]
    for e_ in range(2):
        for nt in range(2):
            k.mfma(Vr[e_][nt], Aop[e_], op_CnS(H[nt]))
            k.mfma(Vi[e_][nt], Aop[e_], op_SC(H[nt]))
    Ci = [k.v(4, 2) for _ in range(2)]
    k(f"s_lshl_b32 {t0}, {szn}, 16")
    k(f"s_and_b32 {t1}, {szn}, 0xffff0000")
    for e_ in range(2):
        k(f"v_xor_b32 {Ci[e_][0]}, {t1 if e_ else t0}, {sgn}")
        for r in range(1, 4):
            k(f"v_mov_b32 {Ci[e_][r]}, {Ci[e_][0]}")
    k.S.free(szn)
    D = [[k.v(4, 2) for _ in range(2)] for _ in range(2)]
    tr = [[k.v(4, 2) for _ in range(2)] for _ in range(2)]
    ti = [[k.v(4, 2) for _ in range(2)] for _ in range(2)]
    B = [[k.v(4, 2) for _ in range(2)] for _ in range(2)]
    for e_ in range(2):
        for nt in range(2):
            for r in range(4):
                k.cmul(tr[e_][nt][r], ti[e_][nt][r], Vr[e_][nt][r], Vi[e_][nt][r], TWV[8 * nt + r], TWV[8 * nt + 4 + r], True)
            pack4(k, B[e_][nt], tr[e_][nt], ti[e_][nt])
            k.mfma(D[e_][nt], RIA2, B[e_][nt], Ci[e_])
    k.V.free(*tr[0], *tr[1], *ti[0], *ti[1], *B[0], *B[1], *Ci, *Aop, *Vr[0], *Vr[1], *Vi[0], *Vi[1], *Lz)
    Sp = [k.v(2, 2) for _ in range(2)]
    Qp = [k.v(2, 2) for _ in range(2)]
    for nt in range(2):
        for r in range(4):
            k(f"v_add_f32 {XP[nt][r][0]}, {XP[nt][r][0]}, {D[0][nt][r]}")
            k(f"v_add_f32 {XP[nt][r][1]}, {XP[nt][r][1]}, {D[1][nt][r]}")
            k.pk(X[nt][r], XP[nt][r][0], XP[nt][r][1])
            k(f"ds_write_b32 {vRIx}, {X[nt][r]} offset:{L_XL + nt * 256 + r * 512}")
            unpack2(XP[nt][r], X[nt][r])
        k(f"v_pk_add_f32 {Sp[nt]}, {XP[nt][0]}, {XP[nt][1]}")
        k(f"v_pk_mul_f32 {Qp[nt]}, {XP[nt][0]}, {XP[nt][0]}")
        k(f"v_pk_add_f32 {Sp[nt]}, {Sp[nt]}, {XP[nt][2]}")
        k(f"v_pk_fma_f32 {Qp[nt]}, {XP[nt][1]}, {XP[nt][1]}, {Qp[nt]}")
        k(f"v_pk_add_f32 {Sp[nt]}, {Sp[nt]}, {XP[nt][3]}")
        k(f"v_pk_fma_f32 {Qp[nt]}, {XP[nt][2]}, {XP[nt][2]}, {Qp[nt]}")
        k(f"v_pk_fma_f32 {Qp[nt]}, {XP[nt][3]}, {XP[nt][3]}, {Qp[nt]}")
    k(f"v_pk_add_f32 {Sp[0]}, {Sp[0]}, {Sp[1]}")
    k(f"v_pk_add_f32 {Qp[0]}, {Qp[0]}, {Qp[1]}")
    k.V.free(*D[0], *D[1])
    R = k.reduce4([Sp[0][0], Sp[0][1], Qp[0][0], Qp[0][1]])
    k(f"v_add_f32_dpp {R}, {R}, {R} quad_perm:[1,0,3,2] row_mask:0xf bank_mask:0xf")
    R2 = Qp[0][1]
    k(f"v_mov_b32 {R2}, {R}")
    k(f"v_permlane16_swap_b32 {R}, {R2}")
    mbf, rstd = k.ln_finish(R, R2, tv)
    k(f"v_mul_f32 {mbf}, {mbf}, {rstd}")
    sm, sr = k.s(2), k.s(2)
    for e_ in range(2):
        k(f"v_readlane_b32 {sm[e_]}, {mbf}, {32 * e_}")
        k(f"v_readlane_b32 {sr[e_]}, {rstd}, {32 * e_}")
    mr = Sp[1]
    k(f"v_mov_b32 {mr[0]}, {sm[0]}")
    k(f"v_mov_b32 {mr[1]}, {sm[1]}")
    for nt in range(2):
        for r in range(4):
            k(f"v_pk_fma_f32 {XP[nt][r]}, {XP[nt][r]}, {sr}, {mr} neg_lo:[0,0,1] neg_hi:[0,0,1]")
            k.pk(X[nt][r], XP[nt][r][0], XP[nt][r][1])
            k(f"ds_write_b32 {vRIx}, {X[nt][r]} offset:{L_XCH + nt * 256 + r * 512}")
    k.S.free(sm, sr)
    k.V.free(*Sp, *Qp, *XP[0], *XP[1], *X)
    store_block(L_XCH)
    k.stamp('RI')

    window('3p')
    k(f"s_add_u32 {sga}, {sslot}, {itoff}")
    k(f"s_add_u32 {sga}, {sga}, {U_B}")
    k(f"s_add_u32 {sgb}, {sga}, {128 * 8192}")
    gather_issue(True)
    k(f"s_add_u32 {sfa}, {sblk}, {itoff}")
    k(f"s_add_u32 {sfa}, {sfa}, {X1_B + IT_STRIDE}")
    k(f"s_add_u32 {sfb}, {sfa}, 4096")

    def cond_fill(lbl):
        k(f"s_cmp_lg_u32 {it}, 0")
        k(f"s_cbranch_scc1 {lbl}", manual=True)
        fill()
        k("s_nop 1")
        k(f"{lbl}:", manual=True)
    if not OPT['latefill']:
        cond_fill("L_nofill")
    k(f"s_add_u32 {ssa}, {sblkw}, {itoff}")
    k(f"s_add_u32 {ssa}, {ssa}, {Y_B}")
    load_tw(TW1a)
    window('3')
    gather_check()
    k(f"ds_write_b128 {vCBi}, {GL[0]} offset:{L_IMG}")
    k(f"ds_write_b128 {vCBi}, {GL[1]} offset:{L_IMG + 2048}")
    if OPT['latefill']:
        cond_fill("L_nofill")
    k("s_barrier")
    k.stamp('CBld')
    U = [[[k.v(4, 2) for _ in range(2)] for _ in range(2)] for _ in range(2)]
    for c in range(2):
        for mt in range(2):
            for q in range(2):
                k(f"ds_read_b128 {U[c][mt][q]}, {vCBo} offset:{L_IMG + c * 4096 + q * 2048 + mt * 256}")
    EU = [[k.v(2, 2) for _ in range(2)] for _ in range(2)]
    for c in range(2):
        for nt in range(2):
            k(f"ds_read_b64 {EU[c][nt]}, {vCBe} offset:{L_IMG + c * 4096 + nt * 256}")
    Cs = [Chan(), Chan()]
    for c in range(2):
        C = Cs[c]
        for mt in range(2):
            for q in range(2):
                k.mfma(C.D[0][mt], U[c][mt][q], FC[q], C.D[0][mt] if q else None)
                k.mfma(C.D[1][mt], U[c][mt][q], FS[q], C.D[1][mt] if q else None)
        fwd_half(C)
        for m2 in range(2):
            kr, ki = U[c][m2][0], U[c][m2][1]
            for r in range(4):
                for dst, src in ((kr[r], KF[c][m2][r >> 1]), (ki[r], KF[c][m2][2 + (r >> 1)])):
                    if r & 1:
                        k(f"v_and_b32 {dst}, {smask}, {src}")
                    else:
                        k(f"v_lshlrev_b32 {dst}, 16, {src}")
            for r in range(4):
                k.cmul(C.T[0][m2][r], C.T[1][m2][r], C.E[0][m2][r], C.E[1][m2][r], kr[r], ki[r], True)
        XO = [U[c][0][0], U[c][0][1]]
        inv_half(C, XO)
        for nt in range(2):
            k(f"ds_write_b128 {vXw}, {XO[nt]} offset:{L_XCH + c * 8192 + nt * 1024}")
        for nt in range(2):
            for h in range(2):
                unpack2(U[c][1][nt][2 * h:2 * h + 2], EU[c][nt][h])
    k("s_waitcnt vmcnt(0)")
    k("s_barrier")
    Yc = [[[Cs[c].T[0][0], Cs[c].T[0][1], Cs[c].T[1][0], Cs[c].T[1][1]],
           [Cs[c].D[1][0], Cs[c].D[1][1], Cs[c].B[0], Cs[c].B[1]]] for c in range(2)]
    for c in range(2):
        for nt in range(2):
            for kq in range(4):
                k(f"ds_read_b128 {Yc[c][nt][kq]}, {vl16} offset:{L_XCH + c * 8192 + kq * 2048 + nt * 1024}")
    UP = [[[U[c][1][0][0:2], U[c][1][0][2:4]], [U[c][1][1][0:2], U[c][1][1][2:4]]] for c in range(2)]
    for c in range(2):
        D = Cs[c].D[0]
        for nt in range(2):
            for kq in range(4):
                k.mfma(D[nt], I2[kq], Yc[c][nt][kq], D[nt] if kq else None)
    for c in range(2):
        D = Cs[c].D[0]
        for nt in range(2):
            for h in range(2):
                for e_ in range(2):
                    k(f"v_fmac_f32 {D[nt][2 * h + e_]}, {ds2[c][0]}, {UP[c][nt][h][e_]}")
                k.pk(O[nt][2 * c + h], D[nt][2 * h], D[nt][2 * h + 1])
    for nt in range(2):
        k(f"v_permlane16_swap_b32 {O[nt][0]}, {O[nt][2]}")
        k(f"v_permlane16_swap_b32 {O[nt][1]}, {O[nt][3]}")
        k(f"buffer_store_dwordx4 {O[nt]}, {vzo}, {sws}, {ssa} offen offset:{nt * 512} sc1")
    for c in range(2):
        Cs[c].free()
        k.V.free(*U[c][0], *U[c][1], *EU[c])
    k.stamp('CB')

    k(f"s_add_u32 {sga}, {sslot}, {itoff}")
    k(f"s_add_u32 {sga}, {sga}, {Y_B}")
    k(f"s_add_u32 {sgb}, {sga}, {128 * 8192}")
    gather_issue(True)
    k(f"s_add_u32 {sfa}, {sblk}, {itoff}")
    k(f"s_add_u32 {sfa}, {sfa}, {Z_B + IT_STRIDE}")
    k(f"s_add_u32 {sfb}, {sfa}, 4096")
    if not OPT['latefill']:
        cond_fill("L_nofill2")
    k(f"s_add_u32 {ssa}, {sblk}, {itoff}")
    k(f"s_add_u32 {ssa}, {ssa}, {X1_B + IT_STRIDE}")
    k(f"s_add_u32 {ssb}, {ssa}, 4096")
    load_tw(RFtw)
    XV = [k.v(4, 2) for _ in range(2)]
    k(f"ds_read_b128 {XV[0]}, {vUl} offset:{L_XL}")
    k(f"ds_read_b128 {XV[1]}, {vUl} offset:{L_XL + 4096}")
    xps = [[k.v(2, 2) for _ in range(4)] for _ in range(2)]
    yps = [[k.v(2, 2) for _ in range(4)] for _ in range(2)]
    for i in range(2):
        for j in range(4):
            unpack2(xps[i][j], XV[i][j])
    gather_check()
    for i in range(2):
        for j in range(4):
            unpack2(yps[i][j], GL[i][j])
            k(f"v_pk_add_f32 {yps[i][j]}, {yps[i][j]}, {xps[i][j]}")
            k.pk(XV[i][j], yps[i][j][0], yps[i][j][1])
        k(f"ds_write_b128 {vUl}, {XV[i]} offset:{L_XL + i * 4096}")
    k.V.free(*yps[0], *yps[1], *xps[0], *xps[1], *XV)
    if OPT['latefill']:
        cond_fill("L_nofill2")
    k("s_barrier")
    k.stamp('resid')
    k(f"s_add_u32 {it}, {it}, 1")
    k(f"s_cmp_lt_u32 {it}, 2")
    k("s_cbranch_scc1 L_layer", manual=True)

    vt = k.v()
    k(f"v_lshrrev_b32 {tv}, 2, {n}")
    k(f"v_lshlrev_b32 {vt}, 4, {tv}")
    k(f"v_and_b32 {tv}, 1, {n}")
    k(f"v_lshl_add_u32 {vt}, {tv}, 3, {vt}")
    k(f"v_bfe_u32 {tv}, {n}, 1, 1")
    k(f"v_lshl_add_u32 {vt}, {tv}, 7, {vt}")
    k(f"v_lshl_add_u32 {vt}, {g}, 8, {vt}")
    k(f"s_lshl_b32 {t0}, {wv}, 11")
    k(f"v_add_u32 {vt}, {t0}, {vt}")
    OT = [k.v(4, 2) for _ in range(2)]
    for j in range(2):
        for h in range(2):
            k(f"ds_read_b64_tr_b16 {OT[j][2 * h:2 * h + 2]}, {vt} offset:{L_XL + j * 1024 + h * 64}")
    so = scratch_srd('out', 2048 * 512 * 2)
    vo = k.v()
    k(f"v_and_b32 {vo}, 7, {n}")
    k(f"v_lshlrev_b32 {vo}, 15, {vo}")
    k(f"v_lshrrev_b32 {tv}, 3, {n}")
    k(f"v_lshl_add_u32 {vo}, {tv}, 4, {vo}")
    k(f"v_lshl_add_u32 {vo}, {g}, 5, {vo}")
    k(f"s_lshl_b32 {t0}, {a8}, 8")
    k(f"s_add_u32 {t0}, {t0}, {bs}")
    k(f"s_lshl_b32 {t0}, {t0}, 10")
    k(f"s_lshl_b32 {t1}, {wv}, 8")
    k(f"s_add_u32 {t0}, {t0}, {t1}")
    for j in range(2):
        k(f"buffer_store_dwordx4 {OT[j]}, {vo}, {so}, {t0} offen offset:{j * 128}")
    if OPT['stamps']:
        k.stamp('final')
        k.stamp('drain', "s_waitcnt vmcnt(0)")
        k(f"v_lshlrev_b32 {vt}, 2, {lane}")
        k(f"s_lshl_b32 {t0}, s2, 8")
        k(f"s_add_u32 {t0}, {t0}, {TS_OFF}")
        k(f"s_mov_b32 {sws[2]}, {hex(TS_OFF + 0x100000)}")
        k(f"s_cmp_lg_u32 {wv}, 0")
        k("s_cbranch_scc1 L_end")
        k(f"buffer_store_dword {k.v_ts}, {vt}, {sws}, {t0} offen")
    k("L_end:")
    k("s_endpgm")
    k("L_code_end:", manual=True)
    body = k.a.finish(sched=OPT['sched'])
    body += ".p2align 8\n.type L_tables,@object\nL_tables:\n" + ttext + f".size L_tables, {toff['total']}\nL_tables_end:\n"
    print(f"vgpr={k.V.hi} agpr={k.A.hi} sgpr={k.S.hi} lds={LDS_BYTES} instrs={k.a.count()}")
    return k, body


def write(path):
    k, body = build()
    hdr = list(HDR)
    hdr.append(f"; @launch grid=(256,1,1) block=(256,1,1) lds={LDS_BYTES}")
    hdr.append('.amdgcn_target "amdgcn-amd-amdhsa--gfx950"')
    hdr.append('.text')
    txt = '\n'.join(hdr) + '\n' + kernel_text(KN, body)
    txt += '.section .rodata,"a"\n' + descriptor(KN, 256 + max(k.A.hi, 8), max(k.S.hi, 16), accum=256)
    open(path, 'w').write(txt)
    return k


def stamp_sequence(names):
    i0 = names.index('RF')
    i1 = names.index('resid') + 1
    body = names[i0:i1]
    second = [x for x in body if x not in ('w1b', 'arr', 'w1a', 'wait') and not x.startswith('i_')]
    return names[:i1] + second + names[i1:]


if __name__ == '__main__':
    for a_ in sys.argv[2:]:
        kk_, vv_ = a_.split('=')
        OPT[kk_] = eval(vv_)
    if len(sys.argv) > 1 and sys.argv[1] not in ('stamps', 'plain'):
        write(sys.argv[1])
    elif len(sys.argv) > 1 and sys.argv[1] == 'stamps':
        OPT['stamps'] = True
        OPT['fine'] = True
        kk = write('p3_ts.s')
        open('p3_ts.names', 'w').write(','.join(stamp_sequence(kk.stamp_names)))
    else:
        write('p3.s')
```

```python
import struct
import sys
from common import *
import gen
import tables
from gen import fhex, ROWLANE, pack4, op_CS, op_SC, op_CnS, op_nSC

X1_B, Z_B, U_B, Y_B = 0x0000000, 0x0400000, 0x0800000, 0x0C00000
IT_STRIDE = 0x200000
WT_B, WT_BLK = 0x1000000, 8256
FL_B = 0x1400000
WS_USED = 0x1500000
TS_OFF = 0x2000000
OOB = 0x7FFFFFF0
SPIN_MAX = 1 << 15

L_XL = 0
L_IMG = 8192
L_XCH = 16384
L_WIM = 32768
L_WST = L_WIM
L_QX = L_WIM - 64
L_K = 49152
KG_ROW = 528
KG_CH = 96 * KG_ROW
L_KX = L_K + 2 * KG_CH
L_KOP = L_K
LDS_BYTES = L_KX + 4096

OPT = dict(stamps=False, prefetch=True, sched=True, ackfirst=True, latefill=True, depth=1, sleep=0, presleep=0,
           windows={'1a': ['T2', 'KP', 'KT0'], '1b': ['T3'], '2p': ['T4', 'KT1'], '2': ['BAR', 'KM'], '3p': ['KE'], '3': ['BAR', 'KX']})


class PK(gen.K):
    def __init__(self, name):
        super().__init__(name, 256, vlimit=256)
        self.A = Regs('a', 0, 256)
        self.S = Regs('s', 4, 102)
        self.stamp_names = []

    def stamp(self, name='', wait=None):
        if not OPT['stamps']:
            return
        if OPT.get('only') and name not in OPT['only']:
            return
        if wait:
            self(wait)
        self.stamp_names.append(name)
        t = self.s_tmp2
        self(f"s_memrealtime {t}")
        self("s_waitcnt lgkmcnt(0)")
        self(f"v_writelane_b32 {self.v_ts}, {t[0]}, m0")
        self("s_add_u32 m0, m0, 1")


def build():
    k = PK(KN)
    ttext, toff = tables.emit()
    k("s_cmp_ge_u32 s2, 256")
    k("s_cbranch_scc1 L_end")
    ptr = {}
    big = k.s(16, 4)
    big2 = k.s(8, 4)
    tail = k.s(4, 4)
    k(f"s_load_dwordx16 {big}, s[0:1], 0")
    k(f"s_load_dwordx8 {big2}, s[0:1], 64")
    k(f"s_load_dwordx4 {tail}, s[0:1], 96")
    ptr['ws'] = k.s(2)
    k(f"s_load_dwordx2 {ptr['ws']}, s[0:1], 112")
    for i, nm in enumerate(['A_x', 'A_w_r', 'A_w_i', 'B_u', 'B_A_re', 'B_A_im', 'B_B_re', 'B_B_im']):
        ptr[nm] = big[2 * i:2 * i + 2]
    for i, nm in enumerate(['B_C_re', 'B_C_im', 'B_log_dt', 'B_Dskip']):
        ptr[nm] = big2[2 * i:2 * i + 2]
    ptr['out'], ptr['debug'] = tail[0:2], tail[2:4]
    lane, n, g = k.v(), k.v(), k.v()
    wv = k.s()
    tv = k.v()
    k(f"v_lshrrev_b32 {tv}, 6, v0")
    k(f"v_and_b32 {lane}, 63, v0")
    k(f"v_readfirstlane_b32 {wv}, {tv}")
    k(f"v_and_b32 {n}, 15, v0")
    k(f"v_lshrrev_b32 {g}, 4, {lane}")
    Lid, t0, t1, t2 = k.s(), k.s(), k.s(), k.s()
    k(f"s_and_b32 {Lid}, s2, 7")
    k(f"s_lshl_b32 {Lid}, {Lid}, 5")
    k(f"s_lshr_b32 {t0}, s2, 3")
    k(f"s_add_u32 {Lid}, {Lid}, {t0}")
    bs, a8, it = k.s(), k.s(), k.s()
    k(f"s_and_b32 {bs}, {Lid}, 31")
    k(f"s_lshr_b32 {a8}, {Lid}, 5")
    k(f"s_mov_b32 {it}, 0")
    rg, kt, w16 = k.s(), k.s(), k.s()
    k(f"s_lshr_b32 {rg}, {wv}, 1")
    k(f"s_and_b32 {kt}, {wv}, 1")
    k(f"s_lshl_b32 {w16}, {wv}, 4")
    nonce = k.s()
    pc = k.s(2)
    k(f"s_getpc_b64 {pc}")
    k("L_pc_here:", manual=True)
    tb = k.s(2)
    k(f"s_add_u32 {tb[0]}, {pc[0]}, L_tables-L_pc_here")
    k(f"s_addc_u32 {tb[1]}, {pc[1]}, 0")
    vl16 = k.v()
    k(f"v_lshlrev_b32 {vl16}, 4, {lane}")
    if OPT['stamps']:
        k.s_tmp2, k.v_ts = k.s(2), k.v()
        k("s_mov_b32 m0, 0")
        k(f"v_mov_b32 {k.v_ts}, 0")
        k.stamp('entry')

    ACC = k.A.alloc(84 + 16 + 136, 4)
    cm, pk_, pw = ACC[0:84], ACC[84:100], ACC[100:236]
    RFA2, Gall, RIH, RIA2, RItw = cm[0:4], cm[4:44], cm[44:64], cm[64:68], cm[68:84]
    G = [[Gall[10 * (2 * t + q):10 * (2 * t + q) + 10] for q in range(2)] for t in range(2)]
    H = [RIH[0:10], RIH[10:20]]
    RFB1, RFtw = pk_[0:8], pk_[8:16]
    Fall, TW0a, FCSall, I2all, TW1a = pw[0:40], pw[40:72], pw[72:88], pw[88:104], pw[104:136]
    F = [Fall[10 * q:10 * q + 10] for q in range(4)]
    FC = [FCSall[8 * q:8 * q + 4] for q in range(2)]
    FS = [FCSall[8 * q + 4:8 * q + 8] for q in range(2)]
    I2 = [I2all[4 * q:4 * q + 4] for q in range(4)]
    WQa = k.A.alloc(16, 2)
    tbase = {'common': k.s(2), 'perkt': k.s(2), 'perw': k.s(2)}
    k(f"s_mov_b32 {tbase['common'][0]}, {tb[0]}")
    k(f"s_mov_b32 {tbase['common'][1]}, {tb[1]}")
    k(f"s_mul_i32 {t0}, {kt}, {toff['perkt_stride']}")
    k(f"s_add_u32 {t0}, {t0}, {toff['perkt']}")
    k(f"s_add_u32 {tbase['perkt'][0]}, {tb[0]}, {t0}")
    k(f"s_addc_u32 {tbase['perkt'][1]}, {tb[1]}, 0")
    k(f"s_mul_i32 {t0}, {wv}, {toff['perw_stride']}")
    k(f"s_add_u32 {t0}, {t0}, {toff['perw']}")
    k(f"s_add_u32 {tbase['perw'][0]}, {tb[0]}, {t0}")
    k(f"s_addc_u32 {tbase['perw'][1]}, {tb[1]}, 0")
    k.S.free(tb)

    HELD = []

    def release():
        k.V.free(*HELD)
        del HELD[:]

    def tload(sec, regs, first_reg):
        c0 = first_reg // 4
        vt_ = {}
        for i in range(regs.n // 4):
            byte = (c0 + i) * 1024
            hi, lo = byte // 4096 * 4096, byte % 4096
            if hi not in vt_:
                vt_[hi] = k.v()
                k(f"v_add_u32 {vt_[hi]}, {hi}, {vl16}")
            k(f"global_load_dwordx4 {regs[4 * i:4 * i + 4]}, {vt_[hi]}, {tbase[sec]} offset:{lo}")
        HELD.extend(vt_.values())

    tload('common', RFA2, 0)
    tload('perkt', pk_, 0)
    release()
    k("s_waitcnt lgkmcnt(0)")
    sws = k.srd(ptr['ws'], 0, WS_USED)
    scr = k.s(4)

    def scratch_srd(nm, size):
        k(f"s_mov_b32 {scr[0]}, {ptr[nm][0]}")
        k(f"s_mov_b32 {scr[1]}, {ptr[nm][1]}")
        k(f"s_mov_b32 {scr[2]}, {hex(size)}")
        k(f"s_mov_b32 {scr[3]}, 0x20000")
        return scr
    k.stamp('kernarg')

    XR = [k.v(4, 2) for _ in range(2)]
    va = k.v()
    sx = scratch_srd('A_x', 2048 * 512 * 2)
    k(f"s_lshl_b32 {t0}, {a8}, 8")
    k(f"s_add_u32 {t0}, {t0}, {bs}")
    k(f"s_lshl_b32 {t1}, {wv}, 5")
    k(f"s_add_u32 {t0}, {t0}, {t1}")
    k(f"s_lshl_b32 {t0}, {t0}, 10")
    k(f"s_add_u32 {t1}, {t0}, {4 * 32 * 1024}")
    k(f"buffer_load_dwordx4 {XR[0]}, {vl16}, {sx}, {t0} offen")
    k(f"buffer_load_dwordx4 {XR[1]}, {vl16}, {sx}, {t1} offen")
    sd = scratch_srd('debug', 256)
    k("s_cmp_lg_u32 s2, 0")
    k("s_cbranch_scc1 L_nonce_done", manual=True)
    k(f"s_cmp_lg_u32 {wv}, 0")
    k("s_cbranch_scc1 L_nonce_done", manual=True)
    tm = k.s(2)
    k(f"s_memrealtime {tm}")
    k("s_waitcnt lgkmcnt(0)")
    k(f"s_or_b32 {tm[0]}, {tm[0]}, 1")
    vz = k.v()
    k(f"v_mov_b32 {vz}, {tm[0]}")
    k(f"v_mov_b32 {va}, {hex(OOB)}")
    k(f"v_cmp_eq_u32 vcc, 0, {lane}")
    k(f"v_cndmask_b32 {va}, {va}, 0, vcc")
    k(f"buffer_store_dword {vz}, {va}, {sd}, 0 offen sc1")
    k("s_nop 1")
    k("L_nonce_done:", manual=True)
    k.S.free(tm)
    k.V.free(vz)
    Wraw = [[k.v() for _ in range(2)] for _ in range(8)]
    wb = k.s()
    k(f"s_lshr_b32 {t0}, {Lid}, 6")
    k(f"s_lshl_b32 {t0}, {t0}, 9")
    k(f"s_and_b32 {t1}, {Lid}, 63")
    k(f"s_add_u32 {wb}, {t0}, {t1}")
    k(f"s_mul_i32 {wb}, {wb}, 514")
    vin, vny, vnm = k.v(), k.v(), k.v()
    k(f"v_lshlrev_b32 {vin}, 1, v0")
    ksb = k.s()
    k(f"s_add_u32 {ksb}, {t0}, {t1}")
    k(f"v_lshlrev_b32 {vny}, 6, v0")
    k(f"v_add_u32 {vny}, {ksb}, {vny}")
    k(f"v_sub_u32 {vnm}, 2048, {vny}")
    k(f"v_and_b32 {vnm}, 2047, {vnm}")
    k(f"v_mul_u32_u24 {vny}, 514, {vny}")
    k(f"v_mul_u32_u24 {vnm}, 514, {vnm}")
    k(f"v_mov_b32 {tv}, {hex(OOB)}")
    k(f"v_cmp_gt_u32 vcc, 8, v0")
    k(f"v_cndmask_b32 {vny}, {tv}, {vny}, vcc")
    k(f"v_cndmask_b32 {vnm}, {tv}, {vnm}, vcc")
    k.S.free(ksb)
    wo = [k.s() for _ in range(8)]
    for rho in range(8):
        k(f"s_add_u32 {wo[rho]}, {wb}, {rho * 64 * 514}")
    WE = {}
    for c, nm in ((0, 'A_w_r'), (1, 'A_w_i')):
        sr = scratch_srd(nm, 2048 * 257 * 2)
        for rho in range(8):
            k(f"buffer_load_ushort {Wraw[rho][c]}, {vin}, {sr}, {wo[rho]} offen")
        for nm2, vv, off in (('a', vny, 0), ('b', vny, 512), ('ar', vnm, 0), ('br', vnm, 512)):
            WE[nm2, c] = k.v()
            k(f"buffer_load_ushort {WE[nm2, c]}, {vv}, {sr}, 0 offen offset:{off}")
    k.V.free(vin, vny, vnm)
    k.S.free(wb, *wo)
    par = {}
    k(f"s_lshl_b32 {t0}, {Lid}, 9")
    k(f"s_lshl_b32 {t1}, {rg}, 8")
    k(f"s_add_u32 {t0}, {t0}, {t1}")
    k(f"v_lshlrev_b32 {va}, 2, {lane}")
    for nm in ('B_A_re', 'B_A_im', 'B_B_re', 'B_B_im', 'B_C_re', 'B_C_im'):
        sr = scratch_srd(nm, 512 * 128 * 2)
        par[nm] = k.v()
        k(f"buffer_load_dword {par[nm]}, {va}, {sr}, {t0} offen")
    sr = scratch_srd('B_log_dt', 1024)
    ld = k.v()
    k(f"s_lshl_b32 {t1}, {Lid}, 2")
    k(f"s_lshl_b32 {t0}, {rg}, 1")
    k(f"s_add_u32 {t0}, {t0}, {t1}")
    k(f"v_mov_b32 {va}, 0")
    k(f"buffer_load_ushort {ld}, {va}, {sr}, {t0} offen")
    dsk = k.s()
    k(f"s_load_dword {dsk}, {ptr['B_Dskip']}, {t1}")
    PF = [k.v(4, 2), k.v(4, 2)]
    k(f"s_lshr_b32 {t0}, s2, 3")
    k(f"s_lshl_b32 {t0}, {t0}, 2")
    k(f"s_add_u32 {t0}, {t0}, {wv}")
    k(f"s_lshl_b32 {t0}, {t0}, 11")
    k(f"s_min_u32 {t0}, {t0}, L_tables_end-L_pc_here-2048")
    k(f"v_add_u32 {va}, {t0}, {vl16}")
    k(f"global_load_dwordx4 {PF[0]}, {va}, {pc}")
    k(f"global_load_dwordx4 {PF[1]}, {va}, {pc} offset:1024")
    k.S.free(pc)
    k.V.free(va)
    k.stamp('ldissue')

    TWV = k.v(32, 2)
    TW = [[TWV[8 * i + 4 * j:8 * i + 4 * j + 4] for j in range(2)] for i in range(4)]
    WP = [k.v(8, 2) for _ in range(2)]
    KF = [[k.v(4, 2) for _ in range(2)] for _ in range(2)]
    GL = PF
    SENT = k.v(4, 2)
    for i in range(4):
        k(f"v_mov_b32 {SENT[i]}, -1")
    dcm, sgn = k.v(), k.v()
    k(f"s_lshl_b32 {t1}, {kt}, 4")
    k(f"v_add_u32 {dcm}, {t1}, {n}")
    k(f"v_lshl_add_u32 {dcm}, {dcm}, 2, {g}")
    k(f"v_cmp_eq_u32 vcc, 0, {dcm}")
    k(f"v_cndmask_b32 {dcm}, 0, 1.0, vcc")
    k(f"v_lshlrev_b32 {sgn}, 31, {n}")
    vUl, vG, vzo = k.v(), k.v(), k.v()
    k(f"v_lshlrev_b32 {vUl}, 4, v0")
    k(f"v_lshrrev_b32 {vG}, 1, v0")
    k(f"v_lshlrev_b32 {vG}, 13, {vG}")
    k(f"v_and_b32 {tv}, 1, v0")
    k(f"v_lshl_add_u32 {vG}, {tv}, 4, {vG}")
    g1, g2 = k.v(), k.v()
    k(f"v_and_b32 {g1}, 1, {g}")
    k(f"v_lshrrev_b32 {g2}, 1, {g}")
    k(f"v_lshlrev_b32 {vzo}, 10, {g2}")
    k(f"v_lshl_add_u32 {vzo}, {n}, 5, {vzo}")
    k(f"v_lshl_add_u32 {vzo}, {g1}, 4, {vzo}")
    vRFr, vRFs, vCAo, vXw, vRIz, vRIx, vCBi, vCBo, vCBe = [k.v() for _ in range(9)]
    k(f"v_lshlrev_b32 {vRFr}, 10, {g}")
    k(f"v_lshl_add_u32 {vRFr}, {n}, 4, {vRFr}")
    k(f"s_lshl_b32 {t0}, {rg}, 3")
    k(f"v_add_u32 {vRFr}, {t0}, {vRFr}")
    k(f"v_lshl_add_u32 {vRFs}, {g}, 6, {n}")
    k(f"s_lshl_b32 {t0}, {kt}, 4")
    k(f"v_add_u32 {vRFs}, {t0}, {vRFs}")
    k(f"v_lshlrev_b32 {vRFs}, 5, {vRFs}")
    k(f"s_lshl_b32 {t0}, {rg}, 4")
    k(f"v_add_u32 {vRFs}, {t0}, {vRFs}")
    k(f"v_lshl_add_u32 {vCAo}, {g2}, 5, {n}")
    k(f"v_lshlrev_b32 {vCAo}, 5, {vCAo}")
    k(f"v_lshl_add_u32 {vCAo}, {g1}, 4, {vCAo}")
    k(f"s_lshl_b32 {t0}, {wv}, 11")
    k(f"v_add_u32 {vXw}, {t0}, {vl16}")
    k(f"v_lshlrev_b32 {vRIz}, 11, {g}")
    k(f"v_lshl_add_u32 {vRIz}, {n}, 5, {vRIz}")
    k(f"s_lshl_b32 {t0}, {wv}, 3")
    k(f"v_add_u32 {vRIz}, {t0}, {vRIz}")
    k(f"v_lshlrev_b32 {vRIx}, 11, {g}")
    k(f"v_lshl_add_u32 {vRIx}, {n}, 4, {vRIx}")
    k(f"s_lshl_b32 {t0}, {wv}, 2")
    k(f"v_add_u32 {vRIx}, {t0}, {vRIx}")
    k(f"v_lshrrev_b32 {vCBi}, 1, v0")
    k(f"v_lshlrev_b32 {vCBi}, 4, {vCBi}")
    k(f"v_and_b32 {tv}, 1, v0")
    k(f"v_lshl_add_u32 {vCBi}, {tv}, 12, {vCBi}")
    k(f"v_lshlrev_b32 {vCBo}, 9, {g}")
    k(f"v_lshl_add_u32 {vCBo}, {n}, 4, {vCBo}")
    k(f"v_lshlrev_b32 {vCBe}, 9, {g2}")
    k(f"v_lshl_add_u32 {vCBe}, {n}, 4, {vCBe}")
    k(f"v_lshl_add_u32 {vCBe}, {g1}, 3, {vCBe}")
    k(f"s_lshl_b32 {t0}, {wv}, 10")
    k(f"v_add_u32 {vCBe}, {t0}, {vCBe}")
    k.V.free(g1, g2)
    slo, shi, smask, sones = k.s(), k.s(), k.s(), k.s()
    k(f"s_mov_b32 {slo}, 0x05040100")
    k(f"s_mov_b32 {shi}, 0x07060302")
    k(f"s_mov_b32 {smask}, 0xffff0000")
    k(f"s_mov_b32 {sones}, 0x3f803f80")
    sblk, sblkw, sslot = k.s(), k.s(), k.s()
    k(f"s_lshl_b32 {sblk}, {Lid}, 13")
    k(f"s_lshl_b32 {t0}, {wv}, 11")
    k(f"s_add_u32 {sblkw}, {sblk}, {t0}")
    k(f"s_lshl_b32 {sslot}, {Lid}, 5")
    ds2 = [k.s(2), k.s(2)]
    k(f"s_lshl_b32 {ds2[0][0]}, {dsk}, 16")
    k(f"s_and_b32 {ds2[1][0]}, {dsk}, 0xffff0000")
    k.S.free(dsk)
    sga, sgb, sfa, sfb, ssa, ssb = [k.s() for _ in range(6)]
    uid = [0]
    npoll = [0]

    def unpack2(pair, dw):
        k(f"v_lshlrev_b32 {pair[0]}, 16, {dw}")
        k(f"v_and_b32 {pair[1]}, {smask}, {dw}")

    def load_tw(acc):
        for i in range(acc.n):
            k(f"v_accvgpr_read_b32 {TWV[i]}, {acc[i]}")

    def set_offsets(gbase, fbase, sbase, wave_store):
        if gbase is not None:
            k(f"s_add_u32 {sga}, {sslot}, {gbase}")
            k(f"s_add_u32 {sgb}, {sga}, {128 * 8192}")
        if fbase is not None:
            k(f"s_add_u32 {sfa}, {sblk}, {fbase}")
            k(f"s_add_u32 {sfb}, {sfa}, 4096")
        if sbase is not None:
            k(f"s_add_u32 {ssa}, {sblkw if wave_store else sblk}, {sbase}")
            if not wave_store:
                k(f"s_add_u32 {ssb}, {ssa}, 4096")

    def fill():
        k(f"buffer_store_dwordx4 {SENT}, {vUl}, {sws}, {sfa} offen sc1")
        k(f"buffer_store_dwordx4 {SENT}, {vUl}, {sws}, {sfb} offen sc1")

    def gather_issue(first=False):
        if first and OPT['ackfirst']:
            k("s_waitcnt vmcnt(0)")
        if first and OPT['presleep']:
            k(f"s_sleep {OPT['presleep']}")
        k(f"buffer_load_dwordx4 {GL[0]}, {vG}, {sws}, {sga} offen sc1")
        k(f"buffer_load_dwordx4 {GL[1]}, {vG}, {sws}, {sgb} offen sc1")

    def gather_check():
        u = uid[0]
        uid[0] += 1
        x = k.v()
        depth = OPT['depth']
        k(f"s_mov_b32 {t2}, {SPIN_MAX}")
        for d in range(depth - 1):
            if OPT['sleep']:
                k(f"s_sleep {OPT['sleep']}")
            k(".forget_vm")
            gather_issue()
        k(f"L_chk{u}:", manual=True)
        k(f"s_waitcnt vmcnt({2 * (depth - 1)})")
        k(".forget_vm")
        k(f"v_max3_u32 {x}, {GL[0][0]}, {GL[0][1]}, {GL[0][2]}")
        k(f"v_max3_u32 {x}, {x}, {GL[0][3]}, {GL[1][0]}")
        k(f"v_max3_u32 {x}, {x}, {GL[1][1]}, {GL[1][2]}")
        k(f"v_max_u32 {x}, {x}, {GL[1][3]}")
        k(f"v_cmp_eq_u32 vcc, -1, {x}")
        k(f"s_cbranch_vccz L_ok{u}", manual=True)
        k(f"s_sub_u32 {t2}, {t2}, 1")
        k(f"s_cmp_eq_u32 {t2}, 0")
        k(f"s_cbranch_scc1 L_ok{u}", manual=True)
        gather_issue()
        k(".forget_vm")
        k(f"s_branch L_chk{u}", manual=True)
        k(f"L_ok{u}:", manual=True)
        k(".forget_vm")
        if OPT['stamps']:
            k(f"s_sub_u32 {t2}, {SPIN_MAX + 1}, {t2}")
            k(f"s_lshl_b32 {t1}, {it}, 2")
            k(f"s_add_u32 {t1}, {t1}, {48 + npoll[0]}")
            k(f"s_mov_b32 {k.s_tmp2[1]}, m0")
            k(f"s_mov_b32 m0, {t1}")
            k(f"v_writelane_b32 {k.v_ts}, {t2}, m0")
            k(f"s_mov_b32 m0, {k.s_tmp2[1]}")
            npoll[0] += 1
        k.V.free(x)

    KS = {}

    def cstep(dst, z, e, t):
        k(f"v_pk_mul_f32 {t}, {z}, {e} op_sel:[0,0] op_sel_hi:[1,0]")
        k(f"v_pk_fma_f32 {dst}, {z}, {e}, {t} op_sel:[1,1,0] op_sel_hi:[0,1,1] neg_lo:[1,0,0]")

    def kg_params():
        k(f"v_lshlrev_b32 {ld}, 16, {ld}")
        L2E = 1.4426950408889634
        hi = struct.unpack('<f', struct.pack('<I', struct.unpack('<I', struct.pack('<f', L2E))[0] & 0xFFFFFF00))[0]
        lo = L2E - hi
        dt, ta, tb_ = k.v(), k.v(), k.v()
        k(f"v_mul_f32 {ta}, {fhex(hi)}, {ld}")
        k(f"v_mul_f32 {tb_}, {fhex(lo * 0.6931471805599453)}, {ld}")
        k(f"v_exp_f32 {ta}, {ta}")
        k(f"v_fma_f32 {dt}, {ta}, {tb_}, {ta}")
        k.round_bf16(dt, dt, ta)
        slc, slr, sl0 = k.s(), k.s(), k.s()
        k(f"s_cmp_eq_u32 {kt}, 0")
        k(f"s_cselect_b32 {slc}, 1.0, 4.0")
        k(f"s_mov_b32 {slr}, {fhex(32.0)}")
        k(f"s_cselect_b32 {slr}, {slr}, {fhex(128.0)}")
        k(f"s_cselect_b32 {sl0}, 0, {fhex(512.0)}")
        Ec, Er_, zc, zr, tmps = [], [], [], [], []
        for md in range(2):
            p_ = {}
            for nm in par:
                p_[nm] = k.v()
                if md == 0:
                    k(f"v_lshlrev_b32 {p_[nm]}, 16, {par[nm]}")
                else:
                    k(f"v_and_b32 {p_[nm]}, {smask}, {par[nm]}")
            ar, ai = p_['B_A_re'], p_['B_A_im']
            br, bi = p_['B_B_re'], p_['B_B_im']
            cr, ci = p_['B_C_re'], p_['B_C_im']
            for x in (ar, ai, br, bi):
                k(f"v_mul_f32 {x}, {dt}, {x}")
            cc = k.v(2, 2)
            k(f"v_mul_f32 {cc[0]}, {cr}, {br}")
            k(f"v_mul_f32 {cc[1]}, {cr}, {bi}")
            k(f"v_fma_f32 {cc[0]}, -{ci}, {bi}, {cc[0]}")
            k(f"v_fma_f32 {cc[1]}, {ci}, {br}, {cc[1]}")
            k(f"v_mul_f32 {ar}, {fhex(L2E)}, {ar}")
            k(f"v_mul_f32 {ai}, {fhex(1 / (2 * 3.141592653589793))}, {ai}")
            es = []
            for sl in (slc, slr, sl0):
                e, x, y = k.v(2, 2), k.v(), k.v()
                k(f"v_mul_f32 {x}, {sl}, {ar}")
                k(f"v_mul_f32 {y}, {sl}, {ai}")
                k(f"v_exp_f32 {x}, {x}")
                k(f"v_fract_f32 {y}, {y}")
                k(f"v_cos_f32 {e[0]}, {y}")
                k(f"v_sin_f32 {e[1]}, {y}")
                k(f"v_mul_f32 {e[0]}, {x}, {e[0]}")
                k(f"v_mul_f32 {e[1]}, {x}, {e[1]}")
                es.append(e)
                tmps += [x, y]
            z1, z2, tp = k.v(2, 2), k.v(2, 2), k.v(2, 2)
            k(f"v_mov_b32 {z1[0]}, 1.0")
            k(f"v_mov_b32 {z1[1]}, 0")
            cstep(z2, cc, es[2], tp)
            tmps += [tp, cc, es[2]] + list(p_.values())
            Ec.append(es[0])
            Er_.append(es[1])
            zc.append(z1)
            zr.append(z2)
        vw = k.v()
        k(f"s_mul_i32 {t0}, {rg}, {KG_CH}")
        k(f"s_mul_i32 {t1}, {kt}, {48 * KG_ROW}")
        k(f"s_add_u32 {t0}, {t0}, {t1}")
        k(f"s_add_u32 {t0}, {t0}, {L_K}")
        k(f"v_lshlrev_b32 {vw}, 3, {lane}")
        k(f"v_add_u32 {vw}, {t0}, {vw}")
        k.V.free(dt, ta, tb_, ld, *tmps, *par.values())
        k.S.free(slc, slr, sl0)
        KS.update(Ec=Ec, Er=Er_, zc=zc, zr=zr, w=vw)

    def kg_tables(part):
        Ec, Er_, zc, zr, vw = KS['Ec'], KS['Er'], KS['zc'], KS['zr'], KS['w']
        tp = [k.v(2, 2) for _ in range(4)]
        pkd = [k.v(2, 2) for _ in range(6)]
        for i in range(8 * part, 8 * part + 8):
            pp = pkd[3 * (i & 1):3 * (i & 1) + 3]
            for md in range(2):
                k.pk(pp[0][md], zr[md][0], f"-{zr[md][1]}")
                k.pk(pp[1][md], zc[md][0], zc[md][1])
            k(f"ds_write_b64 {vw}, {pp[0]} offset:{i * KG_ROW}")
            k(f"ds_write_b64 {vw}, {pp[1]} offset:{(16 + 2 * i) * KG_ROW}")
            for md in range(2):
                cstep(zc[md], zc[md], Ec[md], tp[md])
                if i < 15:
                    cstep(zr[md], zr[md], Er_[md], tp[2 + md])
            for md in range(2):
                k.pk(pp[2][md], zc[md][0], zc[md][1])
            k(f"ds_write_b64 {vw}, {pp[2]} offset:{(17 + 2 * i) * KG_ROW}")
            if i < 15:
                for md in range(2):
                    cstep(zc[md], zc[md], Ec[md], tp[md])
        k.V.free(*tp, *pkd)
        if part == 1:
            k.V.free(*Ec, *Er_, *zc, *zr, vw)

    def kg_matmul():
        ch, blkid = rg, kt
        k(f"s_mul_i32 {t0}, {ch}, {KG_CH}")
        k(f"s_mul_i32 {t1}, {blkid}, {48 * KG_ROW}")
        k(f"s_add_u32 {t0}, {t0}, {t1}")
        k(f"s_add_u32 {t0}, {t0}, {L_K}")
        vr = k.v()
        k(f"v_mul_u32_u24 {vr}, {KG_ROW}, {n}")
        k(f"v_lshl_add_u32 {vr}, {g}, 4, {vr}")
        k(f"v_add_u32 {vr}, {t0}, {vr}")
        D = [k.v(4, 2) for _ in range(2)]
        bufs = [[k.v(4, 2) for _ in range(3)] for _ in range(4)]
        for ks in range(8):
            Ar, B0, B1 = bufs[ks % 4]
            k(f"ds_read_b128 {Ar}, {vr} offset:{ks * 64}")
            k(f"ds_read_b128 {B0}, {vr} offset:{16 * KG_ROW + ks * 64}")
            k(f"ds_read_b128 {B1}, {vr} offset:{32 * KG_ROW + ks * 64}")
            k.mfma(D[0], Ar, B0, D[0] if ks else None)
            k.mfma(D[1], Ar, B1, D[1] if ks else None)
        vq = k.v()
        k(f"s_lshl_b32 {t0}, {wv}, 10")
        k(f"s_add_u32 {t0}, {t0}, {L_KX}")
        k(f"v_lshlrev_b32 {vq}, 8, {g}")
        k(f"v_lshl_add_u32 {vq}, {n}, 1, {vq}")
        k(f"v_add_u32 {vq}, {t0}, {vq}")
        tt = [k.v() for _ in range(8)]
        for nt in range(2):
            for r in range(4):
                k.pk(tt[4 * nt + r], D[nt][r], D[nt][r])
                k(f"ds_write_b16 {vq}, {tt[4 * nt + r]} offset:{r * 64 + nt * 32}")
        k.V.free(vr, vq, *tt, *D, *[x for b in bufs for x in b])

    def kg_expand():
        ch, q = rg, kt
        IDX = k.v(8, 2)
        va_ = k.v()
        k(f"v_add_u32 {va_}, 4096, {vl16}")
        k(f"global_load_dwordx4 {IDX[0:4]}, {va_}, {tbase['perkt']} offset:0")
        k(f"global_load_dwordx4 {IDX[4:8]}, {va_}, {tbase['perkt']} offset:1024")
        kxb = k.s()
        k(f"s_lshl_b32 {kxb}, {ch}, 11")
        k(f"s_add_u32 {kxb}, {kxb}, {L_KX}")
        OPS = [k.v(4, 2) for _ in range(2)]
        vals = [[k.v() for _ in range(8)] for _ in range(2)]
        slow16 = k.s()
        k(f"s_mov_b32 {slow16}, 0xffff")
        for mt in range(2):
            for j in range(8):
                x, src = vals[mt][j], IDX[4 * mt + (j >> 1)]
                if j & 1:
                    k(f"v_lshrrev_b32 {x}, 16, {src}")
                else:
                    k(f"v_and_b32 {x}, {slow16}, {src}")
                k(f"v_add_u32 {x}, {kxb}, {x}")
                k(f"ds_read_u16 {x}, {x}")
        for mt in range(2):
            for jp in range(4):
                k(f"v_lshl_or_b32 {OPS[mt][jp]}, {vals[mt][2 * jp + 1]}, 16, {vals[mt][2 * jp]}")
        vb = k.v()
        k(f"s_lshl_b32 {t0}, {ch}, 12")
        k(f"s_lshl_b32 {t1}, {q}, 10")
        k(f"s_add_u32 {t0}, {t0}, {t1}")
        k(f"s_add_u32 {t0}, {t0}, {L_KOP}")
        k(f"v_add_u32 {vb}, {t0}, {vl16}")
        for mt in range(2):
            k(f"ds_write_b128 {vb}, {OPS[mt]} offset:{mt * 2048}")
        k.V.free(*OPS, vb, va_, IDX, *vals[0], *vals[1])
        k.S.free(kxb, slow16)

    class Chan:
        def __init__(self):
            self.D = [[k.v(4, 2) for _ in range(2)] for _ in range(2)]
            self.T = [[k.v(4, 2) for _ in range(2)] for _ in range(2)]
            self.E = self.D
            self.B = [k.v(4, 2) for _ in range(2)]

        def free(self):
            k.V.free(*self.D[0], *self.D[1], *self.T[0], *self.T[1], *self.B)

    def fwd_half(C):
        fc, fs = TW[0], TW[1]
        for mt in range(2):
            for r in range(4):
                k.cmul(C.T[0][mt][r], C.T[1][mt][r], C.D[0][mt][r], C.D[1][mt][r], fc[mt][r], fs[mt][r], False)
            pack4(k, C.B[mt], C.T[0][mt], C.T[1][mt])
        for q in range(2):
            for m2 in range(2):
                k.mfma(C.E[0][m2], op_CS(G[m2][q]), C.B[q], C.E[0][m2] if q else None)
                k.mfma(C.E[1][m2], op_nSC(G[m2][q]), C.B[q], C.E[1][m2] if q else None)

    def inv_half(C, XO):
        ic, is_ = TW[2], TW[3]
        for m2 in range(2):
            pack4(k, C.B[m2], C.T[0][m2], C.T[1][m2])
        for nt in range(2):
            for q in range(2):
                k.mfma(C.D[0][nt], C.B[q], op_CnS(G[nt][q]), C.D[0][nt] if q else None)
                k.mfma(C.D[1][nt], C.B[q], op_SC(G[nt][q]), C.D[1][nt] if q else None)
        for nt in range(2):
            for r in range(4):
                k.cmul(C.T[0][nt][r], C.T[1][nt][r], C.D[0][nt][r], C.D[1][nt][r], ic[nt][r], is_[nt][r], True)
            pack4(k, XO[nt], C.T[0][nt], C.T[1][nt])

    def kg_transform():
        vr = k.v()
        k(f"v_add_u32 {vr}, {L_KOP}, {vl16}")
        sc = fhex(1.0 / 2048)
        Cs = [Chan(), Chan()]
        U = [[[k.v(4, 2) for _ in range(2)] for _ in range(2)] for _ in range(2)]
        for c in range(2):
            for mt in range(2):
                for q in range(2):
                    k(f"ds_read_b128 {U[c][mt][q]}, {vr} offset:{c * 4096 + mt * 2048 + q * 1024}")
        for c in range(2):
            C = Cs[c]
            for mt in range(2):
                for q in range(2):
                    k.mfma(C.D[0][mt], U[c][mt][q], FC[q], C.D[0][mt] if q else None)
                    k.mfma(C.D[1][mt], U[c][mt][q], FS[q], C.D[1][mt] if q else None)
            fwd_half(C)
            for m2 in range(2):
                for r in range(4):
                    k(f"v_mul_f32 {C.E[0][m2][r]}, {sc}, {C.E[0][m2][r]}")
                    k(f"v_mul_f32 {C.E[1][m2][r]}, {sc}, {C.E[1][m2][r]}")
                pack4(k, KF[c][m2], C.E[0][m2], C.E[1][m2])
        for c in range(2):
            Cs[c].free()
            k.V.free(*U[c][0], *U[c][1])
        k.V.free(vr)

    ITEMS = {'KP': kg_params, 'KT0': lambda: kg_tables(0), 'KT1': lambda: kg_tables(1), 'KM': kg_matmul,
             'KE': kg_expand, 'KX': kg_transform, 'BAR': lambda: k("s_barrier"),
             'T2': lambda: (tload('perw', pw[0:72], 0), tload('common', cm[4:44], 4)),
             'T3': lambda: tload('common', cm[44:84], 44), 'T4': lambda: tload('perw', pw[72:136], 72)}

    def window(name, pre=()):
        items = list(pre) + OPT['windows'].get(name, [])
        if not items:
            return
        u = uid[0]
        uid[0] += 1
        k(f"s_cmp_lg_u32 {it}, 0")
        k(f"s_cbranch_scc1 L_side{u}", manual=True)
        for nm in items:
            ITEMS[nm]()
            if OPT.get('fine') and not nm.startswith('T') and nm != 'BAR':
                k.stamp('i_' + nm)
        release()
        k("s_waitcnt lgkmcnt(0)")
        k("s_nop 7")
        k(f"L_side{u}:", manual=True)
        k.stamp('w' + name)

    k(f"s_lshl_b32 {t0}, {wv}, 10")
    k(f"s_add_u32 {t0}, {t0}, {L_WIM}")
    vt = k.v()
    k(f"v_add_u32 {vt}, {t0}, {vl16}")
    k(f"ds_write_b128 {vt}, {XR[0]}")
    k(f"ds_write_b128 {vt}, {XR[1]} offset:4096")
    k(f"v_lshrrev_b32 {tv}, 2, {n}")
    k(f"v_lshlrev_b32 {vt}, 10, {tv}")
    k(f"v_and_b32 {tv}, 3, {n}")
    k(f"v_lshl_add_u32 {vt}, {tv}, 3, {vt}")
    k(f"v_lshl_add_u32 {vt}, {g}, 5, {vt}")
    k(f"s_lshl_b32 {t0}, {wv}, 8")
    k(f"s_add_u32 {t0}, {t0}, {L_WIM}")
    k(f"v_add_u32 {vt}, {t0}, {vt}")
    k("s_barrier")
    for j in range(2):
        k(f"ds_read_b64_tr_b16 {XR[j][0:2]}, {vt} offset:{j * 128}")
        k(f"ds_read_b64_tr_b16 {XR[j][2:4]}, {vt} offset:{j * 128 + 4096}")
    for j in range(2):
        k(f"ds_write_b128 {vXw}, {XR[j]} offset:{L_XL + j * 1024}")
    k.V.free(vt, *XR)
    vtag, vzero = k.v(), k.v()
    sd = scratch_srd('debug', 256)
    k(f"v_mov_b32 {vzero}, 0")
    k(f"buffer_load_dword {vtag}, {vzero}, {sd}, 0 offen sc1")
    load_tw(RFtw)
    set_offsets(None, Z_B, X1_B, False)
    fill()
    k("s_barrier")
    k.stamp('p1a')

    def w_transpose():
        Wd = k.v(8, 2)
        for rho in range(0, 8, 2):
            for c in range(2):
                reg = Wd[(rho >> 2) * 4 + c * 2 + ((rho & 3) >> 1)]
                k(f"v_lshl_or_b32 {reg}, {Wraw[rho + 1][c]}, 16, {Wraw[rho][c]}")
        vt2, vt3 = k.v(), k.v()
        k(f"v_lshlrev_b32 {vt2}, 5, v0")
        k(f"ds_write_b128 {vt2}, {Wd[0:4]} offset:{L_WST}")
        k(f"ds_write_b128 {vt2}, {Wd[4:8]} offset:{L_WST + 16}")
        for key in WE:
            k(f"v_lshlrev_b32 {WE[key]}, 16, {WE[key]}")
        k(f"v_add_f32 {WE['a', 0]}, {WE['a', 0]}, {WE['ar', 0]}")
        k(f"v_sub_f32 {WE['a', 1]}, {WE['a', 1]}, {WE['ar', 1]}")
        k(f"v_add_f32 {WE['b', 0]}, {WE['b', 0]}, {WE['br', 0]}")
        k(f"v_sub_f32 {WE['b', 1]}, {WE['b', 1]}, {WE['br', 1]}")
        for c in range(2):
            k(f"v_add_f32 {WE['ar', c]}, {WE['a', c]}, {WE['b', c]}")
            k(f"v_sub_f32 {WE['br', c]}, {WE['a', c]}, {WE['b', c]}")
            k(f"v_mul_f32 {WE['ar', c]}, {fhex(0.125)}, {WE['ar', c]}")
            k(f"v_mul_f32 {WE['br', c]}, {fhex(0.125)}, {WE['br', c]}")
            k.pk(WE['ar', c], WE['ar', c], WE['ar', c])
            k.pk(WE['br', c], WE['br', c], WE['br', c])
        k(f"v_lshrrev_b32 {vt3}, 2, v0")
        k(f"v_lshlrev_b32 {vt3}, 4, {vt3}")
        k(f"v_and_b32 {tv}, 3, v0")
        k(f"v_lshl_add_u32 {vt3}, {tv}, 1, {vt3}")
        vt4 = k.v()
        k(f"v_add_u32 {vt4}, {8192 + 64}, {vt3}")
        k(f"v_cmp_gt_u32 vcc, 8, v0")
        k(f"v_cndmask_b32 {vt4}, {vt4}, {vt3}, vcc")
        k(f"v_add_u32 {vt3}, 8192, {vt3}")
        for c in range(2):
            k(f"ds_write_b16 {vt4}, {WE['ar', c]} offset:{L_WST + 8 * c}")
            k(f"ds_write_b16 {vt3}, {WE['br', c]} offset:{L_WST + 8 * c}")
        k.V.free(Wd, vt2, vt3, vt4, *WE.values(), *[x for r in Wraw for x in r])
        k("s_barrier")
        vt = k.v()
        WO = [k.v(4, 2) for _ in range(3)]
        k(f"ds_read_b128 {WO[0]}, {vUl} offset:{L_WST}")
        k(f"ds_read_b128 {WO[1]}, {vUl} offset:{L_WST + 4096}")
        k(f"ds_read_b128 {WO[2]}, {vUl} offset:{L_WST + 8192}")
        k(f"v_add_u32 {vt}, 8192, {vUl}")
        k(f"v_mov_b32 {tv}, {hex(OOB)}")
        k(f"v_cmp_gt_u32 vcc, 2, v0")
        k(f"v_cndmask_b32 {vt}, {tv}, {vt}, vcc")
        k(f"s_mul_i32 {t0}, {Lid}, {WT_BLK}")
        k(f"s_add_u32 {t0}, {t0}, {WT_B}")
        k(f"s_add_u32 {t1}, {t0}, 4096")
        k(f"buffer_store_dwordx4 {WO[0]}, {vUl}, {sws}, {t0} offen sc1")
        k(f"buffer_store_dwordx4 {WO[1]}, {vUl}, {sws}, {t1} offen sc1")
        k(f"buffer_store_dwordx4 {WO[2]}, {vt}, {sws}, {t0} offen sc1")
        k.V.free(vt, *WO)

    k("L_layer:", manual=True)
    Lr = [k.v(2, 2) for _ in range(8)]
    for j in range(8):
        dh = j if j < 4 else 16 + j - 4
        k(f"ds_read_b64 {Lr[j]}, {vRFr} offset:{L_XL + dh * 256}")
    Aop = [k.v(4, 2) for _ in range(4)]
    for rho in range(4):
        for jp in range(4):
            k(f"v_perm_b32 {Aop[rho][jp]}, {Lr[2 * jp + 1][rho >> 1]}, {Lr[2 * jp][rho >> 1]}, {shi if rho & 1 else slo}")
    k.V.free(*Lr)
    Dr = [k.v(4, 2) for _ in range(4)]
    Di = [k.v(4, 2) for _ in range(4)]
    for rho in range(4):
        k.mfma(Dr[rho], Aop[rho], RFB1[0:4])
        k.mfma(Di[rho], Aop[rho], RFB1[4:8])
    Sx = [k.v() for _ in range(4)]
    Qx = [k.v() for _ in range(4)]
    for rho in range(4):
        k(f"v_dot2_f32_bf16 {Sx[rho]}, {Aop[rho][0]}, {sones}, 0")
        k(f"v_dot2_f32_bf16 {Qx[rho]}, {Aop[rho][0]}, {Aop[rho][0]}, 0")
    for jp in range(1, 4):
        for rho in range(4):
            k(f"v_dot2c_f32_bf16 {Sx[rho]}, {sones}, {Aop[rho][jp]}")
            k(f"v_dot2c_f32_bf16 {Qx[rho]}, {Aop[rho][jp]}, {Aop[rho][jp]}")
    Sr = k.reduce4(Sx)
    Qr = k.reduce4(Qx)
    oth, alt = Sx[1], Sx[2]
    k(f"v_mov_b32_dpp {oth}, {Sr} quad_perm:[1,0,3,2] row_mask:0xf bank_mask:0xf")
    k(f"v_add_f32_dpp {Qr}, {Qr}, {Qr} quad_perm:[1,0,3,2] row_mask:0xf bank_mask:0xf")
    k(f"v_sub_f32 {alt}, {Sr}, {oth}")
    k(f"v_add_f32 {Sr}, {Sr}, {oth}")
    mbf, rstd = k.ln_finish(Sr, Qr, Sx[3])
    k(f"v_mul_f32 {mbf}, {fhex(512.0)}, {mbf}")
    s_r = [k.s(2) for _ in range(4)]
    s_m = [k.s() for _ in range(4)]
    s_a = [k.s() for _ in range(4)]
    for rho in range(4):
        k(f"v_readlane_b32 {s_r[rho][0]}, {rstd}, {ROWLANE[rho]}")
        k(f"v_readlane_b32 {s_m[rho]}, {mbf}, {ROWLANE[rho]}")
        k(f"v_readlane_b32 {s_a[rho]}, {alt}, {ROWLANE[rho]}")
    D2 = [k.v(4, 2) for _ in range(4)]
    tr = [k.v(4, 2) for _ in range(4)]
    ti = [k.v(4, 2) for _ in range(4)]
    B2 = [k.v(4, 2) for _ in range(4)]
    for rho in range(4):
        for r in range(4):
            k.cmul(tr[rho][r], ti[rho][r], Dr[rho][r], Di[rho][r], TWV[r], TWV[4 + r], False)
        pack4(k, B2[rho], tr[rho], ti[rho])
        k.mfma(D2[rho], RFA2, B2[rho])
    k.V.free(*tr, *ti, *B2, *Dr, *Di, *Sx, *Qx, *Aop)
    for rho in range(4):
        k(f"v_fma_f32 {D2[rho][0]}, -{dcm}, {s_m[rho]}, {D2[rho][0]}")
        k(f"v_fma_f32 {D2[rho][1]}, {dcm}, {s_a[rho]}, {D2[rho][1]}")
        for h in range(2):
            k(f"v_pk_mul_f32 {D2[rho][2 * h:2 * h + 2]}, {D2[rho][2 * h:2 * h + 2]}, {s_r[rho]} op_sel_hi:[1,0]")
    k.S.free(*s_r, *s_m, *s_a)
    O = [k.v(4, 2) for _ in range(2)]
    for e in range(2):
        k.pk(O[e][0], D2[0][2 * e], D2[1][2 * e])
        k.pk(O[e][1], D2[2][2 * e], D2[3][2 * e])
        k.pk(O[e][2], D2[0][2 * e + 1], D2[1][2 * e + 1])
        k.pk(O[e][3], D2[2][2 * e + 1], D2[3][2 * e + 1])
        k(f"ds_write_b128 {vRFs}, {O[e]} offset:{L_XCH + e * 1024}")
    k.V.free(*D2)

    def store_block(lds_base):
        k("s_waitcnt vmcnt(0)")
        k("s_barrier")
        k(f"ds_read_b128 {O[0]}, {vUl} offset:{lds_base}")
        k(f"ds_read_b128 {O[1]}, {vUl} offset:{lds_base + 4096}")
        k(f"buffer_store_dwordx4 {O[0]}, {vUl}, {sws}, {ssa} offen sc1")
        k(f"buffer_store_dwordx4 {O[1]}, {vUl}, {sws}, {ssb} offen sc1")
    store_block(L_XCH)
    k.stamp('RF')
    k(f"s_cmp_lg_u32 {it}, 0")
    k("s_cbranch_scc1 L_bar1_done", manual=True)
    w_transpose()
    if OPT.get('fine'):
        k.stamp('i_wt')
    sd = scratch_srd('debug', 256)
    x, y = k.v(), k.v()
    q = k.v(4, 2)
    k(f"s_cmp_lg_u32 {wv}, 0")
    k("s_cbranch_scc1 L_tag_done")
    k(f"s_mov_b32 {t2}, {SPIN_MAX}")
    k("L_tag_poll:")
    k(f"v_readfirstlane_b32 {nonce}, {vtag}")
    k(f"s_cmp_lg_u32 {nonce}, 0")
    k("s_cbranch_scc1 L_tag_done")
    k(f"s_sub_u32 {t2}, {t2}, 1")
    k(f"s_cmp_eq_u32 {t2}, 0")
    k("s_cbranch_scc1 L_tag_done")
    k(f"buffer_load_dword {vtag}, {vzero}, {sd}, 0 offen sc1")
    k("s_branch L_tag_poll")
    k("L_tag_done:")
    k("s_waitcnt vmcnt(0)")
    k("s_barrier")
    k(f"s_cmp_lg_u32 {wv}, 0")
    k("s_cbranch_scc1 L_arr_done")
    k(f"v_mov_b32 {y}, {nonce}")
    k(f"v_lshlrev_b32 {x}, 10, {lane}")
    k(f"v_mov_b32 {tv}, {hex(OOB)}")
    k(f"v_cmp_gt_u32 vcc, 8, {lane}")
    k(f"v_cndmask_b32 {x}, {tv}, {x}, vcc")
    k(f"s_lshl_b32 {t1}, {Lid}, 2")
    k(f"s_add_u32 {t0}, {t1}, {FL_B}")
    k(f"buffer_store_dword {y}, {x}, {sws}, {t0} offen sc1")
    k("L_arr_done:")
    k.stamp('arr')
    for nm in OPT['windows'].get('1a', []):
        ITEMS[nm]()
        if OPT.get('fine') and not nm.startswith('T'):
            k.stamp('i_' + nm)
    release()
    k.stamp('w1a')
    k(f"s_cmp_lg_u32 {wv}, 0")
    k("s_cbranch_scc1 L_wt_done", manual=True)
    k(f"s_mov_b32 {t2}, {SPIN_MAX}")
    k(f"s_and_b32 {t1}, s2, 7")
    k(f"s_lshl_b32 {t1}, {t1}, 10")
    k(f"s_add_u32 {t0}, {t1}, {FL_B}")
    k("L_wtl:", manual=True)
    k(f"buffer_load_dwordx4 {q}, {vl16}, {sws}, {t0} offen sc1")
    k(f"s_sub_u32 {t2}, {t2}, 1")
    k(f"s_cmp_eq_u32 {t2}, 0")
    k("s_cbranch_scc1 L_wt_done", manual=True)
    k("s_waitcnt vmcnt(0)")
    for i in range(4):
        k(f"v_xor_b32 {q[i]}, {nonce}, {q[i]}")
    k(f"v_or3_b32 {q[0]}, {q[0]}, {q[1]}, {q[2]}")
    k(f"v_or_b32 {q[0]}, {q[0]}, {q[3]}")
    k(f"v_cmp_ne_u32 vcc, 0, {q[0]}")
    k("s_cbranch_vccnz L_wtl", manual=True)
    k("L_wt_done:", manual=True)
    k("s_barrier")
    k.V.free(x, y, q, vtag, vzero)
    k.stamp('wait')
    k("L_bar1_done:", manual=True)

    sb = k.s()

    def itbase(b):
        k(f"s_mul_i32 {sb}, {it}, {IT_STRIDE}")
        k(f"s_add_u32 {sb}, {sb}, {b}")
        return sb
    itoff = k.s()
    k(f"s_mul_i32 {itoff}, {it}, {IT_STRIDE}")

    def offs(gb, fb, sbs, wave_store):
        k(f"s_add_u32 {sga}, {sslot}, {itoff}")
        k(f"s_add_u32 {sga}, {sga}, {gb}")
        k(f"s_add_u32 {sgb}, {sga}, {128 * 8192}")
        gather_issue(True)
        if fb is not None:
            k(f"s_add_u32 {sfa}, {sblk}, {itoff}")
            k(f"s_add_u32 {sfa}, {sfa}, {fb}")
            k(f"s_add_u32 {sfb}, {sfa}, 4096")
            if not OPT['latefill']:
                fill()
        if sbs is not None:
            k(f"s_add_u32 {ssa}, {sblkw if wave_store else sblk}, {itoff}")
            k(f"s_add_u32 {ssa}, {ssa}, {sbs}")
            if not wave_store:
                k(f"s_add_u32 {ssb}, {ssa}, 4096")
    offs(X1_B, U_B, Z_B, True)
    load_tw(TW0a)
    k(f"s_cmp_lg_u32 {it}, 0")
    k("s_cbranch_scc1 L_w_done", manual=True)
    GW = [k.v(4, 2) for _ in range(4)]
    vGW = k.v()
    k(f"v_lshrrev_b32 {vGW}, 1, v0")
    k(f"v_mul_u32_u24 {vGW}, {WT_BLK}, {vGW}")
    k(f"v_and_b32 {tv}, 1, v0")
    k(f"v_lshl_add_u32 {vGW}, {tv}, 4, {vGW}")
    k(f"s_add_u32 {t0}, {sslot}, {WT_B}")
    k(f"s_add_u32 {t1}, {t0}, {128 * WT_BLK}")
    k(f"buffer_load_dwordx4 {GW[0]}, {vGW}, {sws}, {t0} offen sc1")
    k(f"buffer_load_dwordx4 {GW[1]}, {vGW}, {sws}, {t1} offen sc1")
    k(f"s_mov_b32 {t0}, {WT_B + 256 * 32}")
    k(f"s_mov_b32 {t1}, {WT_B + 256 * 32 + 128 * WT_BLK}")
    k(f"buffer_load_dwordx4 {GW[2]}, {vGW}, {sws}, {t0} offen sc1")
    k(f"buffer_load_dwordx4 {GW[3]}, {vGW}, {sws}, {t1} offen sc1")
    for nm in OPT['windows'].get('1b', []):
        ITEMS[nm]()
    release()
    k.stamp('w1b')
    for i in range(4):
        k(f"ds_write_b128 {vUl}, {GW[i]} offset:{L_WIM + i * 4096}")
    k.V.free(vGW, *GW)
    k("s_barrier")
    vw = k.v()
    k(f"v_lshrrev_b32 {vw}, 1, {g}")
    k(f"v_lshlrev_b32 {vw}, 6, {vw}")
    k(f"v_add_u32 {vw}, {vw}, {n}")
    k(f"v_add_u32 {vw}, {w16}, {vw}")
    k(f"v_lshlrev_b32 {vw}, 5, {vw}")
    k(f"v_and_b32 {tv}, 1, {g}")
    k(f"v_lshl_add_u32 {vw}, {tv}, 4, {vw}")
    Wr = [k.v(4, 2) for _ in range(4)]
    for m2 in range(2):
        k(f"ds_read_b128 {Wr[m2]}, {vw} offset:{L_WIM + m2 * 4096}")
        k(f"ds_read_b128 {Wr[2 + m2]}, {vw} offset:{L_WIM + 8192 + m2 * 4096}")
    sc = k.s()
    k(f"s_mov_b32 {sc}, {fhex(2.0 / (2048 * 512))}")
    qt = [k.v() for _ in range(16)]
    for m2 in range(2):
        for r in range(4):
            for c in range(2):
                for dst, src in ((WP[m2][4 * c + r], Wr[m2][2 * c + (r >> 1)]),
                                 (qt[8 * m2 + 4 * c + r], Wr[2 + m2][2 * c + (r >> 1)])):
                    if r & 1:
                        k(f"v_and_b32 {dst}, {smask}, {src}")
                    else:
                        k(f"v_lshlrev_b32 {dst}, 16, {src}")
                    k(f"v_mul_f32 {dst}, {sc}, {dst}")
    for i in range(16):
        k(f"v_accvgpr_write_b32 {WQa[i]}, {qt[i]}")
    k.V.free(vw, *Wr, *qt)
    k.S.free(sc)
    k("s_waitcnt lgkmcnt(0)")
    k("s_nop 3")
    k("L_w_done:", manual=True)
    gather_check()
    k(f"ds_write_b128 {vUl}, {GL[0]} offset:{L_IMG}")
    k(f"ds_write_b128 {vUl}, {GL[1]} offset:{L_IMG + 4096}")
    if OPT['latefill']:
        fill()
    k("s_barrier")
    k.stamp('CAld')
    X = [[k.v(4, 2) for _ in range(4)] for _ in range(2)]
    for mt in range(2):
        for q in range(4):
            k(f"ds_read_b128 {X[mt][q]}, {vCAo} offset:{L_IMG + q * 2048 + mt * 512}")
    C = Chan()
    for mt in range(2):
        for q in range(4):
            k.mfma(C.D[0][mt], X[mt][q], op_CS(F[q]), C.D[0][mt] if q else None)
            k.mfma(C.D[1][mt], X[mt][q], op_nSC(F[q]), C.D[1][mt] if q else None)
    fwd_half(C)
    for m2 in range(2):
        for r in range(4):
            k.cmul(C.T[0][m2][r], C.T[1][m2][r], C.E[0][m2][r], C.E[1][m2][r], WP[m2][r], WP[m2][4 + r], True)
    k(f"s_cmp_lg_u32 {Lid}, 0")
    k("s_cbranch_scc1 L_q_done", manual=True)
    vb0, vbw, vbr, vb2 = k.v(), k.v(), k.v(), k.v()
    k(f"v_lshlrev_b32 {vb0}, 8, {g}")
    k(f"v_add_u32 {vb0}, {vb0}, {n}")
    k(f"v_add_u32 {vb0}, {w16}, {vb0}")
    k(f"v_lshlrev_b32 {vbw}, 3, {vb0}")
    k(f"v_sub_u32 {vbr}, {(2048 - 64 * 19) * 8}, {vbw}")
    k(f"v_cmp_eq_u32 vcc, 0, {vb0}")
    k(f"v_mov_b32 {vb2}, {2050 * 8}")
    k(f"v_mov_b32 {tv}, {2048 * 8}")
    k(f"v_cndmask_b32 {vb2}, {vb2}, {tv}, vcc")
    prs = [k.v(2, 2) for _ in range(8)]
    qq = [k.v(2, 2) for _ in range(8)]
    for m2 in range(2):
        for r in range(4):
            pr = prs[4 * m2 + r]
            k(f"v_mov_b32 {pr[0]}, {C.E[0][m2][r]}")
            k(f"v_mov_b32 {pr[1]}, {C.E[1][m2][r]}")
            k(f"ds_write_b64 {vbw}, {pr} offset:{L_QX + 512 * (16 * m2 + r)}")
            k(f"v_accvgpr_read_b32 {qq[4 * m2 + r][0]}, {WQa[8 * m2 + r]}")
            k(f"v_accvgpr_read_b32 {qq[4 * m2 + r][1]}, {WQa[8 * m2 + 4 + r]}")
    k(f"ds_write_b64 {vb2}, {prs[0]} offset:{L_QX}")
    k("s_barrier")
    for m2 in range(2):
        for r in range(4):
            k(f"ds_read_b64 {prs[4 * m2 + r]}, {vbr} offset:{L_QX + 512 * (19 - (16 * m2 + r))}")
    for m2 in range(2):
        for r in range(4):
            pr, q_ = prs[4 * m2 + r], qq[4 * m2 + r]
            k(f"v_fmac_f32 {C.T[0][m2][r]}, {pr[0]}, {q_[0]}")
            k(f"v_fmac_f32 {C.T[1][m2][r]}, {pr[0]}, {q_[1]}")
            k(f"v_fmac_f32 {C.T[0][m2][r]}, {pr[1]}, {q_[1]}")
            k(f"v_fma_f32 {C.T[1][m2][r]}, -{pr[1]}, {q_[0]}, {C.T[1][m2][r]}")
    k("s_waitcnt lgkmcnt(0)")
    k.V.free(vb0, vbw, vbr, vb2, *prs, *qq)
    k("L_q_done:", manual=True)
    XO = [X[0][0], X[0][1]]
    inv_half(C, XO)
    for nt in range(2):
        k(f"ds_write_b128 {vXw}, {XO[nt]} offset:{L_XCH + nt * 1024}")
    k("s_waitcnt vmcnt(0)")
    k("s_barrier")
    for nt in range(2):
        for kq in range(4):
            k(f"ds_read_b128 {X[nt][kq]}, {vl16} offset:{L_XCH + kq * 2048 + nt * 1024}")
    for nt in range(2):
        for kq in range(4):
            k.mfma(C.D[0][nt], op_CnS(F[kq]), X[nt][kq], C.D[0][nt] if kq else None)
            k.mfma(C.D[1][nt], op_SC(F[kq]), X[nt][kq], C.D[1][nt] if kq else None)
    for nt in range(2):
        k.pk(O[nt][0], C.D[0][nt][0], C.D[0][nt][1])
        k.pk(O[nt][1], C.D[1][nt][0], C.D[1][nt][1])
        k.pk(O[nt][2], C.D[0][nt][2], C.D[0][nt][3])
        k.pk(O[nt][3], C.D[1][nt][2], C.D[1][nt][3])
        k(f"buffer_store_dwordx4 {O[nt]}, {vzo}, {sws}, {ssa} offen offset:{nt * 512} sc1")
    C.free()
    k.V.free(*X[0], *X[1])
    k.stamp('CA')

    window('2p')
    offs(Z_B, Y_B, U_B, False)
    load_tw(RItw)
    window('2')
    X = [k.v(4, 2) for _ in range(2)]
    for nt in range(2):
        for r in range(4):
            k(f"ds_read_b32 {X[nt][r]}, {vRIx} offset:{L_XL + nt * 256 + r * 512}")
    XP = [[k.v(2, 2) for _ in range(4)] for _ in range(2)]
    for nt in range(2):
        for r in range(4):
            unpack2(XP[nt][r], X[nt][r])
    gather_check()
    k(f"ds_write_b128 {vUl}, {GL[0]} offset:{L_IMG}")
    k(f"ds_write_b128 {vUl}, {GL[1]} offset:{L_IMG + 4096}")
    if OPT['latefill']:
        fill()
    k("s_barrier")
    k.stamp('RIld')
    Lz = [k.v(2, 2) for _ in range(4)]
    for e_ in range(4):
        k(f"ds_read_b64 {Lz[e_]}, {vRIz} offset:{L_IMG + e_ * 512}")
    Aop = [k.v(4, 2) for _ in range(2)]
    for e_ in range(2):
        sel = shi if e_ else slo
        k(f"v_perm_b32 {Aop[e_][0]}, {Lz[1][0]}, {Lz[0][0]}, {sel}")
        k(f"v_perm_b32 {Aop[e_][1]}, {Lz[3][0]}, {Lz[2][0]}, {sel}")
        k(f"v_perm_b32 {Aop[e_][2]}, {Lz[1][1]}, {Lz[0][1]}, {sel}")
        k(f"v_perm_b32 {Aop[e_][3]}, {Lz[3][1]}, {Lz[2][1]}, {sel}")
    szn = k.s()
    k(f"v_readlane_b32 {szn}, {Lz[0][1]}, 0")
    Vr = [[k.v(4, 2) for _ in range(2)] for _ in range(2)]
    Vi = [[k.v(4, 2) for _ in range(2)] for _ in range(2)]
    for e_ in range(2):
        for nt in range(2):
            k.mfma(Vr[e_][nt], Aop[e_], op_CnS(H[nt]))
            k.mfma(Vi[e_][nt], Aop[e_], op_SC(H[nt]))
    Ci = [k.v(4, 2) for _ in range(2)]
    k(f"s_lshl_b32 {t0}, {szn}, 16")
    k(f"s_and_b32 {t1}, {szn}, 0xffff0000")
    for e_ in range(2):
        k(f"v_xor_b32 {Ci[e_][0]}, {t1 if e_ else t0}, {sgn}")
        for r in range(1, 4):
            k(f"v_mov_b32 {Ci[e_][r]}, {Ci[e_][0]}")
    k.S.free(szn)
    D = [[k.v(4, 2) for _ in range(2)] for _ in range(2)]
    tr = [[k.v(4, 2) for _ in range(2)] for _ in range(2)]
    ti = [[k.v(4, 2) for _ in range(2)] for _ in range(2)]
    B = [[k.v(4, 2) for _ in range(2)] for _ in range(2)]
    for e_ in range(2):
        for nt in range(2):
            for r in range(4):
                k.cmul(tr[e_][nt][r], ti[e_][nt][r], Vr[e_][nt][r], Vi[e_][nt][r], TWV[8 * nt + r], TWV[8 * nt + 4 + r], True)
            pack4(k, B[e_][nt], tr[e_][nt], ti[e_][nt])
            k.mfma(D[e_][nt], RIA2, B[e_][nt], Ci[e_])
    k.V.free(*tr[0], *tr[1], *ti[0], *ti[1], *B[0], *B[1], *Ci, *Aop, *Vr[0], *Vr[1], *Vi[0], *Vi[1], *Lz)
    Sp = [k.v(2, 2) for _ in range(2)]
    Qp = [k.v(2, 2) for _ in range(2)]
    for nt in range(2):
        for r in range(4):
            k(f"v_add_f32 {XP[nt][r][0]}, {XP[nt][r][0]}, {D[0][nt][r]}")
            k(f"v_add_f32 {XP[nt][r][1]}, {XP[nt][r][1]}, {D[1][nt][r]}")
            k.pk(X[nt][r], XP[nt][r][0], XP[nt][r][1])
            k(f"ds_write_b32 {vRIx}, {X[nt][r]} offset:{L_XL + nt * 256 + r * 512}")
            unpack2(XP[nt][r], X[nt][r])
        k(f"v_pk_add_f32 {Sp[nt]}, {XP[nt][0]}, {XP[nt][1]}")
        k(f"v_pk_mul_f32 {Qp[nt]}, {XP[nt][0]}, {XP[nt][0]}")
        k(f"v_pk_add_f32 {Sp[nt]}, {Sp[nt]}, {XP[nt][2]}")
        k(f"v_pk_fma_f32 {Qp[nt]}, {XP[nt][1]}, {XP[nt][1]}, {Qp[nt]}")
        k(f"v_pk_add_f32 {Sp[nt]}, {Sp[nt]}, {XP[nt][3]}")
        k(f"v_pk_fma_f32 {Qp[nt]}, {XP[nt][2]}, {XP[nt][2]}, {Qp[nt]}")
        k(f"v_pk_fma_f32 {Qp[nt]}, {XP[nt][3]}, {XP[nt][3]}, {Qp[nt]}")
    k(f"v_pk_add_f32 {Sp[0]}, {Sp[0]}, {Sp[1]}")
    k(f"v_pk_add_f32 {Qp[0]}, {Qp[0]}, {Qp[1]}")
    k.V.free(*D[0], *D[1])
    R = k.reduce4([Sp[0][0], Sp[0][1], Qp[0][0], Qp[0][1]])
    k(f"v_add_f32_dpp {R}, {R}, {R} quad_perm:[1,0,3,2] row_mask:0xf bank_mask:0xf")
    R2 = Qp[0][1]
    k(f"v_mov_b32 {R2}, {R}")
    k(f"v_permlane16_swap_b32 {R}, {R2}")
    mbf, rstd = k.ln_finish(R, R2, tv)
    k(f"v_mul_f32 {mbf}, {mbf}, {rstd}")
    sm, sr = k.s(2), k.s(2)
    for e_ in range(2):
        k(f"v_readlane_b32 {sm[e_]}, {mbf}, {32 * e_}")
        k(f"v_readlane_b32 {sr[e_]}, {rstd}, {32 * e_}")
    mr = Sp[1]
    k(f"v_mov_b32 {mr[0]}, {sm[0]}")
    k(f"v_mov_b32 {mr[1]}, {sm[1]}")
    for nt in range(2):
        for r in range(4):
            k(f"v_pk_fma_f32 {XP[nt][r]}, {XP[nt][r]}, {sr}, {mr} neg_lo:[0,0,1] neg_hi:[0,0,1]")
            k.pk(X[nt][r], XP[nt][r][0], XP[nt][r][1])
            k(f"ds_write_b32 {vRIx}, {X[nt][r]} offset:{L_XCH + nt * 256 + r * 512}")
    k.S.free(sm, sr)
    k.V.free(*Sp, *Qp, *XP[0], *XP[1], *X)
    store_block(L_XCH)
    k.stamp('RI')

    window('3p')
    k(f"s_add_u32 {sga}, {sslot}, {itoff}")
    k(f"s_add_u32 {sga}, {sga}, {U_B}")
    k(f"s_add_u32 {sgb}, {sga}, {128 * 8192}")
    gather_issue(True)
    k(f"s_add_u32 {sfa}, {sblk}, {itoff}")
    k(f"s_add_u32 {sfa}, {sfa}, {X1_B + IT_STRIDE}")
    k(f"s_add_u32 {sfb}, {sfa}, 4096")

    def cond_fill(lbl):
        k(f"s_cmp_lg_u32 {it}, 0")
        k(f"s_cbranch_scc1 {lbl}", manual=True)
        fill()
        k("s_nop 1")
        k(f"{lbl}:", manual=True)
    if not OPT['latefill']:
        cond_fill("L_nofill")
    k(f"s_add_u32 {ssa}, {sblkw}, {itoff}")
    k(f"s_add_u32 {ssa}, {ssa}, {Y_B}")
    load_tw(TW1a)
    window('3')
    gather_check()
    k(f"ds_write_b128 {vCBi}, {GL[0]} offset:{L_IMG}")
    k(f"ds_write_b128 {vCBi}, {GL[1]} offset:{L_IMG + 2048}")
    if OPT['latefill']:
        cond_fill("L_nofill")
    k("s_barrier")
    k.stamp('CBld')
    U = [[[k.v(4, 2) for _ in range(2)] for _ in range(2)] for _ in range(2)]
    for c in range(2):
        for mt in range(2):
            for q in range(2):
                k(f"ds_read_b128 {U[c][mt][q]}, {vCBo} offset:{L_IMG + c * 4096 + q * 2048 + mt * 256}")
    EU = [[k.v(2, 2) for _ in range(2)] for _ in range(2)]
    for c in range(2):
        for nt in range(2):
            k(f"ds_read_b64 {EU[c][nt]}, {vCBe} offset:{L_IMG + c * 4096 + nt * 256}")
    Cs = [Chan(), Chan()]
    for c in range(2):
        C = Cs[c]
        for mt in range(2):
            for q in range(2):
                k.mfma(C.D[0][mt], U[c][mt][q], FC[q], C.D[0][mt] if q else None)
                k.mfma(C.D[1][mt], U[c][mt][q], FS[q], C.D[1][mt] if q else None)
        fwd_half(C)
        for m2 in range(2):
            kr, ki = U[c][m2][0], U[c][m2][1]
            for r in range(4):
                for dst, src in ((kr[r], KF[c][m2][r >> 1]), (ki[r], KF[c][m2][2 + (r >> 1)])):
                    if r & 1:
                        k(f"v_and_b32 {dst}, {smask}, {src}")
                    else:
                        k(f"v_lshlrev_b32 {dst}, 16, {src}")
            for r in range(4):
                k.cmul(C.T[0][m2][r], C.T[1][m2][r], C.E[0][m2][r], C.E[1][m2][r], kr[r], ki[r], True)
        XO = [U[c][0][0], U[c][0][1]]
        inv_half(C, XO)
        for nt in range(2):
            k(f"ds_write_b128 {vXw}, {XO[nt]} offset:{L_XCH + c * 8192 + nt * 1024}")
        for nt in range(2):
            for h in range(2):
                unpack2(U[c][1][nt][2 * h:2 * h + 2], EU[c][nt][h])
    k("s_waitcnt vmcnt(0)")
    k("s_barrier")
    Yc = [[[Cs[c].T[0][0], Cs[c].T[0][1], Cs[c].T[1][0], Cs[c].T[1][1]],
           [Cs[c].D[1][0], Cs[c].D[1][1], Cs[c].B[0], Cs[c].B[1]]] for c in range(2)]
    for c in range(2):
        for nt in range(2):
            for kq in range(4):
                k(f"ds_read_b128 {Yc[c][nt][kq]}, {vl16} offset:{L_XCH + c * 8192 + kq * 2048 + nt * 1024}")
    UP = [[[U[c][1][0][0:2], U[c][1][0][2:4]], [U[c][1][1][0:2], U[c][1][1][2:4]]] for c in range(2)]
    for c in range(2):
        D = Cs[c].D[0]
        for nt in range(2):
            for kq in range(4):
                k.mfma(D[nt], I2[kq], Yc[c][nt][kq], D[nt] if kq else None)
    for c in range(2):
        D = Cs[c].D[0]
        for nt in range(2):
            for h in range(2):
                for e_ in range(2):
                    k(f"v_fmac_f32 {D[nt][2 * h + e_]}, {ds2[c][0]}, {UP[c][nt][h][e_]}")
                k.pk(O[nt][2 * c + h], D[nt][2 * h], D[nt][2 * h + 1])
    for nt in range(2):
        k(f"v_permlane16_swap_b32 {O[nt][0]}, {O[nt][2]}")
        k(f"v_permlane16_swap_b32 {O[nt][1]}, {O[nt][3]}")
        k(f"buffer_store_dwordx4 {O[nt]}, {vzo}, {sws}, {ssa} offen offset:{nt * 512} sc1")
    for c in range(2):
        Cs[c].free()
        k.V.free(*U[c][0], *U[c][1], *EU[c])
    k.stamp('CB')

    k(f"s_add_u32 {sga}, {sslot}, {itoff}")
    k(f"s_add_u32 {sga}, {sga}, {Y_B}")
    k(f"s_add_u32 {sgb}, {sga}, {128 * 8192}")
    gather_issue(True)
    k(f"s_add_u32 {sfa}, {sblk}, {itoff}")
    k(f"s_add_u32 {sfa}, {sfa}, {Z_B + IT_STRIDE}")
    k(f"s_add_u32 {sfb}, {sfa}, 4096")
    if not OPT['latefill']:
        cond_fill("L_nofill2")
    k(f"s_add_u32 {ssa}, {sblk}, {itoff}")
    k(f"s_add_u32 {ssa}, {ssa}, {X1_B + IT_STRIDE}")
    k(f"s_add_u32 {ssb}, {ssa}, 4096")
    load_tw(RFtw)
    XV = [k.v(4, 2) for _ in range(2)]
    k(f"ds_read_b128 {XV[0]}, {vUl} offset:{L_XL}")
    k(f"ds_read_b128 {XV[1]}, {vUl} offset:{L_XL + 4096}")
    xps = [[k.v(2, 2) for _ in range(4)] for _ in range(2)]
    yps = [[k.v(2, 2) for _ in range(4)] for _ in range(2)]
    for i in range(2):
        for j in range(4):
            unpack2(xps[i][j], XV[i][j])
    gather_check()
    for i in range(2):
        for j in range(4):
            unpack2(yps[i][j], GL[i][j])
            k(f"v_pk_add_f32 {yps[i][j]}, {yps[i][j]}, {xps[i][j]}")
            k.pk(XV[i][j], yps[i][j][0], yps[i][j][1])
        k(f"ds_write_b128 {vUl}, {XV[i]} offset:{L_XL + i * 4096}")
    k.V.free(*yps[0], *yps[1], *xps[0], *xps[1], *XV)
    if OPT['latefill']:
        cond_fill("L_nofill2")
    k("s_barrier")
    k.stamp('resid')
    k(f"s_add_u32 {it}, {it}, 1")
    k(f"s_cmp_lt_u32 {it}, 2")
    k("s_cbranch_scc1 L_layer", manual=True)

    vt = k.v()
    k(f"v_lshrrev_b32 {tv}, 2, {n}")
    k(f"v_lshlrev_b32 {vt}, 4, {tv}")
    k(f"v_and_b32 {tv}, 1, {n}")
    k(f"v_lshl_add_u32 {vt}, {tv}, 3, {vt}")
    k(f"v_bfe_u32 {tv}, {n}, 1, 1")
    k(f"v_lshl_add_u32 {vt}, {tv}, 7, {vt}")
    k(f"v_lshl_add_u32 {vt}, {g}, 8, {vt}")
    k(f"s_lshl_b32 {t0}, {wv}, 11")
    k(f"v_add_u32 {vt}, {t0}, {vt}")
    OT = [k.v(4, 2) for _ in range(2)]
    for j in range(2):
        for h in range(2):
            k(f"ds_read_b64_tr_b16 {OT[j][2 * h:2 * h + 2]}, {vt} offset:{L_XL + j * 1024 + h * 64}")
    so = scratch_srd('out', 2048 * 512 * 2)
    vo = k.v()
    k(f"v_and_b32 {vo}, 7, {n}")
    k(f"v_lshlrev_b32 {vo}, 15, {vo}")
    k(f"v_lshrrev_b32 {tv}, 3, {n}")
    k(f"v_lshl_add_u32 {vo}, {tv}, 4, {vo}")
    k(f"v_lshl_add_u32 {vo}, {g}, 5, {vo}")
    k(f"s_lshl_b32 {t0}, {a8}, 8")
    k(f"s_add_u32 {t0}, {t0}, {bs}")
    k(f"s_lshl_b32 {t0}, {t0}, 10")
    k(f"s_lshl_b32 {t1}, {wv}, 8")
    k(f"s_add_u32 {t0}, {t0}, {t1}")
    for j in range(2):
        k(f"buffer_store_dwordx4 {OT[j]}, {vo}, {so}, {t0} offen offset:{j * 128}")
    if OPT['stamps']:
        k.stamp('final')
        k.stamp('drain', "s_waitcnt vmcnt(0)")
        k(f"v_lshlrev_b32 {vt}, 2, {lane}")
        k(f"s_lshl_b32 {t0}, s2, 8")
        k(f"s_add_u32 {t0}, {t0}, {TS_OFF}")
        k(f"s_mov_b32 {sws[2]}, {hex(TS_OFF + 0x100000)}")
        k(f"s_cmp_lg_u32 {wv}, 0")
        k("s_cbranch_scc1 L_end")
        k(f"buffer_store_dword {k.v_ts}, {vt}, {sws}, {t0} offen")
        if OPT.get('todebug'):
            sd = scratch_srd('debug', 64)
            k("s_cmp_lg_u32 s2, 0")
            k("s_cbranch_scc1 L_end")
            k(f"v_add_u32 {vt}, 4, {vt}")
            k(f"buffer_store_dword {k.v_ts}, {vt}, {sd}, 0 offen")
    k("L_end:")
    k("s_endpgm")
    k("L_code_end:", manual=True)
    body = k.a.finish(sched=OPT['sched'])
    body += ".p2align 8\n.type L_tables,@object\nL_tables:\n" + ttext + f".size L_tables, {toff['total']}\nL_tables_end:\n"
    print(f"vgpr={k.V.hi} agpr={k.A.hi} sgpr={k.S.hi} lds={LDS_BYTES} instrs={k.a.count()}")
    return k, body


def write(path):
    k, body = build()
    hdr = list(HDR)
    hdr.append(f"; @launch grid=(256,1,1) block=(256,1,1) lds={LDS_BYTES}")
    hdr.append('.amdgcn_target "amdgcn-amd-amdhsa--gfx950"')
    hdr.append('.text')
    txt = '\n'.join(hdr) + '\n' + kernel_text(KN, body)
    txt += '.section .rodata,"a"\n' + descriptor(KN, 256 + max(k.A.hi, 8), max(k.S.hi, 16), accum=256)
    open(path, 'w').write(txt)
    return k


def stamp_sequence(names):
    if 'RF' not in names or 'resid' not in names:
        return names
    i0 = names.index('RF')
    i1 = names.index('resid') + 1
    body = names[i0:i1]
    second = [x for x in body if x not in ('w1b', 'arr', 'w1a', 'wait') and not x.startswith('i_')]
    return names[:i1] + second + names[i1:]


if __name__ == '__main__':
    for a_ in sys.argv[2:]:
        kk_, vv_ = a_.split('=')
        OPT[kk_] = eval(vv_)
    if len(sys.argv) > 1 and sys.argv[1] not in ('stamps', 'plain'):
        kk = write(sys.argv[1])
        if OPT['stamps']:
            print(stamp_sequence(kk.stamp_names))
    elif len(sys.argv) > 1 and sys.argv[1] == 'stamps':
        OPT['stamps'] = True
        OPT['fine'] = True
        kk = write('p3_ts.s')
        open('p3_ts.names', 'w').write(','.join(stamp_sequence(kk.stamp_names)))
    else:
        write('p3.s')
```

```python
import struct
import sys
from common import *
import gen
import tables
from gen import fhex, ROWLANE, pack4, op_CS, op_SC, op_CnS, op_nSC

X1_B, Z_B, U_B, Y_B = 0x0000000, 0x0400000, 0x0800000, 0x0C00000
IT_STRIDE = 0x200000
WT_B, WT_BLK = 0x1000000, 8256
FL_B = 0x1400000
WS_USED = 0x1500000
TS_OFF = 0x2000000
OOB = 0x7FFFFFF0
SPIN_MAX = 1 << 15

L_XL = 0
L_IMG = 8192
L_XCH = 16384
L_WIM = 32768
L_WST = L_WIM
L_QX = L_WIM - 64
L_K = 49152
KG_ROW = 528
KG_CH = 96 * KG_ROW
L_KX = L_K + 2 * KG_CH
L_KOP = L_K
LDS_BYTES = L_KX + 4096

OPT = dict(stamps=False, prefetch=True, sched=True, ackfirst=True, between=True, latefill=True, depth=1, sleep=0, presleep=0,
           windows={'rf0': ['TF', 'TG'], '1a': ['TTW', 'KP', 'KT0'], '1b': ['KT1'], 'ca0': ['T3'], '2p': ['TI', 'T4', 'KM'], '2': ['BAR', 'KE'], '3p': ['KX'], '3': []})


class PK(gen.K):
    def __init__(self, name):
        super().__init__(name, 256, vlimit=256)
        self.A = Regs('a', 0, 256)
        self.S = Regs('s', 4, 102)
        self.stamp_names = []

    def stamp(self, name='', wait=None):
        if not OPT['stamps']:
            return
        if OPT.get('only') and name not in OPT['only']:
            return
        if wait:
            self(wait)
        self.stamp_names.append(name)
        t = self.s_tmp2
        self(f"s_memrealtime {t}")
        self("s_waitcnt lgkmcnt(0)")
        self(f"v_writelane_b32 {self.v_ts}, {t[0]}, m0")
        self("s_add_u32 m0, m0, 1")


def build():
    k = PK(KN)
    ttext, toff = tables.emit()
    k("s_cmp_ge_u32 s2, 256")
    k("s_cbranch_scc1 L_end")
    ptr = {}
    big = k.s(16, 4)
    big2 = k.s(8, 4)
    tail = k.s(4, 4)
    k(f"s_load_dwordx16 {big}, s[0:1], 0")
    k(f"s_load_dwordx8 {big2}, s[0:1], 64")
    k(f"s_load_dwordx4 {tail}, s[0:1], 96")
    ptr['ws'] = k.s(2)
    k(f"s_load_dwordx2 {ptr['ws']}, s[0:1], 112")
    for i, nm in enumerate(['A_x', 'A_w_r', 'A_w_i', 'B_u', 'B_A_re', 'B_A_im', 'B_B_re', 'B_B_im']):
        ptr[nm] = big[2 * i:2 * i + 2]
    for i, nm in enumerate(['B_C_re', 'B_C_im', 'B_log_dt', 'B_Dskip']):
        ptr[nm] = big2[2 * i:2 * i + 2]
    ptr['out'], ptr['debug'] = tail[0:2], tail[2:4]
    lane, n, g = k.v(), k.v(), k.v()
    wv = k.s()
    tv = k.v()
    k(f"v_lshrrev_b32 {tv}, 6, v0")
    k(f"v_and_b32 {lane}, 63, v0")
    k(f"v_readfirstlane_b32 {wv}, {tv}")
    k(f"v_and_b32 {n}, 15, v0")
    k(f"v_lshrrev_b32 {g}, 4, {lane}")
    Lid, t0, t1, t2 = k.s(), k.s(), k.s(), k.s()
    k(f"s_and_b32 {Lid}, s2, 7")
    k(f"s_lshl_b32 {Lid}, {Lid}, 5")
    k(f"s_lshr_b32 {t0}, s2, 3")
    k(f"s_add_u32 {Lid}, {Lid}, {t0}")
    bs, a8 = k.s(), k.s()
    k(f"s_and_b32 {bs}, {Lid}, 31")
    k(f"s_lshr_b32 {a8}, {Lid}, 5")
    rg, kt, w16 = k.s(), k.s(), k.s()
    k(f"s_lshr_b32 {rg}, {wv}, 1")
    k(f"s_and_b32 {kt}, {wv}, 1")
    k(f"s_lshl_b32 {w16}, {wv}, 4")
    nonce = k.s()
    pc = k.s(2)
    k(f"s_getpc_b64 {pc}")
    k("L_pc_here:", manual=True)
    tb = k.s(2)
    k(f"s_add_u32 {tb[0]}, {pc[0]}, L_tables-L_pc_here")
    k(f"s_addc_u32 {tb[1]}, {pc[1]}, 0")
    vl16 = k.v()
    k(f"v_lshlrev_b32 {vl16}, 4, {lane}")
    if OPT['stamps']:
        k.s_tmp2, k.v_ts = k.s(2), k.v()
        k("s_mov_b32 m0, 0")
        k(f"v_mov_b32 {k.v_ts}, 0")
        k.stamp('entry')

    ACC = k.A.alloc(84 + 16 + 136, 4)
    cm, pk_, pw = ACC[0:84], ACC[84:100], ACC[100:236]
    RFA2, Gall, RIH, RIA2, RItw = cm[0:4], cm[4:44], cm[44:64], cm[64:68], cm[68:84]
    G = [[Gall[10 * (2 * t + q):10 * (2 * t + q) + 10] for q in range(2)] for t in range(2)]
    H = [RIH[0:10], RIH[10:20]]
    RFB1, RFtw = pk_[0:8], pk_[8:16]
    Fall, TW0a, FCSall, I2all, TW1a = pw[0:40], pw[40:72], pw[72:88], pw[88:104], pw[104:136]
    F = [Fall[10 * q:10 * q + 10] for q in range(4)]
    FC = [FCSall[8 * q:8 * q + 4] for q in range(2)]
    FS = [FCSall[8 * q + 4:8 * q + 8] for q in range(2)]
    I2 = [I2all[4 * q:4 * q + 4] for q in range(4)]
    WQa = k.A.alloc(16, 2)
    tbase = {'common': k.s(2), 'perkt': k.s(2), 'perw': k.s(2)}
    k(f"s_mov_b32 {tbase['common'][0]}, {tb[0]}")
    k(f"s_mov_b32 {tbase['common'][1]}, {tb[1]}")
    k(f"s_mul_i32 {t0}, {kt}, {toff['perkt_stride']}")
    k(f"s_add_u32 {t0}, {t0}, {toff['perkt']}")
    k(f"s_add_u32 {tbase['perkt'][0]}, {tb[0]}, {t0}")
    k(f"s_addc_u32 {tbase['perkt'][1]}, {tb[1]}, 0")
    k(f"s_mul_i32 {t0}, {wv}, {toff['perw_stride']}")
    k(f"s_add_u32 {t0}, {t0}, {toff['perw']}")
    k(f"s_add_u32 {tbase['perw'][0]}, {tb[0]}, {t0}")
    k(f"s_addc_u32 {tbase['perw'][1]}, {tb[1]}, 0")
    k.S.free(tb)

    HELD = []

    def release():
        k.V.free(*HELD)
        del HELD[:]

    def tload(sec, regs, first_reg):
        c0 = first_reg // 4
        vt_ = {}
        for i in range(regs.n // 4):
            byte = (c0 + i) * 1024
            hi, lo = byte // 4096 * 4096, byte % 4096
            if hi not in vt_:
                vt_[hi] = k.v()
                k(f"v_add_u32 {vt_[hi]}, {hi}, {vl16}")
            k(f"global_load_dwordx4 {regs[4 * i:4 * i + 4]}, {vt_[hi]}, {tbase[sec]} offset:{lo}")
        HELD.extend(vt_.values())

    tload('common', RFA2, 0)
    tload('perkt', pk_, 0)
    release()
    k("s_waitcnt lgkmcnt(0)")
    sws = k.srd(ptr['ws'], 0, WS_USED)
    scr = k.s(4)

    def scratch_srd(nm, size):
        k(f"s_mov_b32 {scr[0]}, {ptr[nm][0]}")
        k(f"s_mov_b32 {scr[1]}, {ptr[nm][1]}")
        k(f"s_mov_b32 {scr[2]}, {hex(size)}")
        k(f"s_mov_b32 {scr[3]}, 0x20000")
        return scr
    k.stamp('kernarg')

    XR = [k.v(4, 2) for _ in range(2)]
    va = k.v()
    sx = scratch_srd('A_x', 2048 * 512 * 2)
    k(f"s_lshl_b32 {t0}, {a8}, 8")
    k(f"s_add_u32 {t0}, {t0}, {bs}")
    k(f"s_lshl_b32 {t1}, {wv}, 5")
    k(f"s_add_u32 {t0}, {t0}, {t1}")
    k(f"s_lshl_b32 {t0}, {t0}, 10")
    k(f"s_add_u32 {t1}, {t0}, {4 * 32 * 1024}")
    k(f"buffer_load_dwordx4 {XR[0]}, {vl16}, {sx}, {t0} offen")
    k(f"buffer_load_dwordx4 {XR[1]}, {vl16}, {sx}, {t1} offen")
    sd = scratch_srd('debug', 256)
    k("s_cmp_lg_u32 s2, 0")
    k("s_cbranch_scc1 L_nonce_done", manual=True)
    k(f"s_cmp_lg_u32 {wv}, 0")
    k("s_cbranch_scc1 L_nonce_done", manual=True)
    tm = k.s(2)
    k(f"s_memrealtime {tm}")
    k("s_waitcnt lgkmcnt(0)")
    k(f"s_or_b32 {tm[0]}, {tm[0]}, 1")
    vz = k.v()
    k(f"v_mov_b32 {vz}, {tm[0]}")
    k(f"v_mov_b32 {va}, {hex(OOB)}")
    k(f"v_cmp_eq_u32 vcc, 0, {lane}")
    k(f"v_cndmask_b32 {va}, {va}, 0, vcc")
    k(f"buffer_store_dword {vz}, {va}, {sd}, 0 offen sc1")
    k("s_nop 1")
    k("L_nonce_done:", manual=True)
    k.S.free(tm)
    k.V.free(vz)
    Wraw = [[k.v() for _ in range(2)] for _ in range(8)]
    wb = k.s()
    k(f"s_lshr_b32 {t0}, {Lid}, 6")
    k(f"s_lshl_b32 {t0}, {t0}, 9")
    k(f"s_and_b32 {t1}, {Lid}, 63")
    k(f"s_add_u32 {wb}, {t0}, {t1}")
    k(f"s_mul_i32 {wb}, {wb}, 514")
    vin, vny, vnm = k.v(), k.v(), k.v()
    k(f"v_lshlrev_b32 {vin}, 1, v0")
    ksb = k.s()
    k(f"s_add_u32 {ksb}, {t0}, {t1}")
    k(f"v_lshlrev_b32 {vny}, 6, v0")
    k(f"v_add_u32 {vny}, {ksb}, {vny}")
    k(f"v_sub_u32 {vnm}, 2048, {vny}")
    k(f"v_and_b32 {vnm}, 2047, {vnm}")
    k(f"v_mul_u32_u24 {vny}, 514, {vny}")
    k(f"v_mul_u32_u24 {vnm}, 514, {vnm}")
    k(f"v_mov_b32 {tv}, {hex(OOB)}")
    k(f"v_cmp_gt_u32 vcc, 8, v0")
    k(f"v_cndmask_b32 {vny}, {tv}, {vny}, vcc")
    k(f"v_cndmask_b32 {vnm}, {tv}, {vnm}, vcc")
    k.S.free(ksb)
    wo = [k.s() for _ in range(8)]
    for rho in range(8):
        k(f"s_add_u32 {wo[rho]}, {wb}, {rho * 64 * 514}")
    WE = {}
    for c, nm in ((0, 'A_w_r'), (1, 'A_w_i')):
        sr = scratch_srd(nm, 2048 * 257 * 2)
        for rho in range(8):
            k(f"buffer_load_ushort {Wraw[rho][c]}, {vin}, {sr}, {wo[rho]} offen")
        for nm2, vv, off in (('a', vny, 0), ('b', vny, 512), ('ar', vnm, 0), ('br', vnm, 512)):
            WE[nm2, c] = k.v()
            k(f"buffer_load_ushort {WE[nm2, c]}, {vv}, {sr}, 0 offen offset:{off}")
    k.V.free(vin, vny, vnm)
    k.S.free(wb, *wo)
    par = {}
    k(f"s_lshl_b32 {t0}, {Lid}, 9")
    k(f"s_lshl_b32 {t1}, {rg}, 8")
    k(f"s_add_u32 {t0}, {t0}, {t1}")
    k(f"v_lshlrev_b32 {va}, 2, {lane}")
    for nm in ('B_A_re', 'B_A_im', 'B_B_re', 'B_B_im', 'B_C_re', 'B_C_im'):
        sr = scratch_srd(nm, 512 * 128 * 2)
        par[nm] = k.v()
        k(f"buffer_load_dword {par[nm]}, {va}, {sr}, {t0} offen")
    sr = scratch_srd('B_log_dt', 1024)
    ld = k.v()
    k(f"s_lshl_b32 {t1}, {Lid}, 2")
    k(f"s_lshl_b32 {t0}, {rg}, 1")
    k(f"s_add_u32 {t0}, {t0}, {t1}")
    k(f"v_mov_b32 {va}, 0")
    k(f"buffer_load_ushort {ld}, {va}, {sr}, {t0} offen")
    dsk = k.s()
    k(f"s_load_dword {dsk}, {ptr['B_Dskip']}, {t1}")
    PF = [k.v(4, 2), k.v(4, 2)]
    k(f"s_lshr_b32 {t0}, s2, 3")
    k(f"s_lshl_b32 {t0}, {t0}, 2")
    k(f"s_add_u32 {t0}, {t0}, {wv}")
    k(f"s_lshl_b32 {t0}, {t0}, 11")
    k(f"s_min_u32 {t0}, {t0}, L_tables_end-L_pc_here-2048")
    k(f"v_add_u32 {va}, {t0}, {vl16}")
    k(f"global_load_dwordx4 {PF[0]}, {va}, {pc}")
    k(f"global_load_dwordx4 {PF[1]}, {va}, {pc} offset:1024")
    k.S.free(pc)
    k.V.free(va)
    k.stamp('ldissue')

    TWV = k.v(32, 2)
    TW = [[TWV[8 * i + 4 * j:8 * i + 4 * j + 4] for j in range(2)] for i in range(4)]
    WP = [k.v(8, 2) for _ in range(2)]
    KF = [[k.v(4, 2) for _ in range(2)] for _ in range(2)]
    GL = PF
    O = [k.v(4, 2) for _ in range(2)]
    SENT = k.v(4, 2)
    for i in range(4):
        k(f"v_mov_b32 {SENT[i]}, -1")
    dcm, sgn = k.v(), k.v()
    k(f"s_lshl_b32 {t1}, {kt}, 4")
    k(f"v_add_u32 {dcm}, {t1}, {n}")
    k(f"v_lshl_add_u32 {dcm}, {dcm}, 2, {g}")
    k(f"v_cmp_eq_u32 vcc, 0, {dcm}")
    k(f"v_cndmask_b32 {dcm}, 0, 1.0, vcc")
    k(f"v_lshlrev_b32 {sgn}, 31, {n}")
    vUl, vG, vzo = k.v(), k.v(), k.v()
    k(f"v_lshlrev_b32 {vUl}, 4, v0")
    k(f"v_lshrrev_b32 {vG}, 1, v0")
    k(f"v_lshlrev_b32 {vG}, 13, {vG}")
    k(f"v_and_b32 {tv}, 1, v0")
    k(f"v_lshl_add_u32 {vG}, {tv}, 4, {vG}")
    g1, g2 = k.v(), k.v()
    k(f"v_and_b32 {g1}, 1, {g}")
    k(f"v_lshrrev_b32 {g2}, 1, {g}")
    k(f"v_lshlrev_b32 {vzo}, 10, {g2}")
    k(f"v_lshl_add_u32 {vzo}, {n}, 5, {vzo}")
    k(f"v_lshl_add_u32 {vzo}, {g1}, 4, {vzo}")
    vRFr, vRFs, vCAo, vXw, vRIz, vRIx, vCBi, vCBo, vCBe = [k.v() for _ in range(9)]
    k(f"v_lshlrev_b32 {vRFr}, 10, {g}")
    k(f"v_lshl_add_u32 {vRFr}, {n}, 4, {vRFr}")
    k(f"s_lshl_b32 {t0}, {rg}, 3")
    k(f"v_add_u32 {vRFr}, {t0}, {vRFr}")
    k(f"v_lshl_add_u32 {vRFs}, {g}, 6, {n}")
    k(f"s_lshl_b32 {t0}, {kt}, 4")
    k(f"v_add_u32 {vRFs}, {t0}, {vRFs}")
    k(f"v_lshlrev_b32 {vRFs}, 5, {vRFs}")
    k(f"s_lshl_b32 {t0}, {rg}, 4")
    k(f"v_add_u32 {vRFs}, {t0}, {vRFs}")
    k(f"v_lshl_add_u32 {vCAo}, {g2}, 5, {n}")
    k(f"v_lshlrev_b32 {vCAo}, 5, {vCAo}")
    k(f"v_lshl_add_u32 {vCAo}, {g1}, 4, {vCAo}")
    k(f"s_lshl_b32 {t0}, {wv}, 11")
    k(f"v_add_u32 {vXw}, {t0}, {vl16}")
    k(f"v_lshlrev_b32 {vRIz}, 11, {g}")
    k(f"v_lshl_add_u32 {vRIz}, {n}, 5, {vRIz}")
    k(f"s_lshl_b32 {t0}, {wv}, 3")
    k(f"v_add_u32 {vRIz}, {t0}, {vRIz}")
    k(f"v_lshlrev_b32 {vRIx}, 11, {g}")
    k(f"v_lshl_add_u32 {vRIx}, {n}, 4, {vRIx}")
    k(f"s_lshl_b32 {t0}, {wv}, 2")
    k(f"v_add_u32 {vRIx}, {t0}, {vRIx}")
    k(f"v_lshrrev_b32 {vCBi}, 1, v0")
    k(f"v_lshlrev_b32 {vCBi}, 4, {vCBi}")
    k(f"v_and_b32 {tv}, 1, v0")
    k(f"v_lshl_add_u32 {vCBi}, {tv}, 12, {vCBi}")
    k(f"v_lshlrev_b32 {vCBo}, 9, {g}")
    k(f"v_lshl_add_u32 {vCBo}, {n}, 4, {vCBo}")
    k(f"v_lshlrev_b32 {vCBe}, 9, {g2}")
    k(f"v_lshl_add_u32 {vCBe}, {n}, 4, {vCBe}")
    k(f"v_lshl_add_u32 {vCBe}, {g1}, 3, {vCBe}")
    k(f"s_lshl_b32 {t0}, {wv}, 10")
    k(f"v_add_u32 {vCBe}, {t0}, {vCBe}")
    k.V.free(g1, g2)
    slo, shi, smask, sones = k.s(), k.s(), k.s(), k.s()
    k(f"s_mov_b32 {slo}, 0x05040100")
    k(f"s_mov_b32 {shi}, 0x07060302")
    k(f"s_mov_b32 {smask}, 0xffff0000")
    k(f"s_mov_b32 {sones}, 0x3f803f80")
    sblk, sblkw, sslot = k.s(), k.s(), k.s()
    k(f"s_lshl_b32 {sblk}, {Lid}, 13")
    k(f"s_lshl_b32 {t0}, {wv}, 11")
    k(f"s_add_u32 {sblkw}, {sblk}, {t0}")
    k(f"s_lshl_b32 {sslot}, {Lid}, 5")
    ds2 = [k.s(2), k.s(2)]
    k(f"s_lshl_b32 {ds2[0][0]}, {dsk}, 16")
    k(f"s_and_b32 {ds2[1][0]}, {dsk}, 0xffff0000")
    k.S.free(dsk)
    sga, sgb, sfa, sfb, ssa, ssb = [k.s() for _ in range(6)]
    uid = [0]
    npoll = [0]

    def unpack2(pair, dw):
        k(f"v_lshlrev_b32 {pair[0]}, 16, {dw}")
        k(f"v_and_b32 {pair[1]}, {smask}, {dw}")

    def load_tw(acc):
        for i in range(acc.n):
            k(f"v_accvgpr_read_b32 {TWV[i]}, {acc[i]}")

    def set_offsets(gbase, fbase, sbase, wave_store):
        if gbase is not None:
            k(f"s_add_u32 {sga}, {sslot}, {gbase}")
            k(f"s_add_u32 {sgb}, {sga}, {128 * 8192}")
        if fbase is not None:
            k(f"s_add_u32 {sfa}, {sblk}, {fbase}")
            k(f"s_add_u32 {sfb}, {sfa}, 4096")
        if sbase is not None:
            k(f"s_add_u32 {ssa}, {sblkw if wave_store else sblk}, {sbase}")
            if not wave_store:
                k(f"s_add_u32 {ssb}, {ssa}, 4096")

    def fill():
        k(f"buffer_store_dwordx4 {SENT}, {vUl}, {sws}, {sfa} offen sc1")
        k(f"buffer_store_dwordx4 {SENT}, {vUl}, {sws}, {sfb} offen sc1")

    def gather_issue(first=False):
        if first and OPT['ackfirst']:
            k("s_waitcnt vmcnt(0)")
        if first and OPT['presleep']:
            k(f"s_sleep {OPT['presleep']}")
        k(f"buffer_load_dwordx4 {GL[0]}, {vG}, {sws}, {sga} offen sc1")
        k(f"buffer_load_dwordx4 {GL[1]}, {vG}, {sws}, {sgb} offen sc1")

    def gather_check():
        u = uid[0]
        uid[0] += 1
        x = k.v()
        depth = OPT['depth']
        k(f"s_mov_b32 {t2}, {SPIN_MAX}")
        for d in range(depth - 1):
            if OPT['sleep']:
                k(f"s_sleep {OPT['sleep']}")
            k(".forget_vm")
            gather_issue()
        k(f"L_chk{u}:", manual=True)
        k(f"s_waitcnt vmcnt({2 * (depth - 1)})")
        k(".forget_vm")
        k(f"v_max3_u32 {x}, {GL[0][0]}, {GL[0][1]}, {GL[0][2]}")
        k(f"v_max3_u32 {x}, {x}, {GL[0][3]}, {GL[1][0]}")
        k(f"v_max3_u32 {x}, {x}, {GL[1][1]}, {GL[1][2]}")
        k(f"v_max_u32 {x}, {x}, {GL[1][3]}")
        k(f"v_cmp_eq_u32 vcc, -1, {x}")
        k(f"s_cbranch_vccz L_ok{u}", manual=True)
        k(f"s_sub_u32 {t2}, {t2}, 1")
        k(f"s_cmp_eq_u32 {t2}, 0")
        k(f"s_cbranch_scc1 L_ok{u}", manual=True)
        gather_issue()
        k(".forget_vm")
        k(f"s_branch L_chk{u}", manual=True)
        k(f"L_ok{u}:", manual=True)
        k(".forget_vm")
        if OPT['stamps']:
            k(f"s_sub_u32 {t2}, {SPIN_MAX + 1}, {t2}")
            k(f"s_mov_b32 {t1}, {48 + npoll[0]}")
            k(f"s_mov_b32 {k.s_tmp2[1]}, m0")
            k(f"s_mov_b32 m0, {t1}")
            k(f"v_writelane_b32 {k.v_ts}, {t2}, m0")
            k(f"s_mov_b32 m0, {k.s_tmp2[1]}")
            npoll[0] += 1
        k.V.free(x)

    KS = {}

    def cstep(dst, z, e, t):
        k(f"v_pk_mul_f32 {t}, {z}, {e} op_sel:[0,0] op_sel_hi:[1,0]")
        k(f"v_pk_fma_f32 {dst}, {z}, {e}, {t} op_sel:[1,1,0] op_sel_hi:[0,1,1] neg_lo:[1,0,0]")

    def kg_params():
        k(f"v_lshlrev_b32 {ld}, 16, {ld}")
        L2E = 1.4426950408889634
        hi = struct.unpack('<f', struct.pack('<I', struct.unpack('<I', struct.pack('<f', L2E))[0] & 0xFFFFFF00))[0]
        lo = L2E - hi
        dt, ta, tb_ = k.v(), k.v(), k.v()
        k(f"v_mul_f32 {ta}, {fhex(hi)}, {ld}")
        k(f"v_mul_f32 {tb_}, {fhex(lo * 0.6931471805599453)}, {ld}")
        k(f"v_exp_f32 {ta}, {ta}")
        k(f"v_fma_f32 {dt}, {ta}, {tb_}, {ta}")
        k.round_bf16(dt, dt, ta)
        slc, slr, sl0 = k.s(), k.s(), k.s()
        k(f"s_cmp_eq_u32 {kt}, 0")
        k(f"s_cselect_b32 {slc}, 1.0, 4.0")
        k(f"s_mov_b32 {slr}, {fhex(32.0)}")
        k(f"s_cselect_b32 {slr}, {slr}, {fhex(128.0)}")
        k(f"s_cselect_b32 {sl0}, 0, {fhex(512.0)}")
        Ec, Er_, zc, zr, tmps = [], [], [], [], []
        for md in range(2):
            p_ = {}
            for nm in par:
                p_[nm] = k.v()
                if md == 0:
                    k(f"v_lshlrev_b32 {p_[nm]}, 16, {par[nm]}")
                else:
                    k(f"v_and_b32 {p_[nm]}, {smask}, {par[nm]}")
            ar, ai = p_['B_A_re'], p_['B_A_im']
            br, bi = p_['B_B_re'], p_['B_B_im']
            cr, ci = p_['B_C_re'], p_['B_C_im']
            for x in (ar, ai, br, bi):
                k(f"v_mul_f32 {x}, {dt}, {x}")
            cc = k.v(2, 2)
            k(f"v_mul_f32 {cc[0]}, {cr}, {br}")
            k(f"v_mul_f32 {cc[1]}, {cr}, {bi}")
            k(f"v_fma_f32 {cc[0]}, -{ci}, {bi}, {cc[0]}")
            k(f"v_fma_f32 {cc[1]}, {ci}, {br}, {cc[1]}")
            k(f"v_mul_f32 {ar}, {fhex(L2E)}, {ar}")
            k(f"v_mul_f32 {ai}, {fhex(1 / (2 * 3.141592653589793))}, {ai}")
            es = []
            for sl in (slc, slr, sl0):
                e, x, y = k.v(2, 2), k.v(), k.v()
                k(f"v_mul_f32 {x}, {sl}, {ar}")
                k(f"v_mul_f32 {y}, {sl}, {ai}")
                k(f"v_exp_f32 {x}, {x}")
                k(f"v_fract_f32 {y}, {y}")
                k(f"v_cos_f32 {e[0]}, {y}")
                k(f"v_sin_f32 {e[1]}, {y}")
                k(f"v_mul_f32 {e[0]}, {x}, {e[0]}")
                k(f"v_mul_f32 {e[1]}, {x}, {e[1]}")
                es.append(e)
                tmps += [x, y]
            z1, z2, tp = k.v(2, 2), k.v(2, 2), k.v(2, 2)
            k(f"v_mov_b32 {z1[0]}, 1.0")
            k(f"v_mov_b32 {z1[1]}, 0")
            cstep(z2, cc, es[2], tp)
            tmps += [tp, cc, es[2]] + list(p_.values())
            Ec.append(es[0])
            Er_.append(es[1])
            zc.append(z1)
            zr.append(z2)
        vw = k.v()
        k(f"s_mul_i32 {t0}, {rg}, {KG_CH}")
        k(f"s_mul_i32 {t1}, {kt}, {48 * KG_ROW}")
        k(f"s_add_u32 {t0}, {t0}, {t1}")
        k(f"s_add_u32 {t0}, {t0}, {L_K}")
        k(f"v_lshlrev_b32 {vw}, 3, {lane}")
        k(f"v_add_u32 {vw}, {t0}, {vw}")
        k.V.free(dt, ta, tb_, ld, *tmps, *par.values())
        k.S.free(slc, slr, sl0)
        KS.update(Ec=Ec, Er=Er_, zc=zc, zr=zr, w=vw)

    def kg_tables(part):
        Ec, Er_, zc, zr, vw = KS['Ec'], KS['Er'], KS['zc'], KS['zr'], KS['w']
        tp = [k.v(2, 2) for _ in range(4)]
        pkd = [k.v(2, 2) for _ in range(6)]
        for i in range(8 * part, 8 * part + 8):
            pp = pkd[3 * (i & 1):3 * (i & 1) + 3]
            for md in range(2):
                k.pk(pp[0][md], zr[md][0], f"-{zr[md][1]}")
                k.pk(pp[1][md], zc[md][0], zc[md][1])
            k(f"ds_write_b64 {vw}, {pp[0]} offset:{i * KG_ROW}")
            k(f"ds_write_b64 {vw}, {pp[1]} offset:{(16 + 2 * i) * KG_ROW}")
            for md in range(2):
                cstep(zc[md], zc[md], Ec[md], tp[md])
                if i < 15:
                    cstep(zr[md], zr[md], Er_[md], tp[2 + md])
            for md in range(2):
                k.pk(pp[2][md], zc[md][0], zc[md][1])
            k(f"ds_write_b64 {vw}, {pp[2]} offset:{(17 + 2 * i) * KG_ROW}")
            if i < 15:
                for md in range(2):
                    cstep(zc[md], zc[md], Ec[md], tp[md])
        k.V.free(*tp, *pkd)
        if part == 1:
            k.V.free(*Ec, *Er_, *zc, *zr, vw)

    def kg_index():
        IDX = k.v(8, 2)
        va_ = k.v()
        k(f"v_add_u32 {va_}, 4096, {vl16}")
        k(f"global_load_dwordx4 {IDX[0:4]}, {va_}, {tbase['perkt']} offset:0")
        k(f"global_load_dwordx4 {IDX[4:8]}, {va_}, {tbase['perkt']} offset:1024")
        HELD.append(va_)
        KS['idx'] = IDX

    def kg_matmul():
        ch, blkid = rg, kt
        k(f"s_mul_i32 {t0}, {ch}, {KG_CH}")
        k(f"s_mul_i32 {t1}, {blkid}, {48 * KG_ROW}")
        k(f"s_add_u32 {t0}, {t0}, {t1}")
        k(f"s_add_u32 {t0}, {t0}, {L_K}")
        vr = k.v()
        k(f"v_mul_u32_u24 {vr}, {KG_ROW}, {n}")
        k(f"v_lshl_add_u32 {vr}, {g}, 4, {vr}")
        k(f"v_add_u32 {vr}, {t0}, {vr}")
        D = [k.v(4, 2) for _ in range(2)]
        bufs = [[k.v(4, 2) for _ in range(3)] for _ in range(4)]
        for ks in range(8):
            Ar, B0, B1 = bufs[ks % 4]
            k(f"ds_read_b128 {Ar}, {vr} offset:{ks * 64}")
            k(f"ds_read_b128 {B0}, {vr} offset:{16 * KG_ROW + ks * 64}")
            k(f"ds_read_b128 {B1}, {vr} offset:{32 * KG_ROW + ks * 64}")
            k.mfma(D[0], Ar, B0, D[0] if ks else None)
            k.mfma(D[1], Ar, B1, D[1] if ks else None)
        vq = k.v()
        k(f"s_lshl_b32 {t0}, {wv}, 10")
        k(f"s_add_u32 {t0}, {t0}, {L_KX}")
        k(f"v_lshlrev_b32 {vq}, 8, {g}")
        k(f"v_lshl_add_u32 {vq}, {n}, 1, {vq}")
        k(f"v_add_u32 {vq}, {t0}, {vq}")
        tt = [k.v() for _ in range(8)]
        for nt in range(2):
            for r in range(4):
                k.pk(tt[4 * nt + r], D[nt][r], D[nt][r])
                k(f"ds_write_b16 {vq}, {tt[4 * nt + r]} offset:{r * 64 + nt * 32}")
        k.V.free(vr, vq, *tt, *D, *[x for b in bufs for x in b])

    def kg_expand():
        ch, q = rg, kt
        IDX = KS['idx']
        kxb = k.s()
        k(f"s_lshl_b32 {kxb}, {ch}, 11")
        k(f"s_add_u32 {kxb}, {kxb}, {L_KX}")
        OPS = [k.v(4, 2) for _ in range(2)]
        vals = [[k.v() for _ in range(8)] for _ in range(2)]
        slow16 = k.s()
        k(f"s_mov_b32 {slow16}, 0xffff")
        for mt in range(2):
            for j in range(8):
                x, src = vals[mt][j], IDX[4 * mt + (j >> 1)]
                if j & 1:
                    k(f"v_lshrrev_b32 {x}, 16, {src}")
                else:
                    k(f"v_and_b32 {x}, {slow16}, {src}")
                k(f"v_add_u32 {x}, {kxb}, {x}")
                k(f"ds_read_u16 {x}, {x}")
        for mt in range(2):
            for jp in range(4):
                k(f"v_lshl_or_b32 {OPS[mt][jp]}, {vals[mt][2 * jp + 1]}, 16, {vals[mt][2 * jp]}")
        vb = k.v()
        k(f"s_lshl_b32 {t0}, {ch}, 12")
        k(f"s_lshl_b32 {t1}, {q}, 10")
        k(f"s_add_u32 {t0}, {t0}, {t1}")
        k(f"s_add_u32 {t0}, {t0}, {L_KOP}")
        k(f"v_add_u32 {vb}, {t0}, {vl16}")
        for mt in range(2):
            k(f"ds_write_b128 {vb}, {OPS[mt]} offset:{mt * 2048}")
        k.V.free(*OPS, vb, IDX, *vals[0], *vals[1])
        k.S.free(kxb, slow16)

    class Chan:
        def __init__(self):
            self.D = [[k.v(4, 2) for _ in range(2)] for _ in range(2)]
            self.T = [[k.v(4, 2) for _ in range(2)] for _ in range(2)]
            self.E = self.D
            self.B = [k.v(4, 2) for _ in range(2)]

        def free(self):
            k.V.free(*self.D[0], *self.D[1], *self.T[0], *self.T[1], *self.B)

    def fwd_half(C):
        fc, fs = TW[0], TW[1]
        for mt in range(2):
            for r in range(4):
                k.cmul(C.T[0][mt][r], C.T[1][mt][r], C.D[0][mt][r], C.D[1][mt][r], fc[mt][r], fs[mt][r], False)
            pack4(k, C.B[mt], C.T[0][mt], C.T[1][mt])
        for q in range(2):
            for m2 in range(2):
                k.mfma(C.E[0][m2], op_CS(G[m2][q]), C.B[q], C.E[0][m2] if q else None)
                k.mfma(C.E[1][m2], op_nSC(G[m2][q]), C.B[q], C.E[1][m2] if q else None)

    def inv_half(C, XO):
        ic, is_ = TW[2], TW[3]
        for m2 in range(2):
            pack4(k, C.B[m2], C.T[0][m2], C.T[1][m2])
        for nt in range(2):
            for q in range(2):
                k.mfma(C.D[0][nt], C.B[q], op_CnS(G[nt][q]), C.D[0][nt] if q else None)
                k.mfma(C.D[1][nt], C.B[q], op_SC(G[nt][q]), C.D[1][nt] if q else None)
        for nt in range(2):
            for r in range(4):
                k.cmul(C.T[0][nt][r], C.T[1][nt][r], C.D[0][nt][r], C.D[1][nt][r], ic[nt][r], is_[nt][r], True)
            pack4(k, XO[nt], C.T[0][nt], C.T[1][nt])

    def kg_transform():
        vr = k.v()
        k(f"v_add_u32 {vr}, {L_KOP}, {vl16}")
        sc = fhex(1.0 / 2048)
        Cs = [Chan(), Chan()]
        U = [[[k.v(4, 2) for _ in range(2)] for _ in range(2)] for _ in range(2)]
        for c in range(2):
            for mt in range(2):
                for q in range(2):
                    k(f"ds_read_b128 {U[c][mt][q]}, {vr} offset:{c * 4096 + mt * 2048 + q * 1024}")
        for c in range(2):
            C = Cs[c]
            for mt in range(2):
                for q in range(2):
                    k.mfma(C.D[0][mt], U[c][mt][q], FC[q], C.D[0][mt] if q else None)
                    k.mfma(C.D[1][mt], U[c][mt][q], FS[q], C.D[1][mt] if q else None)
            fwd_half(C)
            for m2 in range(2):
                for r in range(4):
                    k(f"v_mul_f32 {C.E[0][m2][r]}, {sc}, {C.E[0][m2][r]}")
                    k(f"v_mul_f32 {C.E[1][m2][r]}, {sc}, {C.E[1][m2][r]}")
                pack4(k, KF[c][m2], C.E[0][m2], C.E[1][m2])
        for c in range(2):
            Cs[c].free()
            k.V.free(*U[c][0], *U[c][1])
        k.V.free(vr)

    ITEMS = {'KP': kg_params, 'KT0': lambda: kg_tables(0), 'KT1': lambda: kg_tables(1), 'KM': kg_matmul,
             'KE': kg_expand, 'TI': kg_index, 'KX': kg_transform, 'BAR': lambda: k("s_barrier"),
             'T2': lambda: (tload('perw', pw[0:72], 0), tload('common', cm[4:44], 4)),
             'TF': lambda: tload('perw', pw[0:40], 0), 'TG': lambda: tload('common', cm[4:44], 4),
             'TTW': lambda: tload('perw', pw[40:72], 40),
             'T3': lambda: tload('common', cm[44:84], 44), 'T4': lambda: tload('perw', pw[72:136], 72)}

    def window(name, it):
        items = OPT['windows'].get(name, [])
        if not items or it != 0:
            return
        for nm in items:
            ITEMS[nm]()
            if OPT.get('fine') and not nm.startswith('T') and nm != 'BAR':
                k.stamp('i_' + nm)
        release()
        k.stamp('w' + name)

    k(f"s_lshl_b32 {t0}, {wv}, 10")
    k(f"s_add_u32 {t0}, {t0}, {L_WIM}")
    vt = k.v()
    k(f"v_add_u32 {vt}, {t0}, {vl16}")
    k(f"ds_write_b128 {vt}, {XR[0]}")
    k(f"ds_write_b128 {vt}, {XR[1]} offset:4096")
    k(f"v_lshrrev_b32 {tv}, 2, {n}")
    k(f"v_lshlrev_b32 {vt}, 10, {tv}")
    k(f"v_and_b32 {tv}, 3, {n}")
    k(f"v_lshl_add_u32 {vt}, {tv}, 3, {vt}")
    k(f"v_lshl_add_u32 {vt}, {g}, 5, {vt}")
    k(f"s_lshl_b32 {t0}, {wv}, 8")
    k(f"s_add_u32 {t0}, {t0}, {L_WIM}")
    k(f"v_add_u32 {vt}, {t0}, {vt}")
    k("s_barrier")
    for j in range(2):
        k(f"ds_read_b64_tr_b16 {XR[j][0:2]}, {vt} offset:{j * 128}")
        k(f"ds_read_b64_tr_b16 {XR[j][2:4]}, {vt} offset:{j * 128 + 4096}")
    for j in range(2):
        k(f"ds_write_b128 {vXw}, {XR[j]} offset:{L_XL + j * 1024}")
    k.V.free(vt, *XR)
    vtag, vzero = k.v(), k.v()
    sd = scratch_srd('debug', 256)
    k(f"v_mov_b32 {vzero}, 0")
    k(f"buffer_load_dword {vtag}, {vzero}, {sd}, 0 offen sc1")
    load_tw(RFtw)
    set_offsets(None, Z_B, X1_B, False)
    fill()
    k("s_barrier")
    k.stamp('p1a')

    def w_transpose():
        Wd = k.v(8, 2)
        for rho in range(0, 8, 2):
            for c in range(2):
                reg = Wd[(rho >> 2) * 4 + c * 2 + ((rho & 3) >> 1)]
                k(f"v_lshl_or_b32 {reg}, {Wraw[rho + 1][c]}, 16, {Wraw[rho][c]}")
        vt2, vt3 = k.v(), k.v()
        k(f"v_lshlrev_b32 {vt2}, 5, v0")
        k(f"ds_write_b128 {vt2}, {Wd[0:4]} offset:{L_WST}")
        k(f"ds_write_b128 {vt2}, {Wd[4:8]} offset:{L_WST + 16}")
        for key in WE:
            k(f"v_lshlrev_b32 {WE[key]}, 16, {WE[key]}")
        k(f"v_add_f32 {WE['a', 0]}, {WE['a', 0]}, {WE['ar', 0]}")
        k(f"v_sub_f32 {WE['a', 1]}, {WE['a', 1]}, {WE['ar', 1]}")
        k(f"v_add_f32 {WE['b', 0]}, {WE['b', 0]}, {WE['br', 0]}")
        k(f"v_sub_f32 {WE['b', 1]}, {WE['b', 1]}, {WE['br', 1]}")
        for c in range(2):
            k(f"v_add_f32 {WE['ar', c]}, {WE['a', c]}, {WE['b', c]}")
            k(f"v_sub_f32 {WE['br', c]}, {WE['a', c]}, {WE['b', c]}")
            k(f"v_mul_f32 {WE['ar', c]}, {fhex(0.125)}, {WE['ar', c]}")
            k(f"v_mul_f32 {WE['br', c]}, {fhex(0.125)}, {WE['br', c]}")
            k.pk(WE['ar', c], WE['ar', c], WE['ar', c])
            k.pk(WE['br', c], WE['br', c], WE['br', c])
        k(f"v_lshrrev_b32 {vt3}, 2, v0")
        k(f"v_lshlrev_b32 {vt3}, 4, {vt3}")
        k(f"v_and_b32 {tv}, 3, v0")
        k(f"v_lshl_add_u32 {vt3}, {tv}, 1, {vt3}")
        vt4 = k.v()
        k(f"v_add_u32 {vt4}, {8192 + 64}, {vt3}")
        k(f"v_cmp_gt_u32 vcc, 8, v0")
        k(f"v_cndmask_b32 {vt4}, {vt4}, {vt3}, vcc")
        k(f"v_add_u32 {vt3}, 8192, {vt3}")
        for c in range(2):
            k(f"ds_write_b16 {vt4}, {WE['ar', c]} offset:{L_WST + 8 * c}")
            k(f"ds_write_b16 {vt3}, {WE['br', c]} offset:{L_WST + 8 * c}")
        k.V.free(Wd, vt2, vt3, vt4, *WE.values(), *[x for r in Wraw for x in r])
        k("s_barrier")
        vt = k.v()
        WO = [k.v(4, 2) for _ in range(3)]
        k(f"ds_read_b128 {WO[0]}, {vUl} offset:{L_WST}")
        k(f"ds_read_b128 {WO[1]}, {vUl} offset:{L_WST + 4096}")
        k(f"ds_read_b128 {WO[2]}, {vUl} offset:{L_WST + 8192}")
        k(f"v_add_u32 {vt}, 8192, {vUl}")
        k(f"v_mov_b32 {tv}, {hex(OOB)}")
        k(f"v_cmp_gt_u32 vcc, 2, v0")
        k(f"v_cndmask_b32 {vt}, {tv}, {vt}, vcc")
        k(f"s_mul_i32 {t0}, {Lid}, {WT_BLK}")
        k(f"s_add_u32 {t0}, {t0}, {WT_B}")
        k(f"s_add_u32 {t1}, {t0}, 4096")
        k(f"buffer_store_dwordx4 {WO[0]}, {vUl}, {sws}, {t0} offen sc1")
        k(f"buffer_store_dwordx4 {WO[1]}, {vUl}, {sws}, {t1} offen sc1")
        k(f"buffer_store_dwordx4 {WO[2]}, {vt}, {sws}, {t0} offen sc1")
        k.V.free(vt, *WO)

    def layer(it):
        Lr = [k.v(2, 2) for _ in range(8)]
        for j in range(8):
            dh = j if j < 4 else 16 + j - 4
            k(f"ds_read_b64 {Lr[j]}, {vRFr} offset:{L_XL + dh * 256}")
        if it == 0:
            for nm in OPT['windows'].get('rf0', []):
                ITEMS[nm]()
        Aop = [k.v(4, 2) for _ in range(4)]
        for rho in range(4):
            for jp in range(4):
                k(f"v_perm_b32 {Aop[rho][jp]}, {Lr[2 * jp + 1][rho >> 1]}, {Lr[2 * jp][rho >> 1]}, {shi if rho & 1 else slo}")
        k.V.free(*Lr)
        Dr = [k.v(4, 2) for _ in range(4)]
        Di = [k.v(4, 2) for _ in range(4)]
        for rho in range(4):
            k.mfma(Dr[rho], Aop[rho], RFB1[0:4])
            k.mfma(Di[rho], Aop[rho], RFB1[4:8])
        Sx = [k.v() for _ in range(4)]
        Qx = [k.v() for _ in range(4)]
        for rho in range(4):
            k(f"v_dot2_f32_bf16 {Sx[rho]}, {Aop[rho][0]}, {sones}, 0")
            k(f"v_dot2_f32_bf16 {Qx[rho]}, {Aop[rho][0]}, {Aop[rho][0]}, 0")
        for jp in range(1, 4):
            for rho in range(4):
                k(f"v_dot2c_f32_bf16 {Sx[rho]}, {sones}, {Aop[rho][jp]}")
                k(f"v_dot2c_f32_bf16 {Qx[rho]}, {Aop[rho][jp]}, {Aop[rho][jp]}")
        Sr = k.reduce4(Sx)
        Qr = k.reduce4(Qx)
        oth, alt = Sx[1], Sx[2]
        k(f"v_mov_b32_dpp {oth}, {Sr} quad_perm:[1,0,3,2] row_mask:0xf bank_mask:0xf")
        k(f"v_add_f32_dpp {Qr}, {Qr}, {Qr} quad_perm:[1,0,3,2] row_mask:0xf bank_mask:0xf")
        k(f"v_sub_f32 {alt}, {Sr}, {oth}")
        k(f"v_add_f32 {Sr}, {Sr}, {oth}")
        mbf, rstd = k.ln_finish(Sr, Qr, Sx[3])
        k(f"v_mul_f32 {mbf}, {fhex(512.0)}, {mbf}")
        s_r = [k.s(2) for _ in range(4)]
        s_m = [k.s() for _ in range(4)]
        s_a = [k.s() for _ in range(4)]
        for rho in range(4):
            k(f"v_readlane_b32 {s_r[rho][0]}, {rstd}, {ROWLANE[rho]}")
            k(f"v_readlane_b32 {s_m[rho]}, {mbf}, {ROWLANE[rho]}")
            k(f"v_readlane_b32 {s_a[rho]}, {alt}, {ROWLANE[rho]}")
        D2 = Dr
        tr = [k.v(4, 2) for _ in range(4)]
        ti = [k.v(4, 2) for _ in range(4)]
        B2 = Aop
        for rho in range(4):
            for r in range(4):
                k.cmul(tr[rho][r], ti[rho][r], Dr[rho][r], Di[rho][r], TWV[r], TWV[4 + r], False)
            pack4(k, B2[rho], tr[rho], ti[rho])
            k.mfma(D2[rho], RFA2, B2[rho])
        k.V.free(*tr, *ti, *Di, *Sx, *Qx, *Aop)
        for rho in range(4):
            k(f"v_fma_f32 {D2[rho][0]}, -{dcm}, {s_m[rho]}, {D2[rho][0]}")
            k(f"v_fma_f32 {D2[rho][1]}, {dcm}, {s_a[rho]}, {D2[rho][1]}")
            for h in range(2):
                k(f"v_pk_mul_f32 {D2[rho][2 * h:2 * h + 2]}, {D2[rho][2 * h:2 * h + 2]}, {s_r[rho]} op_sel_hi:[1,0]")
        k.S.free(*s_r, *s_m, *s_a)
        for e in range(2):
            k.pk(O[e][0], D2[0][2 * e], D2[1][2 * e])
            k.pk(O[e][1], D2[2][2 * e], D2[3][2 * e])
            k.pk(O[e][2], D2[0][2 * e + 1], D2[1][2 * e + 1])
            k.pk(O[e][3], D2[2][2 * e + 1], D2[3][2 * e + 1])
            k(f"ds_write_b128 {vRFs}, {O[e]} offset:{L_XCH + e * 1024}")
        k.V.free(*D2)

        def store_block(lds_base, ack=True):
            if ack:
                k("s_waitcnt vmcnt(0)")
            k("s_barrier")
            k(f"ds_read_b128 {O[0]}, {vUl} offset:{lds_base}")
            k(f"ds_read_b128 {O[1]}, {vUl} offset:{lds_base + 4096}")
            k(f"buffer_store_dwordx4 {O[0]}, {vUl}, {sws}, {ssa} offen sc1")
            k(f"buffer_store_dwordx4 {O[1]}, {vUl}, {sws}, {ssb} offen sc1")
        store_block(L_XCH, ack=(it != 0))
        release()
        k.stamp('RF')
        if it == 0:
            w_transpose()
            if OPT.get('fine'):
                k.stamp('i_wt')
            sd = scratch_srd('debug', 256)
            x, y = k.v(), k.v()
            q = k.v(4, 2)
            k(f"s_cmp_lg_u32 {wv}, 0")
            k("s_cbranch_scc1 L_tag_done")
            k(f"s_mov_b32 {t2}, {SPIN_MAX}")
            k("L_tag_poll:")
            k(f"v_readfirstlane_b32 {nonce}, {vtag}")
            k(f"s_cmp_lg_u32 {nonce}, 0")
            k("s_cbranch_scc1 L_tag_done")
            k(f"s_sub_u32 {t2}, {t2}, 1")
            k(f"s_cmp_eq_u32 {t2}, 0")
            k("s_cbranch_scc1 L_tag_done")
            k(f"buffer_load_dword {vtag}, {vzero}, {sd}, 0 offen sc1")
            k("s_branch L_tag_poll")
            k("L_tag_done:")
            k("s_waitcnt vmcnt(0)")
            k("s_barrier")
            k(f"s_cmp_lg_u32 {wv}, 0")
            k("s_cbranch_scc1 L_arr_done")
            k(f"v_mov_b32 {y}, {nonce}")
            k(f"v_lshlrev_b32 {x}, 10, {lane}")
            k(f"v_mov_b32 {tv}, {hex(OOB)}")
            k(f"v_cmp_gt_u32 vcc, 8, {lane}")
            k(f"v_cndmask_b32 {x}, {tv}, {x}, vcc")
            k(f"s_lshl_b32 {t1}, {Lid}, 2")
            k(f"s_add_u32 {t0}, {t1}, {FL_B}")
            k(f"buffer_store_dword {y}, {x}, {sws}, {t0} offen sc1")
            k("L_arr_done:")
            k.stamp('arr')
            for nm in OPT['windows'].get('1a', []):
                ITEMS[nm]()
                if OPT.get('fine') and not nm.startswith('T'):
                    k.stamp('i_' + nm)
            release()
            k.stamp('w1a')
            k(f"s_cmp_lg_u32 {wv}, 0")
            k("s_cbranch_scc1 L_wt_done", manual=True)
            k(f"s_mov_b32 {t2}, {SPIN_MAX}")
            k(f"s_and_b32 {t1}, s2, 7")
            k(f"s_lshl_b32 {t1}, {t1}, 10")
            k(f"s_add_u32 {t0}, {t1}, {FL_B}")
            k("L_wtl:", manual=True)
            k(f"buffer_load_dwordx4 {q}, {vl16}, {sws}, {t0} offen sc1")
            k(f"s_sub_u32 {t2}, {t2}, 1")
            k(f"s_cmp_eq_u32 {t2}, 0")
            k("s_cbranch_scc1 L_wt_done", manual=True)
            k("s_waitcnt vmcnt(0)")
            for i in range(4):
                k(f"v_xor_b32 {q[i]}, {nonce}, {q[i]}")
            k(f"v_or3_b32 {q[0]}, {q[0]}, {q[1]}, {q[2]}")
            k(f"v_or_b32 {q[0]}, {q[0]}, {q[3]}")
            k(f"v_cmp_ne_u32 vcc, 0, {q[0]}")
            k("s_cbranch_vccnz L_wtl", manual=True)
            k("L_wt_done:", manual=True)
            k("s_barrier")
            k.V.free(x, y, q, vtag, vzero)
            k.stamp('wait')

        io = it * IT_STRIDE

        def offs(gb, fb, sbs, wave_store, between=None):
            k(f"s_add_u32 {sga}, {sslot}, {io + gb}")
            k(f"s_add_u32 {sgb}, {sslot}, {io + gb + 128 * 8192}")
            if OPT['ackfirst']:
                k("s_waitcnt vmcnt(0)")
            if between is not None and OPT['between']:
                between()
                k("s_nop 0")
            if OPT['presleep']:
                k(f"s_sleep {OPT['presleep']}")
            gather_issue()
            if between is not None and not OPT['between']:
                between()
            if fb is not None:
                k(f"s_add_u32 {sfa}, {sblk}, {io + fb}")
                k(f"s_add_u32 {sfb}, {sblk}, {io + fb + 4096}")
            if sbs is not None:
                k(f"s_add_u32 {ssa}, {sblkw if wave_store else sblk}, {io + sbs}")
                if not wave_store:
                    k(f"s_add_u32 {ssb}, {sblk}, {io + sbs + 4096}")
        offs(X1_B, U_B, Z_B, True, lambda: load_tw(TW0a))
        if it == 0:
            GW = [k.v(4, 2) for _ in range(4)]
            vGW = k.v()
            k(f"v_lshrrev_b32 {vGW}, 1, v0")
            k(f"v_mul_u32_u24 {vGW}, {WT_BLK}, {vGW}")
            k(f"v_and_b32 {tv}, 1, v0")
            k(f"v_lshl_add_u32 {vGW}, {tv}, 4, {vGW}")
            k(f"s_add_u32 {t0}, {sslot}, {WT_B}")
            k(f"s_add_u32 {t1}, {t0}, {128 * WT_BLK}")
            k(f"buffer_load_dwordx4 {GW[0]}, {vGW}, {sws}, {t0} offen sc1")
            k(f"buffer_load_dwordx4 {GW[1]}, {vGW}, {sws}, {t1} offen sc1")
            k(f"s_cmp_lg_u32 {Lid}, 0")
            k("s_cbranch_scc1 L_no256", manual=True)
            k(f"s_mov_b32 {t0}, {WT_B + 256 * 32}")
            k(f"s_mov_b32 {t1}, {WT_B + 256 * 32 + 128 * WT_BLK}")
            k(f"buffer_load_dwordx4 {GW[2]}, {vGW}, {sws}, {t0} offen sc1")
            k(f"buffer_load_dwordx4 {GW[3]}, {vGW}, {sws}, {t1} offen sc1")
            k("s_nop 0")
            k("L_no256:", manual=True)
            for nm in OPT['windows'].get('1b', []):
                ITEMS[nm]()
            release()
            k.stamp('w1b')
        gather_check()
        k(f"ds_write_b128 {vUl}, {GL[0]} offset:{L_IMG}")
        k(f"ds_write_b128 {vUl}, {GL[1]} offset:{L_IMG + 4096}")
        if it == 0:
            for i in range(2):
                k(f"ds_write_b128 {vUl}, {GW[i]} offset:{L_WIM + i * 4096}")
            k(f"s_cmp_lg_u32 {Lid}, 0")
            k("s_cbranch_scc1 L_no256w", manual=True)
            for i in range(2, 4):
                k(f"ds_write_b128 {vUl}, {GW[i]} offset:{L_WIM + i * 4096}")
            k("L_no256w:", manual=True)
            k.V.free(vGW, *GW)
        fill()
        k("s_barrier")
        k.stamp('CAld')
        if it == 0:
            for nm in OPT['windows'].get('ca0', []):
                ITEMS[nm]()
        if it == 0:
            vw = k.v()
            k(f"v_lshrrev_b32 {vw}, 1, {g}")
            k(f"v_lshlrev_b32 {vw}, 6, {vw}")
            k(f"v_add_u32 {vw}, {vw}, {n}")
            k(f"v_add_u32 {vw}, {w16}, {vw}")
            k(f"v_lshlrev_b32 {vw}, 5, {vw}")
            k(f"v_and_b32 {tv}, 1, {g}")
            k(f"v_lshl_add_u32 {vw}, {tv}, 4, {vw}")
            Wr = [k.v(4, 2) for _ in range(2)]
            for m2 in range(2):
                k(f"ds_read_b128 {Wr[m2]}, {vw} offset:{L_WIM + m2 * 4096}")
            sc = k.s()
            k(f"s_mov_b32 {sc}, {fhex(2.0 / (2048 * 512))}")
            for m2 in range(2):
                for r in range(4):
                    for c in range(2):
                        dst, src = WP[m2][4 * c + r], Wr[m2][2 * c + (r >> 1)]
                        if r & 1:
                            k(f"v_and_b32 {dst}, {smask}, {src}")
                        else:
                            k(f"v_lshlrev_b32 {dst}, 16, {src}")
                        k(f"v_mul_f32 {dst}, {sc}, {dst}")
        X = [[k.v(4, 2) for _ in range(4)] for _ in range(2)]
        for mt in range(2):
            for q in range(4):
                k(f"ds_read_b128 {X[mt][q]}, {vCAo} offset:{L_IMG + q * 2048 + mt * 512}")
        C = Chan()
        for mt in range(2):
            for q in range(4):
                k.mfma(C.D[0][mt], X[mt][q], op_CS(F[q]), C.D[0][mt] if q else None)
                k.mfma(C.D[1][mt], X[mt][q], op_nSC(F[q]), C.D[1][mt] if q else None)
        fwd_half(C)
        for m2 in range(2):
            for r in range(4):
                k.cmul(C.T[0][m2][r], C.T[1][m2][r], C.E[0][m2][r], C.E[1][m2][r], WP[m2][r], WP[m2][4 + r], True)
        release()
        k(f"s_cmp_lg_u32 {Lid}, 0")
        k(f"s_cbranch_scc1 L_q_done{it}", manual=True)
        if it == 0:
            qt = [k.v() for _ in range(16)]
            for m2 in range(2):
                k(f"ds_read_b128 {Wr[m2]}, {vw} offset:{L_WIM + 8192 + m2 * 4096}")
            for m2 in range(2):
                for r in range(4):
                    for c in range(2):
                        dst, src = qt[8 * m2 + 4 * c + r], Wr[m2][2 * c + (r >> 1)]
                        if r & 1:
                            k(f"v_and_b32 {dst}, {smask}, {src}")
                        else:
                            k(f"v_lshlrev_b32 {dst}, 16, {src}")
                        k(f"v_mul_f32 {dst}, {sc}, {dst}")
            for i in range(16):
                k(f"v_accvgpr_write_b32 {WQa[i]}, {qt[i]}")
            k.V.free(*qt)
            k("s_barrier")
        vb0, vbw, vbr, vb2 = k.v(), k.v(), k.v(), k.v()
        k(f"v_lshlrev_b32 {vb0}, 8, {g}")
        k(f"v_add_u32 {vb0}, {vb0}, {n}")
        k(f"v_add_u32 {vb0}, {w16}, {vb0}")
        k(f"v_lshlrev_b32 {vbw}, 3, {vb0}")
        k(f"v_sub_u32 {vbr}, {(2048 - 64 * 19) * 8}, {vbw}")
        k(f"v_cmp_eq_u32 vcc, 0, {vb0}")
        k(f"v_mov_b32 {vb2}, {2050 * 8}")
        k(f"v_mov_b32 {tv}, {2048 * 8}")
        k(f"v_cndmask_b32 {vb2}, {vb2}, {tv}, vcc")
        prs = [k.v(2, 2) for _ in range(8)]
        qq = [k.v(2, 2) for _ in range(8)]
        for m2 in range(2):
            for r in range(4):
                pr = prs[4 * m2 + r]
                k(f"v_mov_b32 {pr[0]}, {C.E[0][m2][r]}")
                k(f"v_mov_b32 {pr[1]}, {C.E[1][m2][r]}")
                k(f"ds_write_b64 {vbw}, {pr} offset:{L_QX + 512 * (16 * m2 + r)}")
                k(f"v_accvgpr_read_b32 {qq[4 * m2 + r][0]}, {WQa[8 * m2 + r]}")
                k(f"v_accvgpr_read_b32 {qq[4 * m2 + r][1]}, {WQa[8 * m2 + 4 + r]}")
        k(f"ds_write_b64 {vb2}, {prs[0]} offset:{L_QX}")
        k("s_barrier")
        for m2 in range(2):
            for r in range(4):
                k(f"ds_read_b64 {prs[4 * m2 + r]}, {vbr} offset:{L_QX + 512 * (19 - (16 * m2 + r))}")
        for m2 in range(2):
            for r in range(4):
                pr, q_ = prs[4 * m2 + r], qq[4 * m2 + r]
                k(f"v_fmac_f32 {C.T[0][m2][r]}, {pr[0]}, {q_[0]}")
                k(f"v_fmac_f32 {C.T[1][m2][r]}, {pr[0]}, {q_[1]}")
                k(f"v_fmac_f32 {C.T[0][m2][r]}, {pr[1]}, {q_[1]}")
                k(f"v_fma_f32 {C.T[1][m2][r]}, -{pr[1]}, {q_[0]}, {C.T[1][m2][r]}")
        k("s_waitcnt lgkmcnt(0)")
        k.V.free(vb0, vbw, vbr, vb2, *prs, *qq)
        k(f"L_q_done{it}:", manual=True)
        if it == 0:
            k.V.free(vw, *Wr)
            k.S.free(sc)
        XO = [X[0][0], X[0][1]]
        inv_half(C, XO)
        for nt in range(2):
            k(f"ds_write_b128 {vXw}, {XO[nt]} offset:{L_XCH + nt * 1024}")
        k("s_waitcnt vmcnt(0)")
        k("s_barrier")
        for nt in range(2):
            for kq in range(4):
                k(f"ds_read_b128 {X[nt][kq]}, {vl16} offset:{L_XCH + kq * 2048 + nt * 1024}")
        for nt in range(2):
            for kq in range(4):
                k.mfma(C.D[0][nt], op_CnS(F[kq]), X[nt][kq], C.D[0][nt] if kq else None)
                k.mfma(C.D[1][nt], op_SC(F[kq]), X[nt][kq], C.D[1][nt] if kq else None)
        for nt in range(2):
            k.pk(O[nt][0], C.D[0][nt][0], C.D[0][nt][1])
            k.pk(O[nt][1], C.D[1][nt][0], C.D[1][nt][1])
            k.pk(O[nt][2], C.D[0][nt][2], C.D[0][nt][3])
            k.pk(O[nt][3], C.D[1][nt][2], C.D[1][nt][3])
            k(f"buffer_store_dwordx4 {O[nt]}, {vzo}, {sws}, {ssa} offen offset:{nt * 512} sc1")
        C.free()
        k.V.free(*X[0], *X[1])
        k.stamp('CA')

        window('2p', it)
        X = [k.v(4, 2) for _ in range(2)]
        XP = [[k.v(2, 2) for _ in range(4)] for _ in range(2)]

        def ri_prep():
            load_tw(RItw)
            for nt in range(2):
                for r in range(4):
                    k(f"ds_read_b32 {X[nt][r]}, {vRIx} offset:{L_XL + nt * 256 + r * 512}")
            for nt in range(2):
                for r in range(4):
                    unpack2(XP[nt][r], X[nt][r])
        offs(Z_B, Y_B, U_B, False, ri_prep)
        window('2', it)
        gather_check()
        k(f"ds_write_b128 {vUl}, {GL[0]} offset:{L_IMG}")
        k(f"ds_write_b128 {vUl}, {GL[1]} offset:{L_IMG + 4096}")
        fill()
        k("s_barrier")
        k.stamp('RIld')
        Lz = [k.v(2, 2) for _ in range(4)]
        for e_ in range(4):
            k(f"ds_read_b64 {Lz[e_]}, {vRIz} offset:{L_IMG + e_ * 512}")
        Aop = [k.v(4, 2) for _ in range(2)]
        for e_ in range(2):
            sel = shi if e_ else slo
            k(f"v_perm_b32 {Aop[e_][0]}, {Lz[1][0]}, {Lz[0][0]}, {sel}")
            k(f"v_perm_b32 {Aop[e_][1]}, {Lz[3][0]}, {Lz[2][0]}, {sel}")
            k(f"v_perm_b32 {Aop[e_][2]}, {Lz[1][1]}, {Lz[0][1]}, {sel}")
            k(f"v_perm_b32 {Aop[e_][3]}, {Lz[3][1]}, {Lz[2][1]}, {sel}")
        szn = k.s()
        k(f"v_readlane_b32 {szn}, {Lz[0][1]}, 0")
        Vr = [[k.v(4, 2) for _ in range(2)] for _ in range(2)]
        Vi = [[k.v(4, 2) for _ in range(2)] for _ in range(2)]
        for e_ in range(2):
            for nt in range(2):
                k.mfma(Vr[e_][nt], Aop[e_], op_CnS(H[nt]))
                k.mfma(Vi[e_][nt], Aop[e_], op_SC(H[nt]))
        Ci = [k.v(4, 2) for _ in range(2)]
        k(f"s_lshl_b32 {t0}, {szn}, 16")
        k(f"s_and_b32 {t1}, {szn}, 0xffff0000")
        for e_ in range(2):
            k(f"v_xor_b32 {Ci[e_][0]}, {t1 if e_ else t0}, {sgn}")
            for r in range(1, 4):
                k(f"v_mov_b32 {Ci[e_][r]}, {Ci[e_][0]}")
        k.S.free(szn)
        D = [[k.v(4, 2) for _ in range(2)] for _ in range(2)]
        tr = [[k.v(4, 2) for _ in range(2)] for _ in range(2)]
        ti = [[k.v(4, 2) for _ in range(2)] for _ in range(2)]
        B = [[k.v(4, 2) for _ in range(2)] for _ in range(2)]
        for e_ in range(2):
            for nt in range(2):
                for r in range(4):
                    k.cmul(tr[e_][nt][r], ti[e_][nt][r], Vr[e_][nt][r], Vi[e_][nt][r], TWV[8 * nt + r], TWV[8 * nt + 4 + r], True)
                pack4(k, B[e_][nt], tr[e_][nt], ti[e_][nt])
                k.mfma(D[e_][nt], RIA2, B[e_][nt], Ci[e_])
        k.V.free(*tr[0], *tr[1], *ti[0], *ti[1], *B[0], *B[1], *Ci, *Aop, *Vr[0], *Vr[1], *Vi[0], *Vi[1], *Lz)
        Sp = [k.v(2, 2) for _ in range(2)]
        Qp = [k.v(2, 2) for _ in range(2)]
        for nt in range(2):
            for r in range(4):
                k(f"v_add_f32 {XP[nt][r][0]}, {XP[nt][r][0]}, {D[0][nt][r]}")
                k(f"v_add_f32 {XP[nt][r][1]}, {XP[nt][r][1]}, {D[1][nt][r]}")
                k.pk(X[nt][r], XP[nt][r][0], XP[nt][r][1])
                k(f"ds_write_b32 {vRIx}, {X[nt][r]} offset:{L_XL + nt * 256 + r * 512}")
                unpack2(XP[nt][r], X[nt][r])
            k(f"v_pk_add_f32 {Sp[nt]}, {XP[nt][0]}, {XP[nt][1]}")
            k(f"v_pk_mul_f32 {Qp[nt]}, {XP[nt][0]}, {XP[nt][0]}")
            k(f"v_pk_add_f32 {Sp[nt]}, {Sp[nt]}, {XP[nt][2]}")
            k(f"v_pk_fma_f32 {Qp[nt]}, {XP[nt][1]}, {XP[nt][1]}, {Qp[nt]}")
            k(f"v_pk_add_f32 {Sp[nt]}, {Sp[nt]}, {XP[nt][3]}")
            k(f"v_pk_fma_f32 {Qp[nt]}, {XP[nt][2]}, {XP[nt][2]}, {Qp[nt]}")
            k(f"v_pk_fma_f32 {Qp[nt]}, {XP[nt][3]}, {XP[nt][3]}, {Qp[nt]}")
        k(f"v_pk_add_f32 {Sp[0]}, {Sp[0]}, {Sp[1]}")
        k(f"v_pk_add_f32 {Qp[0]}, {Qp[0]}, {Qp[1]}")
        k.V.free(*D[0], *D[1])
        R = k.reduce4([Sp[0][0], Sp[0][1], Qp[0][0], Qp[0][1]])
        k(f"v_add_f32_dpp {R}, {R}, {R} quad_perm:[1,0,3,2] row_mask:0xf bank_mask:0xf")
        R2 = Qp[0][1]
        k(f"v_mov_b32 {R2}, {R}")
        k(f"v_permlane16_swap_b32 {R}, {R2}")
        mbf, rstd = k.ln_finish(R, R2, tv)
        k(f"v_mul_f32 {mbf}, {mbf}, {rstd}")
        sm, sr = k.s(2), k.s(2)
        for e_ in range(2):
            k(f"v_readlane_b32 {sm[e_]}, {mbf}, {32 * e_}")
            k(f"v_readlane_b32 {sr[e_]}, {rstd}, {32 * e_}")
        mr = Sp[1]
        k(f"v_mov_b32 {mr[0]}, {sm[0]}")
        k(f"v_mov_b32 {mr[1]}, {sm[1]}")
        for nt in range(2):
            for r in range(4):
                k(f"v_pk_fma_f32 {XP[nt][r]}, {XP[nt][r]}, {sr}, {mr} neg_lo:[0,0,1] neg_hi:[0,0,1]")
                k.pk(X[nt][r], XP[nt][r][0], XP[nt][r][1])
                k(f"ds_write_b32 {vRIx}, {X[nt][r]} offset:{L_XCH + nt * 256 + r * 512}")
        k.S.free(sm, sr)
        k.V.free(*Sp, *Qp, *XP[0], *XP[1], *X)
        store_block(L_XCH)
        k.stamp('RI')

        if it == 0:
            load_tw(TW1a)
        window('3p', it)
        offs(U_B, X1_B + IT_STRIDE if it == 0 else None, Y_B, True, (lambda: load_tw(TW1a)) if it else None)
        window('3', it)
        gather_check()
        k(f"ds_write_b128 {vCBi}, {GL[0]} offset:{L_IMG}")
        k(f"ds_write_b128 {vCBi}, {GL[1]} offset:{L_IMG + 2048}")
        if it == 0:
            fill()
        k("s_barrier")
        k.stamp('CBld')
        U = [[[k.v(4, 2) for _ in range(2)] for _ in range(2)] for _ in range(2)]
        for c in range(2):
            for mt in range(2):
                for q in range(2):
                    k(f"ds_read_b128 {U[c][mt][q]}, {vCBo} offset:{L_IMG + c * 4096 + q * 2048 + mt * 256}")
        EU = [[k.v(2, 2) for _ in range(2)] for _ in range(2)]
        for c in range(2):
            for nt in range(2):
                k(f"ds_read_b64 {EU[c][nt]}, {vCBe} offset:{L_IMG + c * 4096 + nt * 256}")
        Cs = [Chan(), Chan()]
        for c in range(2):
            C = Cs[c]
            for mt in range(2):
                for q in range(2):
                    k.mfma(C.D[0][mt], U[c][mt][q], FC[q], C.D[0][mt] if q else None)
                    k.mfma(C.D[1][mt], U[c][mt][q], FS[q], C.D[1][mt] if q else None)
            fwd_half(C)
            for m2 in range(2):
                kr, ki = U[c][m2][0], U[c][m2][1]
                for r in range(4):
                    for dst, src in ((kr[r], KF[c][m2][r >> 1]), (ki[r], KF[c][m2][2 + (r >> 1)])):
                        if r & 1:
                            k(f"v_and_b32 {dst}, {smask}, {src}")
                        else:
                            k(f"v_lshlrev_b32 {dst}, 16, {src}")
                for r in range(4):
                    k.cmul(C.T[0][m2][r], C.T[1][m2][r], C.E[0][m2][r], C.E[1][m2][r], kr[r], ki[r], True)
            XO = [U[c][0][0], U[c][0][1]]
            inv_half(C, XO)
            for nt in range(2):
                k(f"ds_write_b128 {vXw}, {XO[nt]} offset:{L_XCH + c * 8192 + nt * 1024}")
            for nt in range(2):
                for h in range(2):
                    unpack2(U[c][1][nt][2 * h:2 * h + 2], EU[c][nt][h])
        k("s_waitcnt vmcnt(0)")
        k("s_barrier")
        Yc = [[[Cs[c].T[0][0], Cs[c].T[0][1], Cs[c].T[1][0], Cs[c].T[1][1]],
               [Cs[c].D[1][0], Cs[c].D[1][1], Cs[c].B[0], Cs[c].B[1]]] for c in range(2)]
        for c in range(2):
            for nt in range(2):
                for kq in range(4):
                    k(f"ds_read_b128 {Yc[c][nt][kq]}, {vl16} offset:{L_XCH + c * 8192 + kq * 2048 + nt * 1024}")
        UP = [[[U[c][1][0][0:2], U[c][1][0][2:4]], [U[c][1][1][0:2], U[c][1][1][2:4]]] for c in range(2)]
        for c in range(2):
            D = Cs[c].D[0]
            for nt in range(2):
                for kq in range(4):
                    k.mfma(D[nt], I2[kq], Yc[c][nt][kq], D[nt] if kq else None)
        for c in range(2):
            D = Cs[c].D[0]
            for nt in range(2):
                for h in range(2):
                    for e_ in range(2):
                        k(f"v_fmac_f32 {D[nt][2 * h + e_]}, {ds2[c][0]}, {UP[c][nt][h][e_]}")
                    k.pk(O[nt][2 * c + h], D[nt][2 * h], D[nt][2 * h + 1])
        for nt in range(2):
            k(f"v_permlane16_swap_b32 {O[nt][0]}, {O[nt][2]}")
            k(f"v_permlane16_swap_b32 {O[nt][1]}, {O[nt][3]}")
            k(f"buffer_store_dwordx4 {O[nt]}, {vzo}, {sws}, {ssa} offen offset:{nt * 512} sc1")
        for c in range(2):
            Cs[c].free()
            k.V.free(*U[c][0], *U[c][1], *EU[c])
        k.stamp('CB')

        XV = [k.v(4, 2) for _ in range(2)]
        xps = [[k.v(2, 2) for _ in range(4)] for _ in range(2)]
        yps = [[k.v(2, 2) for _ in range(4)] for _ in range(2)]

        def res_prep():
            if it == 0:
                load_tw(RFtw)
            k(f"ds_read_b128 {XV[0]}, {vUl} offset:{L_XL}")
            k(f"ds_read_b128 {XV[1]}, {vUl} offset:{L_XL + 4096}")
            for i in range(2):
                for j in range(4):
                    unpack2(xps[i][j], XV[i][j])
        offs(Y_B, Z_B + IT_STRIDE if it == 0 else None, X1_B + IT_STRIDE if it == 0 else None, False, res_prep)
        gather_check()
        for i in range(2):
            for j in range(4):
                unpack2(yps[i][j], GL[i][j])
                k(f"v_pk_add_f32 {yps[i][j]}, {yps[i][j]}, {xps[i][j]}")
                k.pk(XV[i][j], yps[i][j][0], yps[i][j][1])
            k(f"ds_write_b128 {vUl}, {XV[i]} offset:{L_XL + i * 4096}")
        k.V.free(*yps[0], *yps[1], *xps[0], *xps[1], *XV)
        if it == 0:
            fill()
        k("s_barrier")
        k.stamp('resid')


    layer(0)
    layer(1)

    vt = k.v()
    k(f"v_lshrrev_b32 {tv}, 2, {n}")
    k(f"v_lshlrev_b32 {vt}, 4, {tv}")
    k(f"v_and_b32 {tv}, 1, {n}")
    k(f"v_lshl_add_u32 {vt}, {tv}, 3, {vt}")
    k(f"v_bfe_u32 {tv}, {n}, 1, 1")
    k(f"v_lshl_add_u32 {vt}, {tv}, 7, {vt}")
    k(f"v_lshl_add_u32 {vt}, {g}, 8, {vt}")
    k(f"s_lshl_b32 {t0}, {wv}, 11")
    k(f"v_add_u32 {vt}, {t0}, {vt}")
    OT = [k.v(4, 2) for _ in range(2)]
    for j in range(2):
        for h in range(2):
            k(f"ds_read_b64_tr_b16 {OT[j][2 * h:2 * h + 2]}, {vt} offset:{L_XL + j * 1024 + h * 64}")
    so = scratch_srd('out', 2048 * 512 * 2)
    vo = k.v()
    k(f"v_and_b32 {vo}, 7, {n}")
    k(f"v_lshlrev_b32 {vo}, 15, {vo}")
    k(f"v_lshrrev_b32 {tv}, 3, {n}")
    k(f"v_lshl_add_u32 {vo}, {tv}, 4, {vo}")
    k(f"v_lshl_add_u32 {vo}, {g}, 5, {vo}")
    k(f"s_lshl_b32 {t0}, {a8}, 8")
    k(f"s_add_u32 {t0}, {t0}, {bs}")
    k(f"s_lshl_b32 {t0}, {t0}, 10")
    k(f"s_lshl_b32 {t1}, {wv}, 8")
    k(f"s_add_u32 {t0}, {t0}, {t1}")
    for j in range(2):
        k(f"buffer_store_dwordx4 {OT[j]}, {vo}, {so}, {t0} offen offset:{j * 128}{OPT.get('outflag', ' sc1')}")
    if OPT['stamps']:
        k.stamp('final')
        k.stamp('drain', "s_waitcnt vmcnt(0)")
        k(f"v_lshlrev_b32 {vt}, 2, {lane}")
        k(f"s_lshl_b32 {t0}, s2, 8")
        k(f"s_add_u32 {t0}, {t0}, {TS_OFF}")
        k(f"s_mov_b32 {sws[2]}, {hex(TS_OFF + 0x100000)}")
        k(f"s_cmp_lg_u32 {wv}, 0")
        k("s_cbranch_scc1 L_end")
        k(f"buffer_store_dword {k.v_ts}, {vt}, {sws}, {t0} offen")
        if OPT.get('todebug'):
            sd = scratch_srd('debug', 64)
            k("s_cmp_lg_u32 s2, 0")
            k("s_cbranch_scc1 L_end")
            k(f"v_add_u32 {vt}, 4, {vt}")
            k(f"buffer_store_dword {k.v_ts}, {vt}, {sd}, 0 offen")
    k("L_end:")
    k("s_endpgm")
    k("L_code_end:", manual=True)
    body = k.a.finish(sched=OPT['sched'])
    body += ".p2align 8\n.type L_tables,@object\nL_tables:\n" + ttext + f".size L_tables, {toff['total']}\nL_tables_end:\n"
    print(f"vgpr={k.V.hi} agpr={k.A.hi} sgpr={k.S.hi} lds={LDS_BYTES} instrs={k.a.count()}")
    return k, body


def write(path):
    k, body = build()
    hdr = list(HDR)
    hdr.append(f"; @launch grid=(256,1,1) block=(256,1,1) lds={LDS_BYTES}")
    hdr.append('.amdgcn_target "amdgcn-amd-amdhsa--gfx950"')
    hdr.append('.text')
    txt = '\n'.join(hdr) + '\n' + kernel_text(KN, body)
    txt += '.section .rodata,"a"\n' + descriptor(KN, 256 + max(k.A.hi, 8), max(k.S.hi, 16), accum=256)
    open(path, 'w').write(txt)
    return k


def stamp_sequence(names):
    return names
    i0 = names.index('RF')
    i1 = names.index('resid') + 1
    body = names[i0:i1]
    second = [x for x in body if x not in ('w1b', 'arr', 'w1a', 'wait') and not x.startswith('i_')]
    return names[:i1] + second + names[i1:]


if __name__ == '__main__':
    for a_ in sys.argv[2:]:
        kk_, vv_ = a_.split('=')
        OPT[kk_] = eval(vv_)
    if len(sys.argv) > 1 and sys.argv[1] not in ('stamps', 'plain'):
        kk = write(sys.argv[1])
        if OPT['stamps']:
            print(stamp_sequence(kk.stamp_names))
    elif len(sys.argv) > 1 and sys.argv[1] == 'stamps':
        OPT['stamps'] = True
        OPT['fine'] = True
        kk = write('p4_ts.s')
        open('p4_ts.names', 'w').write(','.join(stamp_sequence(kk.stamp_names)))
    else:
        write('p4.s')
```

```python
import re

REG_RE = re.compile(r'^(-|abs\()?([vsa])(\d+)\)?$')
RNG_RE = re.compile(r'^(-|abs\()?([vsa])\[(\d+):(\d+)\]\)?$')

TRANS = ('v_exp_f32', 'v_log_f32', 'v_rcp_f32', 'v_rsq_f32', 'v_sqrt_f32', 'v_sin_f32', 'v_cos_f32',
         'v_rcp_iflag_f32')
RMW_DST = ('v_fmac_f32', 'v_dot2c_f32_bf16', 'v_pk_fmac_f16', 'v_writelane_b32', 'v_fmac_f32_e32',
           'v_dot2c_f32_bf16_e32')
NO_DST_S = ('s_cmp', 's_waitcnt', 's_barrier', 's_nop', 's_branch', 's_cbranch', 's_setprio', 's_endpgm',
            's_sleep', 's_setreg', 's_bitcmp', 's_sethalt', 's_setpc')


def regs_of(tok):
    tok = tok.strip()
    m = REG_RE.match(tok)
    if m:
        return {(m.group(2), int(m.group(3)))}
    m = RNG_RE.match(tok)
    if m:
        return {(m.group(2), i) for i in range(int(m.group(3)), int(m.group(4)) + 1)}
    if tok == 'vcc':
        return {('s', 106), ('s', 107)}
    if tok == 'vcc_lo':
        return {('s', 106)}
    if tok == 'vcc_hi':
        return {('s', 107)}
    if tok == 'exec':
        return {('s', 126), ('s', 127)}
    if tok == 'exec_lo':
        return {('s', 126)}
    if tok == 'exec_hi':
        return {('s', 127)}
    if tok == 'm0':
        return {('s', 124)}
    return set()


def split_ops(s):
    out, depth, cur = [], 0, ''
    for ch in s:
        if ch in '[(':
            depth += 1
        if ch in '])':
            depth -= 1
        if ch == ',' and depth == 0:
            out.append(cur.strip())
            cur = ''
        else:
            cur += ch
    if cur.strip():
        out.append(cur.strip())
    return out


class Ins:
    __slots__ = ('text', 'mn', 'ops', 'mods', 'kind', 'R', 'W', 'srcA', 'srcB', 'srcC', 'passes', 'dpp',
                 'trans', 'wide_store', 'lds_dma', 'manual', 'nosched', 'low')

    def __init__(self, text, manual=False):
        self.text = text
        self.manual = manual
        self.nosched = False
        self.low = False
        t = text.split(';')[0].strip()
        self.R, self.W = set(), set()
        self.srcA = self.srcB = self.srcC = set()
        self.passes = 0
        self.dpp = self.trans = self.wide_store = self.lds_dma = False
        if t.endswith(':'):
            self.kind, self.mn, self.ops, self.mods = 'label', t, [], ''
            return
        if t.startswith('.') or not t:
            self.kind, self.mn, self.ops, self.mods = 'dir', t, [], ''
            return
        parts = t.split(None, 1)
        mn = parts[0]
        self.mn = mn
        rest = parts[1] if len(parts) > 1 else ''
        ops = split_ops(rest)
        mods = ''
        if ops:
            last = ops[-1].split(None, 1)
            if len(last) > 1 and not last[0].startswith('vmcnt') and not last[0].startswith('lgkmcnt'):
                ops[-1], mods = last[0], last[1]
        self.ops, self.mods = ops, mods
        base = re.sub(r'_(e32|e64|dpp|sdwa)$', '', mn)
        rg = [regs_of(o) for o in ops]

        def U(idx):
            s = set()
            for i in idx:
                if i < len(rg):
                    s |= rg[i]
            return s
        n = len(ops)
        if base.startswith('v_mfma'):
            self.kind = 'mfma'
            self.W = rg[0]
            self.srcA, self.srcB, self.srcC = rg[1], rg[2], rg[3]
            self.R = rg[1] | rg[2] | rg[3]
            if '16x16x32' in base or '16x16x16' in base:
                self.passes = 4
            elif '32x32x16' in base or '32x32x8' in base:
                self.passes = 8
            else:
                raise ValueError('unmodelled mfma ' + base)
        elif base.startswith('v_'):
            self.kind = 'valu'
            self.trans = base in TRANS
            self.dpp = mn.endswith('_dpp') or any(k in mods for k in ('row_', 'quad_perm', 'wave_'))
            if base.startswith('v_permlane') and 'swap' in base:
                self.W = U([0, 1])
                self.R = U([0, 1])
            elif base.startswith('v_cmp'):
                self.W = rg[0]
                self.R = U(range(1, n))
            elif base in ('v_add_co_u32', 'v_sub_co_u32', 'v_addc_co_u32', 'v_subb_co_u32', 'v_subrev_co_u32'):
                self.W = U([0, 1])
                self.R = U(range(2, n))
            elif base == 'v_cndmask_b32':
                self.W = rg[0]
                self.R = U(range(1, n))
                if n == 3:
                    self.R |= regs_of('vcc')
            else:
                self.W = rg[0]
                self.R = U(range(1, n))
                if base in RMW_DST or self.dpp:
                    self.R |= rg[0]
            if base == 'v_nop':
                self.W, self.R = set(), set()
        elif base.startswith('ds_'):
            self.kind = 'ds'
            if base.startswith('ds_read') or base.startswith('ds_bpermute') or base.startswith('ds_swizzle') \
                    or base.startswith('ds_permute'):
                self.W = rg[0]
                self.R = U(range(1, n))
                if 'd16' in base:
                    self.R |= rg[0]
            else:
                self.R = U(range(n))
        elif base.startswith('buffer_') or base.startswith('global_'):
            self.kind = 'vmem'
            words = mods.split()
            if base in ('buffer_wbl2', 'buffer_inv'):
                pass
            elif 'lds' in words or '_lds_' in base:
                self.lds_dma = True
                self.R = U(range(n)) | regs_of('m0')
            elif '_load' in base:
                self.W = rg[0]
                self.R = U(range(1, n))
                if 'd16' in base:
                    self.R |= rg[0]
            elif '_atomic' in base:
                self.R = U(range(n))
                if 'sc0' in words:
                    self.W = rg[0]
            else:
                self.R = U(range(n))
                self.wide_store = 'x4' in base or 'x3' in base
                if self.wide_store:
                    self.srcA = rg[0] if base.startswith('buffer_') else rg[1]
        elif base.startswith('s_load') or base.startswith('s_buffer_load') or base in ('s_memtime', 's_memrealtime'):
            self.kind = 'smem'
            self.W = rg[0]
            self.R = U(range(1, n))
        elif base.startswith('s_'):
            self.kind = 'salu'
            if any(base.startswith(p) for p in NO_DST_S):
                self.R = U(range(n))
                if base in ('s_cbranch_vccz', 's_cbranch_vccnz'):
                    self.R |= regs_of('vcc')
                if base in ('s_cbranch_execz', 's_cbranch_execnz'):
                    self.R |= regs_of('exec')
            else:
                self.W = rg[0]
                self.R = U(range(1, n))
                if 'saveexec' in base:
                    self.W |= regs_of('exec')
                    self.R |= regs_of('exec')
                if base in ('s_addk_i32', 's_mulk_i32'):
                    self.R |= rg[0]
        else:
            raise ValueError('unmodelled instruction: ' + text)

    @property
    def is_branch(self):
        return self.kind == 'salu' and (self.mn.startswith('s_branch') or self.mn.startswith('s_cbranch')
                                        or self.mn.startswith('s_endpgm') or self.mn.startswith('s_setpc'))


def is_vgpr(r):
    return r[0] in ('v', 'a')


def wait_text(vm, lg):
    parts = []
    if vm is not None:
        parts.append('vmcnt(%d)' % min(vm, 63))
    if lg is not None:
        parts.append('lgkmcnt(%d)' % min(lg, 15))
    return 's_waitcnt ' + ' '.join(parts)


class Asm:
    def __init__(self):
        self.ins = []

    def __call__(self, text, manual=False, low=False):
        for line in text.split('\n'):
            line = line.strip()
            if not line or line.startswith(';'):
                continue
            self.ins.append(Ins(line, manual))
            self.ins[-1].low = low

    def label(self, name):
        self.ins.append(Ins(name + ':'))

    def insert_waits(self):
        out = []
        vm = []
        lg = []
        saved = {}
        for i in self.ins:
            if i.kind == 'dir' and i.text.startswith('.forget_vm'):
                vm = [set() for _ in vm]
                continue
            if i.kind == 'dir':
                out.append(i)
                continue
            if i.manual and i.is_branch and i.ops:
                saved.setdefault(i.ops[0], []).append(([set(d) for d in vm], [(kd, set(d)) for kd, d in lg]))
            if i.manual and i.kind == 'label':
                states = saved.pop(i.mn[:-1], []) + [(vm, lg)]
                dv, dl, anyv, anyl, sm = set(), set(), False, False, False
                for v_, l_ in states:
                    for d in v_:
                        dv |= d
                        anyv = True
                    for kd, d in l_:
                        dl |= d
                        anyl = True
                        sm = sm or kd == 'smem'
                vm = [dv] if anyv else []
                lg = [('smem' if sm else 'ds', dl)] if anyl else []
                out.append(i)
                continue
            touched = i.R | i.W
            need_vm = need_lg = None
            boundary = i.kind == 'label' or i.is_branch
            if boundary and not i.manual:
                idx = [k for k, d in enumerate(vm) if d]
                if idx:
                    need_vm = len(vm) - 1 - max(idx)
                if any(d for _, d in lg):
                    need_lg = 0
            else:
                for k, d in enumerate(vm):
                    if d & touched:
                        c = len(vm) - 1 - k
                        need_vm = c if need_vm is None else min(need_vm, c)
                smem_out = any(kd == 'smem' for kd, _ in lg)
                for k, (kd, d) in enumerate(lg):
                    if d & touched:
                        c = 0 if smem_out else len(lg) - 1 - k
                        need_lg = c if need_lg is None else min(need_lg, c)
                if i.mn == 's_barrier' and lg:
                    need_lg = 0
            if i.mn == 's_waitcnt':
                m = re.search(r'vmcnt\((\d+)\)', i.text)
                if m:
                    c = int(m.group(1))
                    vm = vm[len(vm) - c:] if c < len(vm) else vm
                    if c == 0:
                        vm = []
                m = re.search(r'lgkmcnt\((\d+)\)', i.text)
                if m:
                    c = int(m.group(1))
                    if c == 0:
                        lg = []
                    elif not any(kd == 'smem' for kd, _ in lg):
                        lg = lg[len(lg) - c:] if c < len(lg) else lg
                out.append(i)
                continue
            if need_vm is not None or need_lg is not None:
                if need_vm is not None:
                    need_vm = min(need_vm, 63)
                if need_lg is not None:
                    need_lg = min(need_lg, 15)
                out.append(Ins(wait_text(need_vm, need_lg)))
                if need_vm is not None:
                    vm = vm[len(vm) - need_vm:] if need_vm > 0 else []
                if need_lg is not None:
                    lg = lg[len(lg) - need_lg:] if need_lg > 0 else []
            out.append(i)
            if i.kind == 'vmem':
                vm.append(set(i.W))
            elif i.kind == 'ds':
                lg.append(('ds', set(i.W)))
            elif i.kind == 'smem':
                lg.append(('smem', set(i.W)))
            if boundary and not i.manual:
                vm = [set() for _ in vm]
                lg = [('smem', set())] if lg else []
        self.ins = out

    @staticmethod
    def required(p, c):
        need = 0
        cw_v = {r for r in c.W if is_vgpr(r)}
        cr_v = {r for r in c.R if is_vgpr(r)}
        pw_v = {r for r in p.W if is_vgpr(r)}
        pw_s = {r for r in p.W if r[0] == 's'}
        cr_s = {r for r in c.R if r[0] == 's'}
        if p.kind == 'valu':
            if c.kind == 'mfma' and pw_v & c.R:
                need = max(need, 2)
            if c.kind == 'valu':
                if p.trans and pw_v & cr_v:
                    need = max(need, 1)
                if c.dpp and pw_v & cr_v:
                    need = max(need, 2)
                if c.mn.startswith('v_permlane') and pw_v & cr_v:
                    need = max(need, 2)
                if (c.mn.startswith('v_readlane') or c.mn.startswith('v_readfirstlane')) and pw_v & cr_v:
                    need = max(need, 1)
                if pw_s & cr_s:
                    need = max(need, 4 if (c.mn.startswith('v_readlane') or c.mn.startswith('v_writelane')) else 2)
                if ('op_sel' in p.mods and not p.mn.startswith('v_pk_')) or 'dst_sel' in p.mods:
                    if pw_v & (cr_v | cw_v):
                        need = max(need, 1)
            if c.kind == 'vmem' and pw_s & cr_s:
                need = max(need, 5)
            if c.kind in ('salu', 'smem') and pw_s & cr_s:
                need = max(need, 4)
            if p.trans and c.kind in ('vmem', 'ds') and pw_v & cr_v:
                need = max(need, 1)
        if p.kind == 'mfma':
            n = p.passes
            if c.kind == 'mfma':
                if p.W & (c.srcA | c.srcB):
                    need = max(need, {4: 8, 8: 12}[n])
                if p.W & c.srcC:
                    if not (p.W == c.srcC and p.passes == c.passes):
                        need = max(need, {4: 6, 8: 10}[n])
                elif p.W & c.W:
                    need = max(need, {4: 8, 8: 12}[n])
            elif c.kind in ('valu', 'vmem', 'ds'):
                if p.W & (cr_v | cw_v):
                    need = max(need, {4: 8, 8: 12}[n])
                if p.srcC & cw_v:
                    need = max(need, {4: 3, 8: 7}[n])
        if p.kind == 'vmem' and p.wide_store and c.kind in ('valu', 'mfma', 'ds', 'vmem'):
            if p.srcA & cw_v:
                need = max(need, 2)
        if p.kind == 'salu' and ('s', 124) in p.W and (c.lds_dma or 'addtid' in c.mn):
            need = max(need, 1)
        if p.kind == 'salu' and pw_s & regs_of('exec') and c.kind == 'valu' and c.dpp:
            need = max(need, 1)
        return need

    @staticmethod
    def residual(p):
        if p.kind == 'mfma':
            return {4: 8, 8: 12}[p.passes]
        if p.kind == 'valu':
            sw = {r for r in p.W if r[0] == 's'}
            if sw and sw <= regs_of('vcc'):
                return 2
            if sw:
                return 5
            return 2 if p.W else 0
        if p.kind == 'vmem' and p.wide_store:
            return 2
        if p.kind == 'salu' and ('s', 124) in p.W:
            return 1
        return 0

    def insert_nops(self):
        out = []
        hist = []
        for i in self.ins:
            if i.kind == 'dir':
                out.append(i)
                continue
            need = 0
            if i.kind == 'label' or (i.is_branch and not i.mn.startswith('s_endpgm')):
                extra = 1 if i.kind != 'label' else 0
                for p, d in hist:
                    need = max(need, self.residual(p) - d - extra)
            else:
                for p, d in hist:
                    need = max(need, self.required(p, i) - d)
            while need > 0:
                k = min(need, 16)
                out.append(Ins('s_nop %d' % (k - 1)))
                hist = [(p, d + k) for p, d in hist]
                need -= k
            out.append(i)
            if i.kind == 'label':
                hist = []
                continue
            step = 1
            if i.mn == 's_nop':
                step = int(i.ops[0]) + 1
            hist = [(p, d + step) for p, d in hist if d + step < 24]
            hist.append((i, 0))
        self.ins = out

    VOP3_MN = ('v_fma_f32', 'v_perm_b32', 'v_cvt_pk_bf16_f32', 'v_lshl_add_u32', 'v_lshl_or_b32', 'v_bfe_u32',
               'v_or3_b32', 'v_dot2_f32_bf16', 'v_readlane_b32', 'v_writelane_b32', 'v_mul_lo_u32', 'v_and_or_b32',
               'v_accvgpr_write_b32', 'v_accvgpr_read_b32', 'v_add3_u32', 'v_mad_u32_u24')

    @classmethod
    def issue_cost(cls, i):
        if i.kind == 'mfma':
            return 8
        if i.kind == 'valu':
            if i.trans or i.mn.startswith('v_permlane'):
                return 8
            if i.mn.startswith('v_pk_') or i.mn in cls.VOP3_MN or i.dpp or ' -v' in i.text or '0x' in i.text:
                return 5
            return 4
        if i.mn == 's_nop':
            return 4 * (int(i.ops[0]) + 1)
        if i.kind == 'ds':
            if i.mn.startswith('ds_write'):
                return 28 if 'b128' in i.mn else (20 if 'b64' in i.mn else 16)
            return 12 if 'b128' in i.mn else 8
        if i.kind == 'vmem':
            if '_load' in i.mn:
                return 12
            return 48 if 'x4' in i.mn else 16
        return 4

    @staticmethod
    def lds_cost(i):
        if i.mn.startswith('ds_write'):
            return 52 if 'b128' in i.mn else (24 if 'b64' in i.mn else 16)
        return 16 if 'b128' in i.mn else 8

    @classmethod
    def latency(cls, p, c, raw):
        base = cls.issue_cost(p)
        ws = cls.required(p, c)
        lat = base + 4 * ws
        if raw:
            if p.kind == 'mfma':
                if c.kind == 'mfma' and p.W == c.srcC:
                    lat = max(lat, 16)
                else:
                    lat = max(lat, 36)
            elif p.kind == 'ds':
                lat = max(lat, 128)
            elif p.kind == 'vmem':
                lat = max(lat, 1500)
            elif p.kind == 'smem':
                lat = max(lat, 300)
        return lat

    def schedule_block(self, blk):
        n = len(blk)
        if n < 3:
            return blk
        preds = [dict() for _ in range(n)]
        lastw, readers = {}, {}
        last_salu = last_vmem = last_ldsw = None
        lds_since = []
        for j, c in enumerate(blk):
            def dep(i_, raw):
                if i_ is None or i_ == j:
                    return
                l = self.latency(blk[i_], c, raw)
                preds[j][i_] = max(preds[j].get(i_, 0), l)
            for r in c.R:
                dep(lastw.get(r), True)
            for r in c.W:
                dep(lastw.get(r), False)
                for i_ in readers.get(r, []):
                    dep(i_, False)
            if c.kind in ('salu', 'smem'):
                dep(last_salu, False)
                last_salu = j
            if c.kind == 'vmem':
                dep(last_vmem, False)
                last_vmem = j
            if c.kind == 'ds':
                if c.W and not c.mn.startswith('ds_write'):
                    dep(last_ldsw, False)
                    lds_since.append(j)
                else:
                    dep(last_ldsw, False)
                    for i_ in lds_since:
                        dep(i_, False)
                    last_ldsw = j
                    lds_since = []
            for r in c.R:
                readers.setdefault(r, []).append(j)
            for r in c.W:
                lastw[r] = j
                readers[r] = []
        succs = [[] for _ in range(n)]
        for j in range(n):
            for i_, l in preds[j].items():
                succs[i_].append((j, l))
        prio = [0] * n
        for i_ in range(n - 1, -1, -1):
            prio[i_] = max([l + prio[j] for j, l in succs[i_]] + [self.issue_cost(blk[i_])])
            if blk[i_].kind == 'vmem' and not blk[i_].low:
                prio[i_] += 100000
            if blk[i_].low:
                prio[i_] = 0
        left = [len(preds[j]) for j in range(n)]
        earliest = [0] * n
        ready = [j for j in range(n) if left[j] == 0]
        t = 0
        mfma_free = 0
        lds_free = 0
        vm_free = 0
        mfma_done = -100
        order = []
        while ready:
            best, bkey = None, None
            for j in ready:
                c = blk[j]
                st = max(t, earliest[j])
                if c.kind == 'mfma':
                    st = max(st, mfma_free)
                elif c.mn.startswith('v_pk_') or c.mn.startswith('v_dot2'):
                    st = max(st, mfma_done + 10)
                elif c.kind == 'ds':
                    st = max(st, lds_free - 64)
                elif c.kind == 'vmem':
                    st = max(st, vm_free)
                pr = prio[j]
                if c.low and any(blk[q_].kind == 'ds' and not blk[q_].low for q_ in ready):
                    st = st + 1000
                key = (st if st > t else t, -pr, j)
                if bkey is None or key < bkey:
                    best, bkey = j, key
            j = best
            c = blk[j]
            st = bkey[0]
            order.append(c)
            ready.remove(j)
            t = st + self.issue_cost(c)
            if c.kind == 'mfma':
                mfma_free = st + 16
                mfma_done = st + 16
            elif c.mn.startswith('v_pk_') or c.mn.startswith('v_dot2'):
                mfma_free = max(mfma_free, t)
            elif c.kind == 'ds':
                lds_free = max(lds_free, st) + self.lds_cost(c)
            elif c.kind == 'vmem':
                vm_free = st + (64 if 'x4' in c.mn else 24)
            for j2, l in succs[j]:
                earliest[j2] = max(earliest[j2], st + l)
                left[j2] -= 1
                if left[j2] == 0:
                    ready.append(j2)
        assert len(order) == n
        self.sched_cycles += t
        return order

    def schedule(self):
        out, blk = [], []
        self.sched_cycles = 0
        for i in self.ins:
            fence = (i.kind in ('label', 'dir') or i.is_branch or i.nosched or
                     i.mn in ('s_barrier', 's_waitcnt', 's_nop', 's_endpgm', 's_getpc_b64', 's_memrealtime', 's_sleep')
                     or 'saveexec' in i.mn or ('s', 126) in i.W or ('s', 124) in i.W)
            if fence:
                out += self.schedule_block(blk)
                blk = []
                out.append(i)
            else:
                blk.append(i)
        out += self.schedule_block(blk)
        self.ins = out

    def finish(self, sched=False):
        if sched:
            self.schedule()
        self.insert_waits()
        self.insert_nops()
        lines = []
        for i in self.ins:
            lines.append(i.text if i.kind in ('label', 'dir') else '    ' + i.text)
        return '\n'.join(lines) + '\n'

    def count(self):
        return sum(1 for i in self.ins if i.kind not in ('label', 'dir'))


class Regs:
    def __init__(self, prefix, first, limit):
        self.p, self.limit = prefix, limit
        self.used = set(range(first))
        self.hi = first

    def alloc(self, n=1, align=None):
        if align is None:
            align = 1 if n == 1 else (2 if self.p == 'v' else (2 if n == 2 else 4))
        b = 0
        while True:
            b = (b + align - 1) // align * align
            if all((b + k) not in self.used for k in range(n)):
                break
            b += 1
        if b + n > self.limit:
            raise RuntimeError('out of %s registers' % self.p)
        self.used |= set(range(b, b + n))
        self.hi = max(self.hi, b + n)
        return Reg(self.p, b, n)

    def free(self, *rs):
        for r in rs:
            self.used -= set(range(r.b, r.b + r.n))


class Reg:
    def __init__(self, p, b, n):
        self.p, self.b, self.n = p, b, n

    def __str__(self):
        return '%s%d' % (self.p, self.b) if self.n == 1 else '%s[%d:%d]' % (self.p, self.b, self.b + self.n - 1)

    def __getitem__(self, k):
        if isinstance(k, slice):
            st = k.start or 0
            en = self.n if k.stop is None else k.stop
            assert 0 <= st < en <= self.n, (st, en, self.n)
            return Reg(self.p, self.b + st, en - st)
        assert 0 <= k < self.n, (k, self.n)
        return Reg(self.p, self.b + k, 1)

    def __format__(self, spec):
        return str(self)
```

```python
import struct
import sys
from common import *
import gen
import tables
from gen import fhex, ROWLANE, pack4, op_CS, op_SC, op_CnS, op_nSC

X1_B, Z_B, U_B, Y_B = 0x0000000, 0x0400000, 0x0800000, 0x0C00000
IT_STRIDE = 0x200000
WT_B, WT_BLK = 0x1000000, 8256
FL_B = 0x1400000
WS_USED = 0x1500000
TS_OFF = 0x2000000
OOB = 0x7FFFFFF0
SPIN_MAX = 1 << 15

L_XL = 0
L_IMG = 8192
L_XCH = 16384
L_WIM = 32768
L_WST = L_WIM
L_QX = L_WIM - 64
L_K = 49152
KG_ROW = 528
KG_CH = 96 * KG_ROW
L_KX = L_K + 2 * KG_CH
L_KOP = L_K
LDS_BYTES = L_KX + 4096

OPT = dict(rfdirect=False, pk_rf=True, pk_ca=True, pk_ri=True, pk_cb=True, stamps=False, prefetch=True, sched=True, ackfirst=True, between=True, latefill=True, depth=1, sleep=0, presleep=0,
           windows={'rf0': ['TF', 'TG'], '1a': ['TTW', 'KP', 'KT0'], '1b': ['KT1'], 'ca0': ['T3'], '2p': ['TI', 'T4', 'KM'], '2': ['BAR', 'KE'], '3p': ['KX'], '3': []})


class PK(gen.K):
    def __init__(self, name):
        super().__init__(name, 256, vlimit=256)
        self.A = Regs('a', 0, 256)
        self.S = Regs('s', 4, 102)
        self.stamp_names = []

    def stamp(self, name='', wait=None):
        if not OPT['stamps']:
            return
        if OPT.get('only') and name not in OPT['only']:
            return
        if wait:
            self(wait)
        self.stamp_names.append(name)
        t = self.s_tmp2
        self(f"s_memrealtime {t}")
        self("s_waitcnt lgkmcnt(0)")
        self(f"v_writelane_b32 {self.v_ts}, {t[0]}, m0")
        self("s_add_u32 m0, m0, 1")


def build():
    k = PK(KN)
    ttext, toff = tables.emit()
    k("s_cmp_ge_u32 s2, 256")
    k("s_cbranch_scc1 L_end")
    ptr = {}
    big = k.s(16, 4)
    big2 = k.s(8, 4)
    tail = k.s(4, 4)
    k(f"s_load_dwordx16 {big}, s[0:1], 0")
    k(f"s_load_dwordx8 {big2}, s[0:1], 64")
    k(f"s_load_dwordx4 {tail}, s[0:1], 96")
    ptr['ws'] = k.s(2)
    k(f"s_load_dwordx2 {ptr['ws']}, s[0:1], 112")
    for i, nm in enumerate(['A_x', 'A_w_r', 'A_w_i', 'B_u', 'B_A_re', 'B_A_im', 'B_B_re', 'B_B_im']):
        ptr[nm] = big[2 * i:2 * i + 2]
    for i, nm in enumerate(['B_C_re', 'B_C_im', 'B_log_dt', 'B_Dskip']):
        ptr[nm] = big2[2 * i:2 * i + 2]
    ptr['out'], ptr['debug'] = tail[0:2], tail[2:4]
    lane, n, g = k.v(), k.v(), k.v()
    wv = k.s()
    tv = k.v()
    k(f"v_lshrrev_b32 {tv}, 6, v0")
    k(f"v_and_b32 {lane}, 63, v0")
    k(f"v_readfirstlane_b32 {wv}, {tv}")
    k(f"v_and_b32 {n}, 15, v0")
    k(f"v_lshrrev_b32 {g}, 4, {lane}")
    Lid, t0, t1, t2 = k.s(), k.s(), k.s(), k.s()
    k(f"s_and_b32 {Lid}, s2, 7")
    k(f"s_lshl_b32 {Lid}, {Lid}, 5")
    k(f"s_lshr_b32 {t0}, s2, 3")
    k(f"s_add_u32 {Lid}, {Lid}, {t0}")
    bs, a8 = k.s(), k.s()
    k(f"s_and_b32 {bs}, {Lid}, 31")
    k(f"s_lshr_b32 {a8}, {Lid}, 5")
    rg, kt, w16 = k.s(), k.s(), k.s()
    k(f"s_lshr_b32 {rg}, {wv}, 1")
    k(f"s_and_b32 {kt}, {wv}, 1")
    k(f"s_lshl_b32 {w16}, {wv}, 4")
    nonce = k.s()
    pc = k.s(2)
    k(f"s_getpc_b64 {pc}")
    k("L_pc_here:", manual=True)
    tb = k.s(2)
    k(f"s_add_u32 {tb[0]}, {pc[0]}, L_tables-L_pc_here")
    k(f"s_addc_u32 {tb[1]}, {pc[1]}, 0")
    vl16 = k.v()
    k(f"v_lshlrev_b32 {vl16}, 4, {lane}")
    if OPT['stamps']:
        k.s_tmp2, k.v_ts = k.s(2), k.v()
        k("s_mov_b32 m0, 0")
        k(f"v_mov_b32 {k.v_ts}, 0")
        k.stamp('entry')

    ACC = k.A.alloc(84 + 16 + 136, 4)
    cm, pk_, pw = ACC[0:84], ACC[84:100], ACC[100:236]
    RFA2, Gall, RIH, RIA2, RItw = cm[0:4], cm[4:44], cm[44:64], cm[64:68], cm[68:84]
    G = [[Gall[10 * (2 * t + q):10 * (2 * t + q) + 10] for q in range(2)] for t in range(2)]
    H = [RIH[0:10], RIH[10:20]]
    RFB1, RFtw = pk_[0:8], pk_[8:16]
    Fall, TW0a, FCSall, I2all, TW1a = pw[0:40], pw[40:72], pw[72:88], pw[88:104], pw[104:136]
    F = [Fall[10 * q:10 * q + 10] for q in range(4)]
    FC = [FCSall[8 * q:8 * q + 4] for q in range(2)]
    FS = [FCSall[8 * q + 4:8 * q + 8] for q in range(2)]
    I2 = [I2all[4 * q:4 * q + 4] for q in range(4)]
    WQa = k.A.alloc(16, 2)
    tbase = {'common': k.s(2), 'perkt': k.s(2), 'perw': k.s(2)}
    k(f"s_mov_b32 {tbase['common'][0]}, {tb[0]}")
    k(f"s_mov_b32 {tbase['common'][1]}, {tb[1]}")
    k(f"s_mul_i32 {t0}, {kt}, {toff['perkt_stride']}")
    k(f"s_add_u32 {t0}, {t0}, {toff['perkt']}")
    k(f"s_add_u32 {tbase['perkt'][0]}, {tb[0]}, {t0}")
    k(f"s_addc_u32 {tbase['perkt'][1]}, {tb[1]}, 0")
    k(f"s_mul_i32 {t0}, {wv}, {toff['perw_stride']}")
    k(f"s_add_u32 {t0}, {t0}, {toff['perw']}")
    k(f"s_add_u32 {tbase['perw'][0]}, {tb[0]}, {t0}")
    k(f"s_addc_u32 {tbase['perw'][1]}, {tb[1]}, 0")
    k.S.free(tb)

    HELD = []

    def release():
        k.V.free(*HELD)
        del HELD[:]

    def tload(sec, regs, first_reg):
        c0 = first_reg // 4
        vt_ = {}
        for i in range(regs.n // 4):
            byte = (c0 + i) * 1024
            hi, lo = byte // 4096 * 4096, byte % 4096
            if hi not in vt_:
                vt_[hi] = k.v()
                k(f"v_add_u32 {vt_[hi]}, {hi}, {vl16}")
            k(f"global_load_dwordx4 {regs[4 * i:4 * i + 4]}, {vt_[hi]}, {tbase[sec]} offset:{lo}")
        HELD.extend(vt_.values())

    tload('common', RFA2, 0)
    tload('perkt', pk_, 0)
    release()
    k("s_waitcnt lgkmcnt(0)")
    sws = k.srd(ptr['ws'], 0, WS_USED)
    scr = k.s(4)

    def scratch_srd(nm, size):
        k(f"s_mov_b32 {scr[0]}, {ptr[nm][0]}")
        k(f"s_mov_b32 {scr[1]}, {ptr[nm][1]}")
        k(f"s_mov_b32 {scr[2]}, {hex(size)}")
        k(f"s_mov_b32 {scr[3]}, 0x20000")
        return scr
    k.stamp('kernarg')

    XR = [k.v(4, 2) for _ in range(2)]
    va = k.v()
    sx = scratch_srd('A_x', 2048 * 512 * 2)
    k(f"s_lshl_b32 {t0}, {a8}, 8")
    k(f"s_add_u32 {t0}, {t0}, {bs}")
    k(f"s_lshl_b32 {t1}, {wv}, 5")
    k(f"s_add_u32 {t0}, {t0}, {t1}")
    k(f"s_lshl_b32 {t0}, {t0}, 10")
    k(f"s_add_u32 {t1}, {t0}, {4 * 32 * 1024}")
    k(f"buffer_load_dwordx4 {XR[0]}, {vl16}, {sx}, {t0} offen")
    k(f"buffer_load_dwordx4 {XR[1]}, {vl16}, {sx}, {t1} offen")
    sd = scratch_srd('debug', 256)
    k("s_cmp_lg_u32 s2, 0")
    k("s_cbranch_scc1 L_nonce_done", manual=True)
    k(f"s_cmp_lg_u32 {wv}, 0")
    k("s_cbranch_scc1 L_nonce_done", manual=True)
    tm = k.s(2)
    k(f"s_memrealtime {tm}")
    k("s_waitcnt lgkmcnt(0)")
    k(f"s_or_b32 {tm[0]}, {tm[0]}, 1")
    vz = k.v()
    k(f"v_mov_b32 {vz}, {tm[0]}")
    k(f"v_mov_b32 {va}, {hex(OOB)}")
    k(f"v_cmp_eq_u32 vcc, 0, {lane}")
    k(f"v_cndmask_b32 {va}, {va}, 0, vcc")
    k(f"buffer_store_dword {vz}, {va}, {sd}, 0 offen sc1")
    k("s_nop 1")
    k("L_nonce_done:", manual=True)
    k.S.free(tm)
    k.V.free(vz)
    Wraw = [[k.v() for _ in range(2)] for _ in range(8)]
    wb = k.s()
    k(f"s_lshr_b32 {t0}, {Lid}, 6")
    k(f"s_lshl_b32 {t0}, {t0}, 9")
    k(f"s_and_b32 {t1}, {Lid}, 63")
    k(f"s_add_u32 {wb}, {t0}, {t1}")
    k(f"s_mul_i32 {wb}, {wb}, 514")
    vin, vny, vnm = k.v(), k.v(), k.v()
    k(f"v_lshlrev_b32 {vin}, 1, v0")
    ksb = k.s()
    k(f"s_add_u32 {ksb}, {t0}, {t1}")
    k(f"v_lshlrev_b32 {vny}, 6, v0")
    k(f"v_add_u32 {vny}, {ksb}, {vny}")
    k(f"v_sub_u32 {vnm}, 2048, {vny}")
    k(f"v_and_b32 {vnm}, 2047, {vnm}")
    k(f"v_mul_u32_u24 {vny}, 514, {vny}")
    k(f"v_mul_u32_u24 {vnm}, 514, {vnm}")
    k(f"v_mov_b32 {tv}, {hex(OOB)}")
    k(f"v_cmp_gt_u32 vcc, 8, v0")
    k(f"v_cndmask_b32 {vny}, {tv}, {vny}, vcc")
    k(f"v_cndmask_b32 {vnm}, {tv}, {vnm}, vcc")
    k.S.free(ksb)
    wo = [k.s() for _ in range(8)]
    for rho in range(8):
        k(f"s_add_u32 {wo[rho]}, {wb}, {rho * 64 * 514}")
    WE = {}
    for c, nm in ((0, 'A_w_r'), (1, 'A_w_i')):
        sr = scratch_srd(nm, 2048 * 257 * 2)
        for rho in range(8):
            k(f"buffer_load_ushort {Wraw[rho][c]}, {vin}, {sr}, {wo[rho]} offen")
        for nm2, vv, off in (('a', vny, 0), ('b', vny, 512), ('ar', vnm, 0), ('br', vnm, 512)):
            WE[nm2, c] = k.v()
            k(f"buffer_load_ushort {WE[nm2, c]}, {vv}, {sr}, 0 offen offset:{off}")
    k.V.free(vin, vny, vnm)
    k.S.free(wb, *wo)
    par = {}
    k(f"s_lshl_b32 {t0}, {Lid}, 9")
    k(f"s_lshl_b32 {t1}, {rg}, 8")
    k(f"s_add_u32 {t0}, {t0}, {t1}")
    k(f"v_lshlrev_b32 {va}, 2, {lane}")
    for nm in ('B_A_re', 'B_A_im', 'B_B_re', 'B_B_im', 'B_C_re', 'B_C_im'):
        sr = scratch_srd(nm, 512 * 128 * 2)
        par[nm] = k.v()
        k(f"buffer_load_dword {par[nm]}, {va}, {sr}, {t0} offen")
    sr = scratch_srd('B_log_dt', 1024)
    ld = k.v()
    k(f"s_lshl_b32 {t1}, {Lid}, 2")
    k(f"s_lshl_b32 {t0}, {rg}, 1")
    k(f"s_add_u32 {t0}, {t0}, {t1}")
    k(f"v_mov_b32 {va}, 0")
    k(f"buffer_load_ushort {ld}, {va}, {sr}, {t0} offen")
    dsk = k.s()
    k(f"s_load_dword {dsk}, {ptr['B_Dskip']}, {t1}")
    PF = [k.v(4, 2), k.v(4, 2)]
    k(f"s_lshr_b32 {t0}, s2, 3")
    k(f"s_lshl_b32 {t0}, {t0}, 2")
    k(f"s_add_u32 {t0}, {t0}, {wv}")
    k(f"s_lshl_b32 {t0}, {t0}, 11")
    k(f"s_min_u32 {t0}, {t0}, L_tables_end-L_pc_here-2048")
    k(f"v_add_u32 {va}, {t0}, {vl16}")
    k(f"global_load_dwordx4 {PF[0]}, {va}, {pc}")
    k(f"global_load_dwordx4 {PF[1]}, {va}, {pc} offset:1024")
    k.S.free(pc)
    k.V.free(va)
    k.stamp('ldissue')

    TWV = k.v(32, 2)
    TW = [[TWV[8 * i + 4 * j:8 * i + 4 * j + 4] for j in range(2)] for i in range(4)]
    WP = [k.v(8, 2) for _ in range(2)]
    KF = [[k.v(8, 2) for _ in range(2)] for _ in range(2)]
    GL = PF
    O = [k.v(4, 2) for _ in range(2)]
    SENT = k.v(4, 2)
    for i in range(4):
        k(f"v_mov_b32 {SENT[i]}, -1")
    dcm, sgn = k.v(), k.v()
    k(f"s_lshl_b32 {t1}, {kt}, 4")
    k(f"v_add_u32 {dcm}, {t1}, {n}")
    k(f"v_lshl_add_u32 {dcm}, {dcm}, 2, {g}")
    k(f"v_cmp_eq_u32 vcc, 0, {dcm}")
    k(f"v_cndmask_b32 {dcm}, 0, 1.0, vcc")
    k(f"v_lshlrev_b32 {sgn}, 31, {n}")
    vUl, vG, vzo = k.v(), k.v(), k.v()
    k(f"v_lshlrev_b32 {vUl}, 4, v0")
    k(f"v_lshrrev_b32 {vG}, 1, v0")
    k(f"v_lshlrev_b32 {vG}, 13, {vG}")
    k(f"v_and_b32 {tv}, 1, v0")
    k(f"v_lshl_add_u32 {vG}, {tv}, 4, {vG}")
    g1, g2 = k.v(), k.v()
    k(f"v_and_b32 {g1}, 1, {g}")
    k(f"v_lshrrev_b32 {g2}, 1, {g}")
    k(f"v_lshlrev_b32 {vzo}, 10, {g2}")
    k(f"v_lshl_add_u32 {vzo}, {n}, 5, {vzo}")
    k(f"v_lshl_add_u32 {vzo}, {g1}, 4, {vzo}")
    vRFr, vRFs, vCAo, vXw, vRIz, vRIx, vCBi, vCBo, vCBe = [k.v() for _ in range(9)]
    k(f"v_lshlrev_b32 {vRFr}, 10, {g}")
    k(f"v_lshl_add_u32 {vRFr}, {n}, 4, {vRFr}")
    k(f"s_lshl_b32 {t0}, {rg}, 3")
    k(f"v_add_u32 {vRFr}, {t0}, {vRFr}")
    k(f"v_lshl_add_u32 {vRFs}, {g}, 6, {n}")
    k(f"s_lshl_b32 {t0}, {kt}, 4")
    k(f"v_add_u32 {vRFs}, {t0}, {vRFs}")
    k(f"v_lshlrev_b32 {vRFs}, 5, {vRFs}")
    k(f"s_lshl_b32 {t0}, {rg}, 4")
    k(f"v_add_u32 {vRFs}, {t0}, {vRFs}")
    k(f"v_lshl_add_u32 {vCAo}, {g2}, 5, {n}")
    k(f"v_lshlrev_b32 {vCAo}, 5, {vCAo}")
    k(f"v_lshl_add_u32 {vCAo}, {g1}, 4, {vCAo}")
    k(f"s_lshl_b32 {t0}, {wv}, 11")
    k(f"v_add_u32 {vXw}, {t0}, {vl16}")
    k(f"v_lshlrev_b32 {vRIz}, 11, {g}")
    k(f"v_lshl_add_u32 {vRIz}, {n}, 5, {vRIz}")
    k(f"s_lshl_b32 {t0}, {wv}, 3")
    k(f"v_add_u32 {vRIz}, {t0}, {vRIz}")
    k(f"v_lshlrev_b32 {vRIx}, 11, {g}")
    k(f"v_lshl_add_u32 {vRIx}, {n}, 4, {vRIx}")
    k(f"s_lshl_b32 {t0}, {wv}, 2")
    k(f"v_add_u32 {vRIx}, {t0}, {vRIx}")
    k(f"v_lshrrev_b32 {vCBi}, 1, v0")
    k(f"v_lshlrev_b32 {vCBi}, 4, {vCBi}")
    k(f"v_and_b32 {tv}, 1, v0")
    k(f"v_lshl_add_u32 {vCBi}, {tv}, 12, {vCBi}")
    k(f"v_lshlrev_b32 {vCBo}, 9, {g}")
    k(f"v_lshl_add_u32 {vCBo}, {n}, 4, {vCBo}")
    k(f"v_lshlrev_b32 {vCBe}, 9, {g2}")
    k(f"v_lshl_add_u32 {vCBe}, {n}, 4, {vCBe}")
    k(f"v_lshl_add_u32 {vCBe}, {g1}, 3, {vCBe}")
    k(f"s_lshl_b32 {t0}, {wv}, 10")
    k(f"v_add_u32 {vCBe}, {t0}, {vCBe}")
    k.V.free(g1, g2)
    slo, shi, smask, sones = k.s(), k.s(), k.s(), k.s()
    k(f"s_mov_b32 {slo}, 0x05040100")
    k(f"s_mov_b32 {shi}, 0x07060302")
    k(f"s_mov_b32 {smask}, 0xffff0000")
    k(f"s_mov_b32 {sones}, 0x3f803f80")
    sblk, sblkw, sslot = k.s(), k.s(), k.s()
    k(f"s_lshl_b32 {sblk}, {Lid}, 13")
    k(f"s_lshl_b32 {t0}, {wv}, 11")
    k(f"s_add_u32 {sblkw}, {sblk}, {t0}")
    k(f"s_lshl_b32 {sslot}, {Lid}, 5")
    ds2 = [k.s(2), k.s(2)]
    k(f"s_lshl_b32 {ds2[0][0]}, {dsk}, 16")
    k(f"s_and_b32 {ds2[1][0]}, {dsk}, 0xffff0000")
    k.S.free(dsk)
    sga, sgb, sfa, sfb, ssa, ssb = [k.s() for _ in range(6)]
    uid = [0]
    npoll = [0]

    def unpack2(pair, dw):
        k(f"v_lshlrev_b32 {pair[0]}, 16, {dw}")
        k(f"v_and_b32 {pair[1]}, {smask}, {dw}")

    def cmul4(tr, ti, ar, ai, c, s_, conj, pk):
        if not pk:
            for r in range(4):
                k.cmul(tr[r], ti[r], ar[r], ai[r], c[r], s_[r], conj)
            return
        neg = "neg_lo:[1,0,0] neg_hi:[1,0,0]"
        for h in range(2):
            sl = slice(2 * h, 2 * h + 2)
            k(f"v_pk_mul_f32 {tr[sl]}, {ar[sl]}, {c[sl]}")
            k(f"v_pk_mul_f32 {ti[sl]}, {ai[sl]}, {c[sl]}")
            k(f"v_pk_fma_f32 {tr[sl]}, {ai[sl]}, {s_[sl]}, {tr[sl]} {neg if conj else ''}")
            k(f"v_pk_fma_f32 {ti[sl]}, {ar[sl]}, {s_[sl]}, {ti[sl]} {'' if conj else neg}")

    def load_tw(acc):
        for i in range(acc.n):
            k(f"v_accvgpr_read_b32 {TWV[i]}, {acc[i]}")

    def set_offsets(gbase, fbase, sbase, wave_store):
        if gbase is not None:
            k(f"s_add_u32 {sga}, {sslot}, {gbase}")
            k(f"s_add_u32 {sgb}, {sga}, {128 * 8192}")
        if fbase is not None:
            k(f"s_add_u32 {sfa}, {sblk}, {fbase}")
            k(f"s_add_u32 {sfb}, {sfa}, 4096")
        if sbase is not None:
            k(f"s_add_u32 {ssa}, {sblkw if wave_store else sblk}, {sbase}")
            if not wave_store:
                k(f"s_add_u32 {ssb}, {ssa}, 4096")

    def fill(low=False):
        k(f"buffer_store_dwordx4 {SENT}, {vUl}, {sws}, {sfa} offen sc1", low=low)
        k(f"buffer_store_dwordx4 {SENT}, {vUl}, {sws}, {sfb} offen sc1", low=low)

    def gather_issue(first=False):
        if first and OPT['ackfirst']:
            k("s_waitcnt vmcnt(0)")
        if first and OPT['presleep']:
            k(f"s_sleep {OPT['presleep']}")
        k(f"buffer_load_dwordx4 {GL[0]}, {vG}, {sws}, {sga} offen sc1")
        k(f"buffer_load_dwordx4 {GL[1]}, {vG}, {sws}, {sgb} offen sc1")

    def gather_check():
        u = uid[0]
        uid[0] += 1
        x = k.v()
        depth = OPT['depth']
        k(f"s_mov_b32 {t2}, {SPIN_MAX}")
        for d in range(depth - 1):
            if OPT['sleep']:
                k(f"s_sleep {OPT['sleep']}")
            k(".forget_vm")
            gather_issue()
        k(f"L_chk{u}:", manual=True)
        k(f"s_waitcnt vmcnt({2 * (depth - 1)})")
        k(".forget_vm")
        k(f"v_max3_u32 {x}, {GL[0][0]}, {GL[0][1]}, {GL[0][2]}")
        k(f"v_max3_u32 {x}, {x}, {GL[0][3]}, {GL[1][0]}")
        k(f"v_max3_u32 {x}, {x}, {GL[1][1]}, {GL[1][2]}")
        k(f"v_max_u32 {x}, {x}, {GL[1][3]}")
        k(f"v_cmp_eq_u32 vcc, -1, {x}")
        k(f"s_cbranch_vccz L_ok{u}", manual=True)
        k(f"s_sub_u32 {t2}, {t2}, 1")
        k(f"s_cmp_eq_u32 {t2}, 0")
        k(f"s_cbranch_scc1 L_ok{u}", manual=True)
        gather_issue()
        k(".forget_vm")
        k(f"s_branch L_chk{u}", manual=True)
        k(f"L_ok{u}:", manual=True)
        k(".forget_vm")
        if OPT['stamps']:
            k(f"s_sub_u32 {t2}, {SPIN_MAX + 1}, {t2}")
            k(f"s_mov_b32 {t1}, {48 + npoll[0]}")
            k(f"s_mov_b32 {k.s_tmp2[1]}, m0")
            k(f"s_mov_b32 m0, {t1}")
            k(f"v_writelane_b32 {k.v_ts}, {t2}, m0")
            k(f"s_mov_b32 m0, {k.s_tmp2[1]}")
            npoll[0] += 1
        k.V.free(x)

    KS = {}

    def cstep(dst, z, e, t):
        k(f"v_pk_mul_f32 {t}, {z}, {e} op_sel:[0,0] op_sel_hi:[1,0]")
        k(f"v_pk_fma_f32 {dst}, {z}, {e}, {t} op_sel:[1,1,0] op_sel_hi:[0,1,1] neg_lo:[1,0,0]")

    def kg_params():
        k(f"v_lshlrev_b32 {ld}, 16, {ld}")
        L2E = 1.4426950408889634
        hi = struct.unpack('<f', struct.pack('<I', struct.unpack('<I', struct.pack('<f', L2E))[0] & 0xFFFFFF00))[0]
        lo = L2E - hi
        dt, ta, tb_ = k.v(), k.v(), k.v()
        k(f"v_mul_f32 {ta}, {fhex(hi)}, {ld}")
        k(f"v_mul_f32 {tb_}, {fhex(lo * 0.6931471805599453)}, {ld}")
        k(f"v_exp_f32 {ta}, {ta}")
        k(f"v_fma_f32 {dt}, {ta}, {tb_}, {ta}")
        k.round_bf16(dt, dt, ta)
        slc, slr, sl0 = k.s(), k.s(), k.s()
        k(f"s_cmp_eq_u32 {kt}, 0")
        k(f"s_cselect_b32 {slc}, 1.0, 4.0")
        k(f"s_mov_b32 {slr}, {fhex(32.0)}")
        k(f"s_cselect_b32 {slr}, {slr}, {fhex(128.0)}")
        k(f"s_cselect_b32 {sl0}, 0, {fhex(512.0)}")
        Ec, Er_, zc, zr, tmps = [], [], [], [], []
        for md in range(2):
            p_ = {}
            for nm in par:
                p_[nm] = k.v()
                if md == 0:
                    k(f"v_lshlrev_b32 {p_[nm]}, 16, {par[nm]}")
                else:
                    k(f"v_and_b32 {p_[nm]}, {smask}, {par[nm]}")
            ar, ai = p_['B_A_re'], p_['B_A_im']
            br, bi = p_['B_B_re'], p_['B_B_im']
            cr, ci = p_['B_C_re'], p_['B_C_im']
            for x in (ar, ai, br, bi):
                k(f"v_mul_f32 {x}, {dt}, {x}")
            cc = k.v(2, 2)
            k(f"v_mul_f32 {cc[0]}, {cr}, {br}")
            k(f"v_mul_f32 {cc[1]}, {cr}, {bi}")
            k(f"v_fma_f32 {cc[0]}, -{ci}, {bi}, {cc[0]}")
            k(f"v_fma_f32 {cc[1]}, {ci}, {br}, {cc[1]}")
            k(f"v_mul_f32 {ar}, {fhex(L2E)}, {ar}")
            k(f"v_mul_f32 {ai}, {fhex(1 / (2 * 3.141592653589793))}, {ai}")
            es = []
            for sl in (slc, slr, sl0):
                e, x, y = k.v(2, 2), k.v(), k.v()
                k(f"v_mul_f32 {x}, {sl}, {ar}")
                k(f"v_mul_f32 {y}, {sl}, {ai}")
                k(f"v_exp_f32 {x}, {x}")
                k(f"v_fract_f32 {y}, {y}")
                k(f"v_cos_f32 {e[0]}, {y}")
                k(f"v_sin_f32 {e[1]}, {y}")
                k(f"v_mul_f32 {e[0]}, {x}, {e[0]}")
                k(f"v_mul_f32 {e[1]}, {x}, {e[1]}")
                es.append(e)
                tmps += [x, y]
            z1, z2, tp = k.v(2, 2), k.v(2, 2), k.v(2, 2)
            k(f"v_mov_b32 {z1[0]}, 1.0")
            k(f"v_mov_b32 {z1[1]}, 0")
            cstep(z2, cc, es[2], tp)
            tmps += [tp, cc, es[2]] + list(p_.values())
            Ec.append(es[0])
            Er_.append(es[1])
            zc.append(z1)
            zr.append(z2)
        vw = k.v()
        k(f"s_mul_i32 {t0}, {rg}, {KG_CH}")
        k(f"s_mul_i32 {t1}, {kt}, {48 * KG_ROW}")
        k(f"s_add_u32 {t0}, {t0}, {t1}")
        k(f"s_add_u32 {t0}, {t0}, {L_K}")
        k(f"v_lshlrev_b32 {vw}, 3, {lane}")
        k(f"v_add_u32 {vw}, {t0}, {vw}")
        k.V.free(dt, ta, tb_, ld, *tmps, *par.values())
        k.S.free(slc, slr, sl0)
        KS.update(Ec=Ec, Er=Er_, zc=zc, zr=zr, w=vw)

    def kg_tables(part):
        Ec, Er_, zc, zr, vw = KS['Ec'], KS['Er'], KS['zc'], KS['zr'], KS['w']
        tp = [k.v(2, 2) for _ in range(4)]
        pkd = [k.v(2, 2) for _ in range(6)]
        for i in range(8 * part, 8 * part + 8):
            pp = pkd[3 * (i & 1):3 * (i & 1) + 3]
            for md in range(2):
                k.pk(pp[0][md], zr[md][0], f"-{zr[md][1]}")
                k.pk(pp[1][md], zc[md][0], zc[md][1])
            k(f"ds_write_b64 {vw}, {pp[0]} offset:{i * KG_ROW}")
            k(f"ds_write_b64 {vw}, {pp[1]} offset:{(16 + 2 * i) * KG_ROW}")
            for md in range(2):
                cstep(zc[md], zc[md], Ec[md], tp[md])
                if i < 15:
                    cstep(zr[md], zr[md], Er_[md], tp[2 + md])
            for md in range(2):
                k.pk(pp[2][md], zc[md][0], zc[md][1])
            k(f"ds_write_b64 {vw}, {pp[2]} offset:{(17 + 2 * i) * KG_ROW}")
            if i < 15:
                for md in range(2):
                    cstep(zc[md], zc[md], Ec[md], tp[md])
        k.V.free(*tp, *pkd)
        if part == 1:
            k.V.free(*Ec, *Er_, *zc, *zr, vw)

    def kg_index():
        IDX = k.v(8, 2)
        va_ = k.v()
        k(f"v_add_u32 {va_}, 4096, {vl16}")
        k(f"global_load_dwordx4 {IDX[0:4]}, {va_}, {tbase['perkt']} offset:0")
        k(f"global_load_dwordx4 {IDX[4:8]}, {va_}, {tbase['perkt']} offset:1024")
        HELD.append(va_)
        KS['idx'] = IDX

    def kg_matmul():
        ch, blkid = rg, kt
        k(f"s_mul_i32 {t0}, {ch}, {KG_CH}")
        k(f"s_mul_i32 {t1}, {blkid}, {48 * KG_ROW}")
        k(f"s_add_u32 {t0}, {t0}, {t1}")
        k(f"s_add_u32 {t0}, {t0}, {L_K}")
        vr = k.v()
        k(f"v_mul_u32_u24 {vr}, {KG_ROW}, {n}")
        k(f"v_lshl_add_u32 {vr}, {g}, 4, {vr}")
        k(f"v_add_u32 {vr}, {t0}, {vr}")
        D = [k.v(4, 2) for _ in range(2)]
        bufs = [[k.v(4, 2) for _ in range(3)] for _ in range(4)]
        for ks in range(8):
            Ar, B0, B1 = bufs[ks % 4]
            k(f"ds_read_b128 {Ar}, {vr} offset:{ks * 64}")
            k(f"ds_read_b128 {B0}, {vr} offset:{16 * KG_ROW + ks * 64}")
            k(f"ds_read_b128 {B1}, {vr} offset:{32 * KG_ROW + ks * 64}")
            k.mfma(D[0], Ar, B0, D[0] if ks else None)
            k.mfma(D[1], Ar, B1, D[1] if ks else None)
        vq = k.v()
        k(f"s_lshl_b32 {t0}, {wv}, 10")
        k(f"s_add_u32 {t0}, {t0}, {L_KX}")
        k(f"v_lshlrev_b32 {vq}, 8, {g}")
        k(f"v_lshl_add_u32 {vq}, {n}, 1, {vq}")
        k(f"v_add_u32 {vq}, {t0}, {vq}")
        tt = [k.v() for _ in range(8)]
        for nt in range(2):
            for r in range(4):
                k.pk(tt[4 * nt + r], D[nt][r], D[nt][r])
                k(f"ds_write_b16 {vq}, {tt[4 * nt + r]} offset:{r * 64 + nt * 32}")
        k.V.free(vr, vq, *tt, *D, *[x for b in bufs for x in b])

    def kg_expand():
        ch, q = rg, kt
        IDX = KS['idx']
        kxb = k.s()
        k(f"s_lshl_b32 {kxb}, {ch}, 11")
        k(f"s_add_u32 {kxb}, {kxb}, {L_KX}")
        OPS = [k.v(4, 2) for _ in range(2)]
        vals = [[k.v() for _ in range(8)] for _ in range(2)]
        slow16 = k.s()
        k(f"s_mov_b32 {slow16}, 0xffff")
        for mt in range(2):
            for j in range(8):
                x, src = vals[mt][j], IDX[4 * mt + (j >> 1)]
                if j & 1:
                    k(f"v_lshrrev_b32 {x}, 16, {src}")
                else:
                    k(f"v_and_b32 {x}, {slow16}, {src}")
                k(f"v_add_u32 {x}, {kxb}, {x}")
                k(f"ds_read_u16 {x}, {x}")
        for mt in range(2):
            for jp in range(4):
                k(f"v_lshl_or_b32 {OPS[mt][jp]}, {vals[mt][2 * jp + 1]}, 16, {vals[mt][2 * jp]}")
        vb = k.v()
        k(f"s_lshl_b32 {t0}, {ch}, 12")
        k(f"s_lshl_b32 {t1}, {q}, 10")
        k(f"s_add_u32 {t0}, {t0}, {t1}")
        k(f"s_add_u32 {t0}, {t0}, {L_KOP}")
        k(f"v_add_u32 {vb}, {t0}, {vl16}")
        for mt in range(2):
            k(f"ds_write_b128 {vb}, {OPS[mt]} offset:{mt * 2048}")
        k.V.free(*OPS, vb, IDX, *vals[0], *vals[1])
        k.S.free(kxb, slow16)

    class Chan:
        def __init__(self, pk=False):
            self.pk = pk
            self.D = [[k.v(4, 2) for _ in range(2)] for _ in range(2)]
            self.T = [[k.v(4, 2) for _ in range(2)] for _ in range(2)]
            self.E = self.D
            self.B = [k.v(4, 2) for _ in range(2)]

        def free(self):
            k.V.free(*self.D[0], *self.D[1], *self.T[0], *self.T[1], *self.B)

    def fwd_half(C):
        fc, fs = TW[0], TW[1]
        for mt in range(2):
            cmul4(C.T[0][mt], C.T[1][mt], C.D[0][mt], C.D[1][mt], fc[mt], fs[mt], False, C.pk)
            pack4(k, C.B[mt], C.T[0][mt], C.T[1][mt])
        for q in range(2):
            for m2 in range(2):
                k.mfma(C.E[0][m2], op_CS(G[m2][q]), C.B[q], C.E[0][m2] if q else None)
                k.mfma(C.E[1][m2], op_nSC(G[m2][q]), C.B[q], C.E[1][m2] if q else None)

    def inv_half(C, XO):
        ic, is_ = TW[2], TW[3]
        for m2 in range(2):
            pack4(k, C.B[m2], C.T[0][m2], C.T[1][m2])
        for nt in range(2):
            for q in range(2):
                k.mfma(C.D[0][nt], C.B[q], op_CnS(G[nt][q]), C.D[0][nt] if q else None)
                k.mfma(C.D[1][nt], C.B[q], op_SC(G[nt][q]), C.D[1][nt] if q else None)
        for nt in range(2):
            cmul4(C.T[0][nt], C.T[1][nt], C.D[0][nt], C.D[1][nt], ic[nt], is_[nt], True, C.pk)
            pack4(k, XO[nt], C.T[0][nt], C.T[1][nt])

    def kg_transform():
        vr = k.v()
        k(f"v_add_u32 {vr}, {L_KOP}, {vl16}")
        sc = fhex(1.0 / 2048)
        Cs = [Chan(), Chan()]
        U = [[[k.v(4, 2) for _ in range(2)] for _ in range(2)] for _ in range(2)]
        for c in range(2):
            for mt in range(2):
                for q in range(2):
                    k(f"ds_read_b128 {U[c][mt][q]}, {vr} offset:{c * 4096 + mt * 2048 + q * 1024}")
        for c in range(2):
            C = Cs[c]
            for mt in range(2):
                for q in range(2):
                    k.mfma(C.D[0][mt], U[c][mt][q], FC[q], C.D[0][mt] if q else None)
                    k.mfma(C.D[1][mt], U[c][mt][q], FS[q], C.D[1][mt] if q else None)
            fwd_half(C)
            for m2 in range(2):
                for r in range(4):
                    k(f"v_mul_f32 {KF[c][m2][r]}, {sc}, {C.E[0][m2][r]}")
                    k(f"v_mul_f32 {KF[c][m2][4 + r]}, {sc}, {C.E[1][m2][r]}")
        for c in range(2):
            Cs[c].free()
            k.V.free(*U[c][0], *U[c][1])
        k.V.free(vr)

    ITEMS = {'KP': kg_params, 'KT0': lambda: kg_tables(0), 'KT1': lambda: kg_tables(1), 'KM': kg_matmul,
             'KE': kg_expand, 'TI': kg_index, 'KX': kg_transform, 'BAR': lambda: k("s_barrier"),
             'T2': lambda: (tload('perw', pw[0:72], 0), tload('common', cm[4:44], 4)),
             'TF': lambda: tload('perw', pw[0:40], 0), 'TG': lambda: tload('common', cm[4:44], 4),
             'TTW': lambda: tload('perw', pw[40:72], 40),
             'T3': lambda: tload('common', cm[44:84], 44), 'T4': lambda: tload('perw', pw[72:136], 72)}

    def window(name, it):
        items = OPT['windows'].get(name, [])
        if not items or it != 0:
            return
        for nm in items:
            ITEMS[nm]()
            if OPT.get('fine') and not nm.startswith('T') and nm != 'BAR':
                k.stamp('i_' + nm)
        release()
        k.stamp('w' + name)

    k(f"s_lshl_b32 {t0}, {wv}, 10")
    k(f"s_add_u32 {t0}, {t0}, {L_WIM}")
    vt = k.v()
    k(f"v_add_u32 {vt}, {t0}, {vl16}")
    k(f"ds_write_b128 {vt}, {XR[0]}")
    k(f"ds_write_b128 {vt}, {XR[1]} offset:4096")
    k(f"v_lshrrev_b32 {tv}, 2, {n}")
    k(f"v_lshlrev_b32 {vt}, 10, {tv}")
    k(f"v_and_b32 {tv}, 3, {n}")
    k(f"v_lshl_add_u32 {vt}, {tv}, 3, {vt}")
    k(f"v_lshl_add_u32 {vt}, {g}, 5, {vt}")
    k(f"s_lshl_b32 {t0}, {wv}, 8")
    k(f"s_add_u32 {t0}, {t0}, {L_WIM}")
    k(f"v_add_u32 {vt}, {t0}, {vt}")
    k("s_barrier")
    for j in range(2):
        k(f"ds_read_b64_tr_b16 {XR[j][0:2]}, {vt} offset:{j * 128}")
        k(f"ds_read_b64_tr_b16 {XR[j][2:4]}, {vt} offset:{j * 128 + 4096}")
    for j in range(2):
        k(f"ds_write_b128 {vXw}, {XR[j]} offset:{L_XL + j * 1024}")
    k.V.free(vt, *XR)
    vtag, vzero = k.v(), k.v()
    sd = scratch_srd('debug', 256)
    k(f"v_mov_b32 {vzero}, 0")
    k(f"buffer_load_dword {vtag}, {vzero}, {sd}, 0 offen sc1")
    load_tw(RFtw)
    set_offsets(None, Z_B, X1_B, False)
    fill()
    k("s_barrier")
    k.stamp('p1a')

    def w_transpose():
        Wd = k.v(8, 2)
        for rho in range(0, 8, 2):
            for c in range(2):
                reg = Wd[(rho >> 2) * 4 + c * 2 + ((rho & 3) >> 1)]
                k(f"v_lshl_or_b32 {reg}, {Wraw[rho + 1][c]}, 16, {Wraw[rho][c]}")
        vt2, vt3 = k.v(), k.v()
        k(f"v_lshlrev_b32 {vt2}, 5, v0")
        k(f"ds_write_b128 {vt2}, {Wd[0:4]} offset:{L_WST}")
        k(f"ds_write_b128 {vt2}, {Wd[4:8]} offset:{L_WST + 16}")
        for key in WE:
            k(f"v_lshlrev_b32 {WE[key]}, 16, {WE[key]}")
        k(f"v_add_f32 {WE['a', 0]}, {WE['a', 0]}, {WE['ar', 0]}")
        k(f"v_sub_f32 {WE['a', 1]}, {WE['a', 1]}, {WE['ar', 1]}")
        k(f"v_add_f32 {WE['b', 0]}, {WE['b', 0]}, {WE['br', 0]}")
        k(f"v_sub_f32 {WE['b', 1]}, {WE['b', 1]}, {WE['br', 1]}")
        for c in range(2):
            k(f"v_add_f32 {WE['ar', c]}, {WE['a', c]}, {WE['b', c]}")
            k(f"v_sub_f32 {WE['br', c]}, {WE['a', c]}, {WE['b', c]}")
            k(f"v_mul_f32 {WE['ar', c]}, {fhex(0.125)}, {WE['ar', c]}")
            k(f"v_mul_f32 {WE['br', c]}, {fhex(0.125)}, {WE['br', c]}")
            k.pk(WE['ar', c], WE['ar', c], WE['ar', c])
            k.pk(WE['br', c], WE['br', c], WE['br', c])
        k(f"v_lshrrev_b32 {vt3}, 2, v0")
        k(f"v_lshlrev_b32 {vt3}, 4, {vt3}")
        k(f"v_and_b32 {tv}, 3, v0")
        k(f"v_lshl_add_u32 {vt3}, {tv}, 1, {vt3}")
        vt4 = k.v()
        k(f"v_add_u32 {vt4}, {8192 + 64}, {vt3}")
        k(f"v_cmp_gt_u32 vcc, 8, v0")
        k(f"v_cndmask_b32 {vt4}, {vt4}, {vt3}, vcc")
        k(f"v_add_u32 {vt3}, 8192, {vt3}")
        for c in range(2):
            k(f"ds_write_b16 {vt4}, {WE['ar', c]} offset:{L_WST + 8 * c}")
            k(f"ds_write_b16 {vt3}, {WE['br', c]} offset:{L_WST + 8 * c}")
        k.V.free(Wd, vt2, vt3, vt4, *WE.values(), *[x for r in Wraw for x in r])
        k("s_barrier")
        vt = k.v()
        WO = [k.v(4, 2) for _ in range(3)]
        k(f"ds_read_b128 {WO[0]}, {vUl} offset:{L_WST}")
        k(f"ds_read_b128 {WO[1]}, {vUl} offset:{L_WST + 4096}")
        k(f"ds_read_b128 {WO[2]}, {vUl} offset:{L_WST + 8192}")
        k(f"v_add_u32 {vt}, 8192, {vUl}")
        k(f"v_mov_b32 {tv}, {hex(OOB)}")
        k(f"v_cmp_gt_u32 vcc, 2, v0")
        k(f"v_cndmask_b32 {vt}, {tv}, {vt}, vcc")
        k(f"s_mul_i32 {t0}, {Lid}, {WT_BLK}")
        k(f"s_add_u32 {t0}, {t0}, {WT_B}")
        k(f"s_add_u32 {t1}, {t0}, 4096")
        k(f"buffer_store_dwordx4 {WO[0]}, {vUl}, {sws}, {t0} offen sc1")
        k(f"buffer_store_dwordx4 {WO[1]}, {vUl}, {sws}, {t1} offen sc1")
        k(f"buffer_store_dwordx4 {WO[2]}, {vt}, {sws}, {t0} offen sc1")
        k.V.free(vt, *WO)

    def layer(it):
        Lr = [k.v(2, 2) for _ in range(8)]
        for j in range(8):
            dh = j if j < 4 else 16 + j - 4
            k(f"ds_read_b64 {Lr[j]}, {vRFr} offset:{L_XL + dh * 256}")
        if it == 0:
            for nm in OPT['windows'].get('rf0', []):
                ITEMS[nm]()
        Aop = [k.v(4, 2) for _ in range(4)]
        for rho in range(4):
            for jp in range(4):
                k(f"v_perm_b32 {Aop[rho][jp]}, {Lr[2 * jp + 1][rho >> 1]}, {Lr[2 * jp][rho >> 1]}, {shi if rho & 1 else slo}")
        k.V.free(*Lr)
        Dr = [k.v(4, 2) for _ in range(4)]
        Di = [k.v(4, 2) for _ in range(4)]
        for rho in range(4):
            k.mfma(Dr[rho], Aop[rho], RFB1[0:4])
            k.mfma(Di[rho], Aop[rho], RFB1[4:8])
        Sx = [k.v() for _ in range(4)]
        Qx = [k.v() for _ in range(4)]
        for rho in range(4):
            k(f"v_dot2_f32_bf16 {Sx[rho]}, {Aop[rho][0]}, {sones}, 0")
            k(f"v_dot2_f32_bf16 {Qx[rho]}, {Aop[rho][0]}, {Aop[rho][0]}, 0")
        for jp in range(1, 4):
            for rho in range(4):
                k(f"v_dot2c_f32_bf16 {Sx[rho]}, {sones}, {Aop[rho][jp]}")
                k(f"v_dot2c_f32_bf16 {Qx[rho]}, {Aop[rho][jp]}, {Aop[rho][jp]}")
        Sr = k.reduce4(Sx)
        Qr = k.reduce4(Qx)
        oth, alt = Sx[1], Sx[2]
        k(f"v_mov_b32_dpp {oth}, {Sr} quad_perm:[1,0,3,2] row_mask:0xf bank_mask:0xf")
        k(f"v_add_f32_dpp {Qr}, {Qr}, {Qr} quad_perm:[1,0,3,2] row_mask:0xf bank_mask:0xf")
        k(f"v_sub_f32 {alt}, {Sr}, {oth}")
        k(f"v_add_f32 {Sr}, {Sr}, {oth}")
        mbf, rstd = k.ln_finish(Sr, Qr, Sx[3])
        k(f"v_mul_f32 {mbf}, {fhex(512.0)}, {mbf}")
        s_r = [k.s(2) for _ in range(4)]
        s_m = [k.s() for _ in range(4)]
        s_a = [k.s() for _ in range(4)]
        for rho in range(4):
            k(f"v_readlane_b32 {s_r[rho][0]}, {rstd}, {ROWLANE[rho]}")
            k(f"v_readlane_b32 {s_m[rho]}, {mbf}, {ROWLANE[rho]}")
            k(f"v_readlane_b32 {s_a[rho]}, {alt}, {ROWLANE[rho]}")
        D2 = Dr
        tr = [k.v(4, 2) for _ in range(4)]
        ti = [k.v(4, 2) for _ in range(4)]
        B2 = Aop
        for rho in range(4):
            cmul4(tr[rho], ti[rho], Dr[rho], Di[rho], TWV[0:4], TWV[4:8], False, OPT['pk_rf'])
            pack4(k, B2[rho], tr[rho], ti[rho])
            k.mfma(D2[rho], RFA2, B2[rho])
        k.V.free(*tr, *ti, *Di, *Sx, *Qx, *Aop)
        for rho in range(4):
            k(f"v_fma_f32 {D2[rho][0]}, -{dcm}, {s_m[rho]}, {D2[rho][0]}")
            k(f"v_fma_f32 {D2[rho][1]}, {dcm}, {s_a[rho]}, {D2[rho][1]}")
            for h in range(2):
                k(f"v_pk_mul_f32 {D2[rho][2 * h:2 * h + 2]}, {D2[rho][2 * h:2 * h + 2]}, {s_r[rho]} op_sel_hi:[1,0]")
        k.S.free(*s_r, *s_m, *s_a)
        for e in range(2):
            k.pk(O[e][0], D2[0][2 * e], D2[1][2 * e])
            k.pk(O[e][1], D2[2][2 * e], D2[3][2 * e])
            k.pk(O[e][2], D2[0][2 * e + 1], D2[1][2 * e + 1])
            k.pk(O[e][3], D2[2][2 * e + 1], D2[3][2 * e + 1])
            if OPT['rfdirect'] and it == 1:
                k(f"buffer_store_dwordx4 {O[e]}, {vRFs}, {sws}, {ssa} offen offset:{e * 1024} sc1")
            else:
                k(f"ds_write_b128 {vRFs}, {O[e]} offset:{L_XCH + e * 1024}")
        k.V.free(*D2)

        def store_block(lds_base, ack=True):
            if ack:
                k("s_waitcnt vmcnt(0)")
            k("s_barrier")
            k(f"ds_read_b128 {O[0]}, {vUl} offset:{lds_base}")
            k(f"ds_read_b128 {O[1]}, {vUl} offset:{lds_base + 4096}")
            k(f"buffer_store_dwordx4 {O[0]}, {vUl}, {sws}, {ssa} offen sc1")
            k(f"buffer_store_dwordx4 {O[1]}, {vUl}, {sws}, {ssb} offen sc1")
        if not (OPT['rfdirect'] and it == 1):
            store_block(L_XCH, ack=(it != 0))
        release()
        k.stamp('RF')
        if it == 0:
            w_transpose()
            if OPT.get('fine'):
                k.stamp('i_wt')
            sd = scratch_srd('debug', 256)
            x, y = k.v(), k.v()
            q = k.v(4, 2)
            k(f"s_cmp_lg_u32 {wv}, 0")
            k("s_cbranch_scc1 L_tag_done")
            k(f"s_mov_b32 {t2}, {SPIN_MAX}")
            k("L_tag_poll:")
            k(f"v_readfirstlane_b32 {nonce}, {vtag}")
            k(f"s_cmp_lg_u32 {nonce}, 0")
            k("s_cbranch_scc1 L_tag_done")
            k(f"s_sub_u32 {t2}, {t2}, 1")
            k(f"s_cmp_eq_u32 {t2}, 0")
            k("s_cbranch_scc1 L_tag_done")
            k(f"buffer_load_dword {vtag}, {vzero}, {sd}, 0 offen sc1")
            k("s_branch L_tag_poll")
            k("L_tag_done:")
            k("s_waitcnt vmcnt(0)")
            k("s_barrier")
            k(f"s_cmp_lg_u32 {wv}, 0")
            k("s_cbranch_scc1 L_arr_done")
            k(f"v_mov_b32 {y}, {nonce}")
            k(f"v_lshlrev_b32 {x}, 10, {lane}")
            k(f"v_mov_b32 {tv}, {hex(OOB)}")
            k(f"v_cmp_gt_u32 vcc, 8, {lane}")
            k(f"v_cndmask_b32 {x}, {tv}, {x}, vcc")
            k(f"s_lshl_b32 {t1}, {Lid}, 2")
            k(f"s_add_u32 {t0}, {t1}, {FL_B}")
            k(f"buffer_store_dword {y}, {x}, {sws}, {t0} offen sc1")
            k("L_arr_done:")
            k.stamp('arr')
            for nm in OPT['windows'].get('1a', []):
                ITEMS[nm]()
                if OPT.get('fine') and not nm.startswith('T'):
                    k.stamp('i_' + nm)
            release()
            k.stamp('w1a')
            k(f"s_cmp_lg_u32 {wv}, 0")
            k("s_cbranch_scc1 L_wt_done", manual=True)
            k(f"s_mov_b32 {t2}, {SPIN_MAX}")
            k(f"s_and_b32 {t1}, s2, 7")
            k(f"s_lshl_b32 {t1}, {t1}, 10")
            k(f"s_add_u32 {t0}, {t1}, {FL_B}")
            k("L_wtl:", manual=True)
            k(f"buffer_load_dwordx4 {q}, {vl16}, {sws}, {t0} offen sc1")
            k(f"s_sub_u32 {t2}, {t2}, 1")
            k(f"s_cmp_eq_u32 {t2}, 0")
            k("s_cbranch_scc1 L_wt_done", manual=True)
            k("s_waitcnt vmcnt(0)")
            for i in range(4):
                k(f"v_xor_b32 {q[i]}, {nonce}, {q[i]}")
            k(f"v_or3_b32 {q[0]}, {q[0]}, {q[1]}, {q[2]}")
            k(f"v_or_b32 {q[0]}, {q[0]}, {q[3]}")
            k(f"v_cmp_ne_u32 vcc, 0, {q[0]}")
            k("s_cbranch_vccnz L_wtl", manual=True)
            k("L_wt_done:", manual=True)
            k("s_barrier")
            k.V.free(x, y, q, vtag, vzero)
            k.stamp('wait')

        io = it * IT_STRIDE

        def offs(gb, fb, sbs, wave_store, between=None):
            k(f"s_add_u32 {sga}, {sslot}, {io + gb}")
            k(f"s_add_u32 {sgb}, {sslot}, {io + gb + 128 * 8192}")
            if OPT['ackfirst']:
                k("s_waitcnt vmcnt(0)")
            if between is not None and OPT['between']:
                between()
                k("s_nop 0")
            if OPT['presleep']:
                k(f"s_sleep {OPT['presleep']}")
            gather_issue()
            if between is not None and not OPT['between']:
                between()
            if fb is not None:
                k(f"s_add_u32 {sfa}, {sblk}, {io + fb}")
                k(f"s_add_u32 {sfb}, {sblk}, {io + fb + 4096}")
            if sbs is not None:
                k(f"s_add_u32 {ssa}, {sblkw if wave_store else sblk}, {io + sbs}")
                if not wave_store:
                    k(f"s_add_u32 {ssb}, {sblk}, {io + sbs + 4096}")
        offs(X1_B, U_B, Z_B, True, lambda: load_tw(TW0a))
        if it == 0:
            GW = [k.v(4, 2) for _ in range(4)]
            vGW = k.v()
            k(f"v_lshrrev_b32 {vGW}, 1, v0")
            k(f"v_mul_u32_u24 {vGW}, {WT_BLK}, {vGW}")
            k(f"v_and_b32 {tv}, 1, v0")
            k(f"v_lshl_add_u32 {vGW}, {tv}, 4, {vGW}")
            k(f"s_add_u32 {t0}, {sslot}, {WT_B}")
            k(f"s_add_u32 {t1}, {t0}, {128 * WT_BLK}")
            k(f"buffer_load_dwordx4 {GW[0]}, {vGW}, {sws}, {t0} offen sc1")
            k(f"buffer_load_dwordx4 {GW[1]}, {vGW}, {sws}, {t1} offen sc1")
            k(f"s_cmp_lg_u32 {Lid}, 0")
            k("s_cbranch_scc1 L_no256", manual=True)
            k(f"s_mov_b32 {t0}, {WT_B + 256 * 32}")
            k(f"s_mov_b32 {t1}, {WT_B + 256 * 32 + 128 * WT_BLK}")
            k(f"buffer_load_dwordx4 {GW[2]}, {vGW}, {sws}, {t0} offen sc1")
            k(f"buffer_load_dwordx4 {GW[3]}, {vGW}, {sws}, {t1} offen sc1")
            k("s_nop 0")
            k("L_no256:", manual=True)
            for nm in OPT['windows'].get('1b', []):
                ITEMS[nm]()
            release()
            k.stamp('w1b')
        gather_check()
        k(f"ds_write_b128 {vUl}, {GL[0]} offset:{L_IMG}")
        k(f"ds_write_b128 {vUl}, {GL[1]} offset:{L_IMG + 4096}")
        if it == 0:
            for i in range(2):
                k(f"ds_write_b128 {vUl}, {GW[i]} offset:{L_WIM + i * 4096}")
            k(f"s_cmp_lg_u32 {Lid}, 0")
            k("s_cbranch_scc1 L_no256w", manual=True)
            for i in range(2, 4):
                k(f"ds_write_b128 {vUl}, {GW[i]} offset:{L_WIM + i * 4096}")
            k("L_no256w:", manual=True)
            k.V.free(vGW, *GW)
        k("s_barrier")
        k.stamp('CAld')
        fill(low=True)
        if it == 0:
            for nm in OPT['windows'].get('ca0', []):
                ITEMS[nm]()
        if it == 0:
            vw = k.v()
            k(f"v_lshrrev_b32 {vw}, 1, {g}")
            k(f"v_lshlrev_b32 {vw}, 6, {vw}")
            k(f"v_add_u32 {vw}, {vw}, {n}")
            k(f"v_add_u32 {vw}, {w16}, {vw}")
            k(f"v_lshlrev_b32 {vw}, 5, {vw}")
            k(f"v_and_b32 {tv}, 1, {g}")
            k(f"v_lshl_add_u32 {vw}, {tv}, 4, {vw}")
            Wr = [k.v(4, 2) for _ in range(2)]
            for m2 in range(2):
                k(f"ds_read_b128 {Wr[m2]}, {vw} offset:{L_WIM + m2 * 4096}")
            sc = k.s()
            k(f"s_mov_b32 {sc}, {fhex(2.0 / (2048 * 512))}")
            for m2 in range(2):
                for r in range(4):
                    for c in range(2):
                        dst, src = WP[m2][4 * c + r], Wr[m2][2 * c + (r >> 1)]
                        if r & 1:
                            k(f"v_and_b32 {dst}, {smask}, {src}")
                        else:
                            k(f"v_lshlrev_b32 {dst}, 16, {src}")
                        k(f"v_mul_f32 {dst}, {sc}, {dst}")
        X = [[k.v(4, 2) for _ in range(4)] for _ in range(2)]
        for mt in range(2):
            for q in range(4):
                k(f"ds_read_b128 {X[mt][q]}, {vCAo} offset:{L_IMG + q * 2048 + mt * 512}")
        C = Chan(OPT['pk_ca'])
        for mt in range(2):
            for q in range(4):
                k.mfma(C.D[0][mt], X[mt][q], op_CS(F[q]), C.D[0][mt] if q else None)
                k.mfma(C.D[1][mt], X[mt][q], op_nSC(F[q]), C.D[1][mt] if q else None)
        fwd_half(C)
        release()
        k(f"s_cmp_lg_u32 {Lid}, 0")
        k(f"s_cbranch_scc1 L_q_mid{it}", manual=True)
        if it == 0:
            qt = [k.v() for _ in range(16)]
            for m2 in range(2):
                k(f"ds_read_b128 {Wr[m2]}, {vw} offset:{L_WIM + 8192 + m2 * 4096}")
            for m2 in range(2):
                for r in range(4):
                    for c in range(2):
                        dst, src = qt[8 * m2 + 4 * c + r], Wr[m2][2 * c + (r >> 1)]
                        if r & 1:
                            k(f"v_and_b32 {dst}, {smask}, {src}")
                        else:
                            k(f"v_lshlrev_b32 {dst}, 16, {src}")
                        k(f"v_mul_f32 {dst}, {sc}, {dst}")
            for i in range(16):
                k(f"v_accvgpr_write_b32 {WQa[i]}, {qt[i]}")
            k.V.free(*qt)
            k("s_barrier")
        vb0, vbw, vbr, vb2 = k.v(), k.v(), k.v(), k.v()
        k(f"v_lshlrev_b32 {vb0}, 8, {g}")
        k(f"v_add_u32 {vb0}, {vb0}, {n}")
        k(f"v_add_u32 {vb0}, {w16}, {vb0}")
        k(f"v_lshlrev_b32 {vbw}, 3, {vb0}")
        k(f"v_sub_u32 {vbr}, {(2048 - 64 * 19) * 8}, {vbw}")
        k(f"v_cmp_eq_u32 vcc, 0, {vb0}")
        k(f"v_mov_b32 {vb2}, {2050 * 8}")
        k(f"v_mov_b32 {tv}, {2048 * 8}")
        k(f"v_cndmask_b32 {vb2}, {vb2}, {tv}, vcc")
        prs = [X[1][i >> 1][2 * (i & 1):2 * (i & 1) + 2] for i in range(8)]
        qq = [X[0][i >> 1][2 * (i & 1):2 * (i & 1) + 2] for i in range(8)]
        for m2 in range(2):
            for r in range(4):
                pr = prs[4 * m2 + r]
                k(f"v_mov_b32 {pr[0]}, {C.E[0][m2][r]}")
                k(f"v_mov_b32 {pr[1]}, {C.E[1][m2][r]}")
                k(f"ds_write_b64 {vbw}, {pr} offset:{L_QX + 512 * (16 * m2 + r)}")
                k(f"v_accvgpr_read_b32 {qq[4 * m2 + r][0]}, {WQa[8 * m2 + r]}")
                k(f"v_accvgpr_read_b32 {qq[4 * m2 + r][1]}, {WQa[8 * m2 + 4 + r]}")
        k(f"ds_write_b64 {vb2}, {prs[0]} offset:{L_QX}")
        k(f"L_q_mid{it}:", manual=True)
        for m2 in range(2):
            cmul4(C.T[0][m2], C.T[1][m2], C.E[0][m2], C.E[1][m2], WP[m2][0:4], WP[m2][4:8], True, C.pk)
        k(f"s_cmp_lg_u32 {Lid}, 0")
        k(f"s_cbranch_scc1 L_q_done{it}", manual=True)
        k("s_barrier")
        for m2 in range(2):
            for r in range(4):
                k(f"ds_read_b64 {prs[4 * m2 + r]}, {vbr} offset:{L_QX + 512 * (19 - (16 * m2 + r))}")
        for m2 in range(2):
            for r in range(4):
                pr, q_ = prs[4 * m2 + r], qq[4 * m2 + r]
                k(f"v_fmac_f32 {C.T[0][m2][r]}, {pr[0]}, {q_[0]}")
                k(f"v_fmac_f32 {C.T[1][m2][r]}, {pr[0]}, {q_[1]}")
                k(f"v_fmac_f32 {C.T[0][m2][r]}, {pr[1]}, {q_[1]}")
                k(f"v_fma_f32 {C.T[1][m2][r]}, -{pr[1]}, {q_[0]}, {C.T[1][m2][r]}")
        k("s_waitcnt lgkmcnt(0)")
        k.V.free(vb0, vbw, vbr, vb2)
        k(f"L_q_done{it}:", manual=True)
        if it == 0:
            k.V.free(vw, *Wr)
            k.S.free(sc)
        XO = [X[0][0], X[0][1]]
        inv_half(C, XO)
        for nt in range(2):
            k(f"ds_write_b128 {vXw}, {XO[nt]} offset:{L_XCH + nt * 1024}")
        k("s_waitcnt vmcnt(0)")
        k("s_barrier")
        for nt in range(2):
            for kq in range(4):
                k(f"ds_read_b128 {X[nt][kq]}, {vl16} offset:{L_XCH + kq * 2048 + nt * 1024}")
        for nt in range(2):
            for kq in range(4):
                k.mfma(C.D[0][nt], op_CnS(F[kq]), X[nt][kq], C.D[0][nt] if kq else None)
                k.mfma(C.D[1][nt], op_SC(F[kq]), X[nt][kq], C.D[1][nt] if kq else None)
        for nt in range(2):
            k.pk(O[nt][0], C.D[0][nt][0], C.D[0][nt][1])
            k.pk(O[nt][1], C.D[1][nt][0], C.D[1][nt][1])
            k.pk(O[nt][2], C.D[0][nt][2], C.D[0][nt][3])
            k.pk(O[nt][3], C.D[1][nt][2], C.D[1][nt][3])
            k(f"buffer_store_dwordx4 {O[nt]}, {vzo}, {sws}, {ssa} offen offset:{nt * 512} sc1")
        C.free()
        k.V.free(*X[0], *X[1])
        k.stamp('CA')

        window('2p', it)
        X = [k.v(4, 2) for _ in range(2)]
        XP = [[k.v(2, 2) for _ in range(4)] for _ in range(2)]

        def ri_prep():
            load_tw(RItw)
            for nt in range(2):
                for r in range(4):
                    k(f"ds_read_b32 {X[nt][r]}, {vRIx} offset:{L_XL + nt * 256 + r * 512}")
            for nt in range(2):
                for r in range(4):
                    unpack2(XP[nt][r], X[nt][r])
        offs(Z_B, Y_B, U_B, False, ri_prep)
        window('2', it)
        gather_check()
        k(f"ds_write_b128 {vUl}, {GL[0]} offset:{L_IMG}")
        k(f"ds_write_b128 {vUl}, {GL[1]} offset:{L_IMG + 4096}")
        k("s_barrier")
        k.stamp('RIld')
        fill(low=True)
        Lz = [k.v(2, 2) for _ in range(4)]
        for e_ in range(4):
            k(f"ds_read_b64 {Lz[e_]}, {vRIz} offset:{L_IMG + e_ * 512}")
        Aop = [k.v(4, 2) for _ in range(2)]
        for e_ in range(2):
            sel = shi if e_ else slo
            k(f"v_perm_b32 {Aop[e_][0]}, {Lz[1][0]}, {Lz[0][0]}, {sel}")
            k(f"v_perm_b32 {Aop[e_][1]}, {Lz[3][0]}, {Lz[2][0]}, {sel}")
            k(f"v_perm_b32 {Aop[e_][2]}, {Lz[1][1]}, {Lz[0][1]}, {sel}")
            k(f"v_perm_b32 {Aop[e_][3]}, {Lz[3][1]}, {Lz[2][1]}, {sel}")
        szn = k.s()
        k(f"v_readlane_b32 {szn}, {Lz[0][1]}, 0")
        Vr = [[k.v(4, 2) for _ in range(2)] for _ in range(2)]
        Vi = [[k.v(4, 2) for _ in range(2)] for _ in range(2)]
        for e_ in range(2):
            for nt in range(2):
                k.mfma(Vr[e_][nt], Aop[e_], op_CnS(H[nt]))
                k.mfma(Vi[e_][nt], Aop[e_], op_SC(H[nt]))
        Ci = [k.v(4, 2) for _ in range(2)]
        k(f"s_lshl_b32 {t0}, {szn}, 16")
        k(f"s_and_b32 {t1}, {szn}, 0xffff0000")
        for e_ in range(2):
            k(f"v_xor_b32 {Ci[e_][0]}, {t1 if e_ else t0}, {sgn}")
            for r in range(1, 4):
                k(f"v_mov_b32 {Ci[e_][r]}, {Ci[e_][0]}")
        k.S.free(szn)
        D = Vr
        tr = [[k.v(4, 2) for _ in range(2)] for _ in range(2)]
        ti = [[k.v(4, 2) for _ in range(2)] for _ in range(2)]
        B = Vi
        for e_ in range(2):
            for nt in range(2):
                cmul4(tr[e_][nt], ti[e_][nt], Vr[e_][nt], Vi[e_][nt], TWV[8 * nt:8 * nt + 4], TWV[8 * nt + 4:8 * nt + 8], True, OPT['pk_ri'])
                pack4(k, B[e_][nt], tr[e_][nt], ti[e_][nt])
                k.mfma(D[e_][nt], RIA2, B[e_][nt], Ci[e_])
        k.V.free(*tr[0], *tr[1], *ti[0], *ti[1], *Ci, *Aop, *Vi[0], *Vi[1], *Lz)
        Sp = [k.v(2, 2) for _ in range(2)]
        Qp = [k.v(2, 2) for _ in range(2)]
        for nt in range(2):
            for r in range(4):
                k(f"v_add_f32 {XP[nt][r][0]}, {XP[nt][r][0]}, {D[0][nt][r]}")
                k(f"v_add_f32 {XP[nt][r][1]}, {XP[nt][r][1]}, {D[1][nt][r]}")
                k.pk(X[nt][r], XP[nt][r][0], XP[nt][r][1])
                k(f"ds_write_b32 {vRIx}, {X[nt][r]} offset:{L_XL + nt * 256 + r * 512}")
                unpack2(XP[nt][r], X[nt][r])
            k(f"v_pk_add_f32 {Sp[nt]}, {XP[nt][0]}, {XP[nt][1]}")
            k(f"v_pk_mul_f32 {Qp[nt]}, {XP[nt][0]}, {XP[nt][0]}")
            k(f"v_pk_add_f32 {Sp[nt]}, {Sp[nt]}, {XP[nt][2]}")
            k(f"v_pk_fma_f32 {Qp[nt]}, {XP[nt][1]}, {XP[nt][1]}, {Qp[nt]}")
            k(f"v_pk_add_f32 {Sp[nt]}, {Sp[nt]}, {XP[nt][3]}")
            k(f"v_pk_fma_f32 {Qp[nt]}, {XP[nt][2]}, {XP[nt][2]}, {Qp[nt]}")
            k(f"v_pk_fma_f32 {Qp[nt]}, {XP[nt][3]}, {XP[nt][3]}, {Qp[nt]}")
        k(f"v_pk_add_f32 {Sp[0]}, {Sp[0]}, {Sp[1]}")
        k(f"v_pk_add_f32 {Qp[0]}, {Qp[0]}, {Qp[1]}")
        k.V.free(*D[0], *D[1])
        R = k.reduce4([Sp[0][0], Sp[0][1], Qp[0][0], Qp[0][1]])
        k(f"v_add_f32_dpp {R}, {R}, {R} quad_perm:[1,0,3,2] row_mask:0xf bank_mask:0xf")
        R2 = Qp[0][1]
        k(f"v_mov_b32 {R2}, {R}")
        k(f"v_permlane16_swap_b32 {R}, {R2}")
        mbf, rstd = k.ln_finish(R, R2, tv)
        k(f"v_mul_f32 {mbf}, {mbf}, {rstd}")
        sm, sr = k.s(2), k.s(2)
        for e_ in range(2):
            k(f"v_readlane_b32 {sm[e_]}, {mbf}, {32 * e_}")
            k(f"v_readlane_b32 {sr[e_]}, {rstd}, {32 * e_}")
        mr = Sp[1]
        k(f"v_mov_b32 {mr[0]}, {sm[0]}")
        k(f"v_mov_b32 {mr[1]}, {sm[1]}")
        for nt in range(2):
            for r in range(4):
                k(f"v_pk_fma_f32 {XP[nt][r]}, {XP[nt][r]}, {sr}, {mr} neg_lo:[0,0,1] neg_hi:[0,0,1]")
                k.pk(X[nt][r], XP[nt][r][0], XP[nt][r][1])
                k(f"ds_write_b32 {vRIx}, {X[nt][r]} offset:{L_XCH + nt * 256 + r * 512}")
        k.S.free(sm, sr)
        k.V.free(*Sp, *Qp, *XP[0], *XP[1], *X)
        store_block(L_XCH)
        k.stamp('RI')

        if it == 0:
            load_tw(TW1a)
        window('3p', it)
        offs(U_B, X1_B + IT_STRIDE if it == 0 else None, Y_B, True, (lambda: load_tw(TW1a)) if it else None)
        window('3', it)
        gather_check()
        k(f"ds_write_b128 {vCBi}, {GL[0]} offset:{L_IMG}")
        k(f"ds_write_b128 {vCBi}, {GL[1]} offset:{L_IMG + 2048}")
        k("s_barrier")
        k.stamp('CBld')
        if it == 0:
            fill(low=True)
            if OPT['rfdirect']:
                sf2 = [k.s(), k.s()]
                k(f"s_add_u32 {sf2[0]}, {sblk}, {Z_B + IT_STRIDE}")
                k(f"s_add_u32 {sf2[1]}, {sblk}, {Z_B + IT_STRIDE + 4096}")
                k(f"buffer_store_dwordx4 {SENT}, {vUl}, {sws}, {sf2[0]} offen sc1", low=True)
                k(f"buffer_store_dwordx4 {SENT}, {vUl}, {sws}, {sf2[1]} offen sc1", low=True)
                k.S.free(*sf2)
        U = [[[k.v(4, 2) for _ in range(2)] for _ in range(2)] for _ in range(2)]
        for c in range(2):
            for mt in range(2):
                for q in range(2):
                    k(f"ds_read_b128 {U[c][mt][q]}, {vCBo} offset:{L_IMG + c * 4096 + q * 2048 + mt * 256}")
        EU = [[k.v(2, 2) for _ in range(2)] for _ in range(2)]
        for c in range(2):
            for nt in range(2):
                k(f"ds_read_b64 {EU[c][nt]}, {vCBe} offset:{L_IMG + c * 4096 + nt * 256}")
        Cs = [Chan(OPT['pk_cb']), Chan(OPT['pk_cb'])]
        for c in range(2):
            C = Cs[c]
            for mt in range(2):
                for q in range(2):
                    k.mfma(C.D[0][mt], U[c][mt][q], FC[q], C.D[0][mt] if q else None)
                    k.mfma(C.D[1][mt], U[c][mt][q], FS[q], C.D[1][mt] if q else None)
            fwd_half(C)
            for m2 in range(2):
                cmul4(C.T[0][m2], C.T[1][m2], C.E[0][m2], C.E[1][m2], KF[c][m2][0:4], KF[c][m2][4:8], True, C.pk)
            XO = [U[c][0][0], U[c][0][1]]
            inv_half(C, XO)
            for nt in range(2):
                k(f"ds_write_b128 {vXw}, {XO[nt]} offset:{L_XCH + c * 8192 + nt * 1024}")
            for nt in range(2):
                for h in range(2):
                    unpack2(U[c][1][nt][2 * h:2 * h + 2], EU[c][nt][h])
        k("s_waitcnt vmcnt(0)")
        k("s_barrier")
        Yc = [[[Cs[c].T[0][0], Cs[c].T[0][1], Cs[c].T[1][0], Cs[c].T[1][1]],
               [Cs[c].D[1][0], Cs[c].D[1][1], Cs[c].B[0], Cs[c].B[1]]] for c in range(2)]
        for c in range(2):
            for nt in range(2):
                for kq in range(4):
                    k(f"ds_read_b128 {Yc[c][nt][kq]}, {vl16} offset:{L_XCH + c * 8192 + kq * 2048 + nt * 1024}")
        UP = [[[U[c][1][0][0:2], U[c][1][0][2:4]], [U[c][1][1][0:2], U[c][1][1][2:4]]] for c in range(2)]
        for c in range(2):
            D = Cs[c].D[0]
            for nt in range(2):
                for kq in range(4):
                    k.mfma(D[nt], I2[kq], Yc[c][nt][kq], D[nt] if kq else None)
        for c in range(2):
            D = Cs[c].D[0]
            for nt in range(2):
                for h in range(2):
                    for e_ in range(2):
                        k(f"v_fmac_f32 {D[nt][2 * h + e_]}, {ds2[c][0]}, {UP[c][nt][h][e_]}")
                    k.pk(O[nt][2 * c + h], D[nt][2 * h], D[nt][2 * h + 1])
        for nt in range(2):
            k(f"v_permlane16_swap_b32 {O[nt][0]}, {O[nt][2]}")
            k(f"v_permlane16_swap_b32 {O[nt][1]}, {O[nt][3]}")
            k(f"buffer_store_dwordx4 {O[nt]}, {vzo}, {sws}, {ssa} offen offset:{nt * 512} sc1")
        for c in range(2):
            Cs[c].free()
            k.V.free(*U[c][0], *U[c][1], *EU[c])
        k.stamp('CB')

        XV = [k.v(4, 2) for _ in range(2)]
        xps = [[k.v(2, 2) for _ in range(4)] for _ in range(2)]
        yps = [[k.v(2, 2) for _ in range(4)] for _ in range(2)]

        def res_prep():
            if it == 0:
                load_tw(RFtw)
            k(f"ds_read_b128 {XV[0]}, {vUl} offset:{L_XL}")
            k(f"ds_read_b128 {XV[1]}, {vUl} offset:{L_XL + 4096}")
            for i in range(2):
                for j in range(4):
                    unpack2(xps[i][j], XV[i][j])
        offs(Y_B, Z_B + IT_STRIDE if it == 0 else None, X1_B + IT_STRIDE if it == 0 else None, False, res_prep)
        gather_check()
        for i in range(2):
            for j in range(4):
                unpack2(yps[i][j], GL[i][j])
                k(f"v_pk_add_f32 {yps[i][j]}, {yps[i][j]}, {xps[i][j]}")
                k.pk(XV[i][j], yps[i][j][0], yps[i][j][1])
            k(f"ds_write_b128 {vUl}, {XV[i]} offset:{L_XL + i * 4096}")
        k.V.free(*yps[0], *yps[1], *xps[0], *xps[1], *XV)
        k("s_barrier")
        k.stamp('resid')
        if it == 0 and not OPT['rfdirect']:
            fill(low=True)


    layer(0)
    layer(1)

    vt = k.v()
    k(f"v_lshrrev_b32 {tv}, 2, {n}")
    k(f"v_lshlrev_b32 {vt}, 4, {tv}")
    k(f"v_and_b32 {tv}, 1, {n}")
    k(f"v_lshl_add_u32 {vt}, {tv}, 3, {vt}")
    k(f"v_bfe_u32 {tv}, {n}, 1, 1")
    k(f"v_lshl_add_u32 {vt}, {tv}, 7, {vt}")
    k(f"v_lshl_add_u32 {vt}, {g}, 8, {vt}")
    k(f"s_lshl_b32 {t0}, {wv}, 11")
    k(f"v_add_u32 {vt}, {t0}, {vt}")
    OT = [k.v(4, 2) for _ in range(2)]
    for j in range(2):
        for h in range(2):
            k(f"ds_read_b64_tr_b16 {OT[j][2 * h:2 * h + 2]}, {vt} offset:{L_XL + j * 1024 + h * 64}")
    so = scratch_srd('out', 2048 * 512 * 2)
    vo = k.v()
    k(f"v_and_b32 {vo}, 7, {n}")
    k(f"v_lshlrev_b32 {vo}, 15, {vo}")
    k(f"v_lshrrev_b32 {tv}, 3, {n}")
    k(f"v_lshl_add_u32 {vo}, {tv}, 4, {vo}")
    k(f"v_lshl_add_u32 {vo}, {g}, 5, {vo}")
    k(f"s_lshl_b32 {t0}, {a8}, 8")
    k(f"s_add_u32 {t0}, {t0}, {bs}")
    k(f"s_lshl_b32 {t0}, {t0}, 10")
    k(f"s_lshl_b32 {t1}, {wv}, 8")
    k(f"s_add_u32 {t0}, {t0}, {t1}")
    for j in range(2):
        k(f"buffer_store_dwordx4 {OT[j]}, {vo}, {so}, {t0} offen offset:{j * 128}{OPT.get('outflag', ' sc1')}")
    if OPT['stamps']:
        k.stamp('final')
        k.stamp('drain', "s_waitcnt vmcnt(0)")
        k(f"v_lshlrev_b32 {vt}, 2, {lane}")
        k(f"s_lshl_b32 {t0}, s2, 8")
        k(f"s_add_u32 {t0}, {t0}, {TS_OFF}")
        k(f"s_mov_b32 {sws[2]}, {hex(TS_OFF + 0x100000)}")
        k(f"s_cmp_lg_u32 {wv}, 0")
        k("s_cbranch_scc1 L_end")
        k(f"buffer_store_dword {k.v_ts}, {vt}, {sws}, {t0} offen")
        if OPT.get('todebug'):
            sd = scratch_srd('debug', 64)
            k("s_cmp_lg_u32 s2, 0")
            k("s_cbranch_scc1 L_end")
            k(f"v_add_u32 {vt}, 4, {vt}")
            k(f"buffer_store_dword {k.v_ts}, {vt}, {sd}, 0 offen")
    k("L_end:")
    k("s_endpgm")
    k("L_code_end:", manual=True)
    body = k.a.finish(sched=OPT['sched'])
    body += ".p2align 8\n.type L_tables,@object\nL_tables:\n" + ttext + f".size L_tables, {toff['total']}\nL_tables_end:\n"
    print(f"vgpr={k.V.hi} agpr={k.A.hi} sgpr={k.S.hi} lds={LDS_BYTES} instrs={k.a.count()}")
    return k, body


def write(path):
    k, body = build()
    hdr = list(HDR)
    hdr.append(f"; @launch grid=(256,1,1) block=(256,1,1) lds={LDS_BYTES}")
    hdr.append('.amdgcn_target "amdgcn-amd-amdhsa--gfx950"')
    hdr.append('.text')
    txt = '\n'.join(hdr) + '\n' + kernel_text(KN, body)
    txt += '.section .rodata,"a"\n' + descriptor(KN, 256 + max(k.A.hi, 8), max(k.S.hi, 16), accum=256)
    open(path, 'w').write(txt)
    return k


def stamp_sequence(names):
    return names
    i0 = names.index('RF')
    i1 = names.index('resid') + 1
    body = names[i0:i1]
    second = [x for x in body if x not in ('w1b', 'arr', 'w1a', 'wait') and not x.startswith('i_')]
    return names[:i1] + second + names[i1:]


if __name__ == '__main__':
    for a_ in sys.argv[2:]:
        kk_, vv_ = a_.split('=')
        OPT[kk_] = eval(vv_)
    if len(sys.argv) > 1 and sys.argv[1] not in ('stamps', 'plain'):
        kk = write(sys.argv[1])
        if OPT['stamps']:
            print(stamp_sequence(kk.stamp_names))
    elif len(sys.argv) > 1 and sys.argv[1] == 'stamps':
        OPT['stamps'] = True
        OPT['fine'] = OPT.get('fine', True)
        kk = write('p6_ts.s')
        open('p6_ts.names', 'w').write(','.join(stamp_sequence(kk.stamp_names)))
    else:
        write('p6.s')
```

```python
import re

REG_RE = re.compile(r'^(-|abs\()?([vsa])(\d+)\)?$')
RNG_RE = re.compile(r'^(-|abs\()?([vsa])\[(\d+):(\d+)\]\)?$')

TRANS = ('v_exp_f32', 'v_log_f32', 'v_rcp_f32', 'v_rsq_f32', 'v_sqrt_f32', 'v_sin_f32', 'v_cos_f32',
         'v_rcp_iflag_f32')
RMW_DST = ('v_fmac_f32', 'v_dot2c_f32_bf16', 'v_pk_fmac_f16', 'v_writelane_b32', 'v_fmac_f32_e32',
           'v_dot2c_f32_bf16_e32')
NO_DST_S = ('s_cmp', 's_waitcnt', 's_barrier', 's_nop', 's_branch', 's_cbranch', 's_setprio', 's_endpgm',
            's_sleep', 's_setreg', 's_bitcmp', 's_sethalt', 's_setpc')


def regs_of(tok):
    tok = tok.strip()
    m = REG_RE.match(tok)
    if m:
        return {(m.group(2), int(m.group(3)))}
    m = RNG_RE.match(tok)
    if m:
        return {(m.group(2), i) for i in range(int(m.group(3)), int(m.group(4)) + 1)}
    if tok == 'vcc':
        return {('s', 106), ('s', 107)}
    if tok == 'vcc_lo':
        return {('s', 106)}
    if tok == 'vcc_hi':
        return {('s', 107)}
    if tok == 'exec':
        return {('s', 126), ('s', 127)}
    if tok == 'exec_lo':
        return {('s', 126)}
    if tok == 'exec_hi':
        return {('s', 127)}
    if tok == 'm0':
        return {('s', 124)}
    return set()


def split_ops(s):
    out, depth, cur = [], 0, ''
    for ch in s:
        if ch in '[(':
            depth += 1
        if ch in '])':
            depth -= 1
        if ch == ',' and depth == 0:
            out.append(cur.strip())
            cur = ''
        else:
            cur += ch
    if cur.strip():
        out.append(cur.strip())
    return out


class Ins:
    __slots__ = ('text', 'mn', 'ops', 'mods', 'kind', 'R', 'W', 'srcA', 'srcB', 'srcC', 'passes', 'dpp',
                 'trans', 'wide_store', 'lds_dma', 'manual', 'nosched')

    def __init__(self, text, manual=False):
        self.text = text
        self.manual = manual
        self.nosched = False
        t = text.split(';')[0].strip()
        self.R, self.W = set(), set()
        self.srcA = self.srcB = self.srcC = set()
        self.passes = 0
        self.dpp = self.trans = self.wide_store = self.lds_dma = False
        if t.endswith(':'):
            self.kind, self.mn, self.ops, self.mods = 'label', t, [], ''
            return
        if t.startswith('.') or not t:
            self.kind, self.mn, self.ops, self.mods = 'dir', t, [], ''
            return
        parts = t.split(None, 1)
        mn = parts[0]
        self.mn = mn
        rest = parts[1] if len(parts) > 1 else ''
        ops = split_ops(rest)
        mods = ''
        if ops:
            last = ops[-1].split(None, 1)
            if len(last) > 1 and not last[0].startswith('vmcnt') and not last[0].startswith('lgkmcnt'):
                ops[-1], mods = last[0], last[1]
        self.ops, self.mods = ops, mods
        base = re.sub(r'_(e32|e64|dpp|sdwa)$', '', mn)
        rg = [regs_of(o) for o in ops]

        def U(idx):
            s = set()
            for i in idx:
                if i < len(rg):
                    s |= rg[i]
            return s
        n = len(ops)
        if base.startswith('v_mfma'):
            self.kind = 'mfma'
            self.W = rg[0]
            self.srcA, self.srcB, self.srcC = rg[1], rg[2], rg[3]
            self.R = rg[1] | rg[2] | rg[3]
            if '16x16x32' in base or '16x16x16' in base:
                self.passes = 4
            elif '32x32x16' in base or '32x32x8' in base:
                self.passes = 8
            else:
                raise ValueError('unmodelled mfma ' + base)
        elif base.startswith('v_'):
            self.kind = 'valu'
            self.trans = base in TRANS
            self.dpp = mn.endswith('_dpp') or any(k in mods for k in ('row_', 'quad_perm', 'wave_'))
            if base.startswith('v_permlane') and 'swap' in base:
                self.W = U([0, 1])
                self.R = U([0, 1])
            elif base.startswith('v_cmp'):
                self.W = rg[0]
                self.R = U(range(1, n))
            elif base in ('v_add_co_u32', 'v_sub_co_u32', 'v_addc_co_u32', 'v_subb_co_u32', 'v_subrev_co_u32'):
                self.W = U([0, 1])
                self.R = U(range(2, n))
            elif base == 'v_cndmask_b32':
                self.W = rg[0]
                self.R = U(range(1, n))
                if n == 3:
                    self.R |= regs_of('vcc')
            else:
                self.W = rg[0]
                self.R = U(range(1, n))
                if base in RMW_DST or self.dpp:
                    self.R |= rg[0]
            if base == 'v_nop':
                self.W, self.R = set(), set()
        elif base.startswith('ds_'):
            self.kind = 'ds'
            if base.startswith('ds_read') or base.startswith('ds_bpermute') or base.startswith('ds_swizzle') \
                    or base.startswith('ds_permute'):
                self.W = rg[0]
                self.R = U(range(1, n))
                if 'd16' in base:
                    self.R |= rg[0]
            else:
                self.R = U(range(n))
        elif base.startswith('buffer_') or base.startswith('global_'):
            self.kind = 'vmem'
            words = mods.split()
            if base in ('buffer_wbl2', 'buffer_inv'):
                pass
            elif 'lds' in words or '_lds_' in base:
                self.lds_dma = True
                self.R = U(range(n)) | regs_of('m0')
            elif '_load' in base:
                self.W = rg[0]
                self.R = U(range(1, n))
                if 'd16' in base:
                    self.R |= rg[0]
            elif '_atomic' in base:
                self.R = U(range(n))
                if 'sc0' in words:
                    self.W = rg[0]
            else:
                self.R = U(range(n))
                self.wide_store = 'x4' in base or 'x3' in base
                if self.wide_store:
                    self.srcA = rg[0] if base.startswith('buffer_') else rg[1]
        elif base.startswith('s_load') or base.startswith('s_buffer_load') or base in ('s_memtime', 's_memrealtime'):
            self.kind = 'smem'
            self.W = rg[0]
            self.R = U(range(1, n))
        elif base.startswith('s_'):
            self.kind = 'salu'
            if any(base.startswith(p) for p in NO_DST_S):
                self.R = U(range(n))
                if base in ('s_cbranch_vccz', 's_cbranch_vccnz'):
                    self.R |= regs_of('vcc')
                if base in ('s_cbranch_execz', 's_cbranch_execnz'):
                    self.R |= regs_of('exec')
            else:
                self.W = rg[0]
                self.R = U(range(1, n))
                if 'saveexec' in base:
                    self.W |= regs_of('exec')
                    self.R |= regs_of('exec')
                if base in ('s_addk_i32', 's_mulk_i32'):
                    self.R |= rg[0]
        else:
            raise ValueError('unmodelled instruction: ' + text)

    @property
    def is_branch(self):
        return self.kind == 'salu' and (self.mn.startswith('s_branch') or self.mn.startswith('s_cbranch')
                                        or self.mn.startswith('s_endpgm') or self.mn.startswith('s_setpc'))


def is_vgpr(r):
    return r[0] in ('v', 'a')


def wait_text(vm, lg):
    parts = []
    if vm is not None:
        parts.append('vmcnt(%d)' % min(vm, 63))
    if lg is not None:
        parts.append('lgkmcnt(%d)' % min(lg, 15))
    return 's_waitcnt ' + ' '.join(parts)


class Asm:
    def __init__(self):
        self.ins = []

    def __call__(self, text, manual=False):
        for line in text.split('\n'):
            line = line.strip()
            if not line or line.startswith(';'):
                continue
            self.ins.append(Ins(line, manual))

    def label(self, name):
        self.ins.append(Ins(name + ':'))

    def insert_waits(self):
        out = []
        vm = []
        lg = []
        saved = {}
        for i in self.ins:
            if i.kind == 'dir' and i.text.startswith('.forget_vm'):
                vm = [set() for _ in vm]
                continue
            if i.kind == 'dir':
                out.append(i)
                continue
            if i.manual and i.is_branch and i.ops:
                saved.setdefault(i.ops[0], []).append(([set(d) for d in vm], [(kd, set(d)) for kd, d in lg]))
            if i.manual and i.kind == 'label':
                states = saved.pop(i.mn[:-1], []) + [(vm, lg)]
                dv, dl, anyv, anyl, sm = set(), set(), False, False, False
                for v_, l_ in states:
                    for d in v_:
                        dv |= d
                        anyv = True
                    for kd, d in l_:
                        dl |= d
                        anyl = True
                        sm = sm or kd == 'smem'
                vm = [dv] if anyv else []
                lg = [('smem' if sm else 'ds', dl)] if anyl else []
                out.append(i)
                continue
            touched = i.R | i.W
            need_vm = need_lg = None
            boundary = i.kind == 'label' or i.is_branch
            if boundary and not i.manual:
                idx = [k for k, d in enumerate(vm) if d]
                if idx:
                    need_vm = len(vm) - 1 - max(idx)
                if any(d for _, d in lg):
                    need_lg = 0
            else:
                for k, d in enumerate(vm):
                    if d & touched:
                        c = len(vm) - 1 - k
                        need_vm = c if need_vm is None else min(need_vm, c)
                smem_out = any(kd == 'smem' for kd, _ in lg)
                for k, (kd, d) in enumerate(lg):
                    if d & touched:
                        c = 0 if smem_out else len(lg) - 1 - k
                        need_lg = c if need_lg is None else min(need_lg, c)
                if i.mn == 's_barrier' and lg:
                    need_lg = 0
            if i.mn == 's_waitcnt':
                m = re.search(r'vmcnt\((\d+)\)', i.text)
                if m:
                    c = int(m.group(1))
                    vm = vm[len(vm) - c:] if c < len(vm) else vm
                    if c == 0:
                        vm = []
                m = re.search(r'lgkmcnt\((\d+)\)', i.text)
                if m:
                    c = int(m.group(1))
                    if c == 0:
                        lg = []
                    elif not any(kd == 'smem' for kd, _ in lg):
                        lg = lg[len(lg) - c:] if c < len(lg) else lg
                out.append(i)
                continue
            if need_vm is not None or need_lg is not None:
                if need_vm is not None:
                    need_vm = min(need_vm, 63)
                if need_lg is not None:
                    need_lg = min(need_lg, 15)
                out.append(Ins(wait_text(need_vm, need_lg)))
                if need_vm is not None:
                    vm = vm[len(vm) - need_vm:] if need_vm > 0 else []
                if need_lg is not None:
                    lg = lg[len(lg) - need_lg:] if need_lg > 0 else []
            out.append(i)
            if i.kind == 'vmem':
                vm.append(set(i.W))
            elif i.kind == 'ds':
                lg.append(('ds', set(i.W)))
            elif i.kind == 'smem':
                lg.append(('smem', set(i.W)))
            if boundary and not i.manual:
                vm = [set() for _ in vm]
                lg = [('smem', set())] if lg else []
        self.ins = out

    @staticmethod
    def required(p, c):
        need = 0
        cw_v = {r for r in c.W if is_vgpr(r)}
        cr_v = {r for r in c.R if is_vgpr(r)}
        pw_v = {r for r in p.W if is_vgpr(r)}
        pw_s = {r for r in p.W if r[0] == 's'}
        cr_s = {r for r in c.R if r[0] == 's'}
        if p.kind == 'valu':
            if c.kind == 'mfma' and pw_v & c.R:
                need = max(need, 2)
            if c.kind == 'valu':
                if p.trans and pw_v & cr_v:
                    need = max(need, 1)
                if c.dpp and pw_v & cr_v:
                    need = max(need, 2)
                if c.mn.startswith('v_permlane') and pw_v & cr_v:
                    need = max(need, 2)
                if (c.mn.startswith('v_readlane') or c.mn.startswith('v_readfirstlane')) and pw_v & cr_v:
                    need = max(need, 1)
                if pw_s & cr_s:
                    need = max(need, 4 if (c.mn.startswith('v_readlane') or c.mn.startswith('v_writelane')) else 2)
                if ('op_sel' in p.mods and not p.mn.startswith('v_pk_')) or 'dst_sel' in p.mods:
                    if pw_v & (cr_v | cw_v):
                        need = max(need, 1)
            if c.kind == 'vmem' and pw_s & cr_s:
                need = max(need, 5)
            if c.kind in ('salu', 'smem') and pw_s & cr_s:
                need = max(need, 4)
            if p.trans and c.kind in ('vmem', 'ds') and pw_v & cr_v:
                need = max(need, 1)
        if p.kind == 'mfma':
            n = p.passes
            if c.kind == 'mfma':
                if p.W & (c.srcA | c.srcB):
                    need = max(need, {4: 8, 8: 12}[n])
                if p.W & c.srcC:
                    if not (p.W == c.srcC and p.passes == c.passes):
                        need = max(need, {4: 6, 8: 10}[n])
                elif p.W & c.W:
                    need = max(need, {4: 8, 8: 12}[n])
            elif c.kind in ('valu', 'vmem', 'ds'):
                if p.W & (cr_v | cw_v):
                    need = max(need, {4: 8, 8: 12}[n])
                if p.srcC & cw_v:
                    need = max(need, {4: 3, 8: 7}[n])
        if p.kind == 'vmem' and p.wide_store and c.kind in ('valu', 'mfma', 'ds', 'vmem'):
            if p.srcA & cw_v:
                need = max(need, 2)
        if p.kind == 'salu' and ('s', 124) in p.W and (c.lds_dma or 'addtid' in c.mn):
            need = max(need, 1)
        if p.kind == 'salu' and pw_s & regs_of('exec') and c.kind == 'valu' and c.dpp:
            need = max(need, 1)
        return need

    @staticmethod
    def residual(p):
        if p.kind == 'mfma':
            return {4: 8, 8: 12}[p.passes]
        if p.kind == 'valu':
            sw = {r for r in p.W if r[0] == 's'}
            if sw and sw <= regs_of('vcc'):
                return 2
            if sw:
                return 5
            return 2 if p.W else 0
        if p.kind == 'vmem' and p.wide_store:
            return 2
        if p.kind == 'salu' and ('s', 124) in p.W:
            return 1
        return 0

    def insert_nops(self):
        out = []
        hist = []
        for i in self.ins:
            if i.kind == 'dir':
                out.append(i)
                continue
            need = 0
            if i.kind == 'label' or (i.is_branch and not i.mn.startswith('s_endpgm')):
                extra = 1 if i.kind != 'label' else 0
                for p, d in hist:
                    need = max(need, self.residual(p) - d - extra)
            else:
                for p, d in hist:
                    need = max(need, self.required(p, i) - d)
            while need > 0:
                k = min(need, 16)
                out.append(Ins('s_nop %d' % (k - 1)))
                hist = [(p, d + k) for p, d in hist]
                need -= k
            out.append(i)
            if i.kind == 'label':
                hist = []
                continue
            step = 1
            if i.mn == 's_nop':
                step = int(i.ops[0]) + 1
            hist = [(p, d + step) for p, d in hist if d + step < 24]
            hist.append((i, 0))
        self.ins = out

    VOP3_MN = ('v_fma_f32', 'v_perm_b32', 'v_cvt_pk_bf16_f32', 'v_lshl_add_u32', 'v_lshl_or_b32', 'v_bfe_u32',
               'v_or3_b32', 'v_dot2_f32_bf16', 'v_readlane_b32', 'v_writelane_b32', 'v_mul_lo_u32', 'v_and_or_b32',
               'v_accvgpr_write_b32', 'v_accvgpr_read_b32', 'v_add3_u32', 'v_mad_u32_u24')

    @classmethod
    def issue_cost(cls, i):
        if i.kind == 'mfma':
            return 8
        if i.kind == 'valu':
            if i.trans or i.mn.startswith('v_permlane'):
                return 8
            if i.mn.startswith('v_pk_') or i.mn in cls.VOP3_MN or i.dpp or ' -v' in i.text or '0x' in i.text:
                return 5
            return 4
        if i.mn == 's_nop':
            return 4 * (int(i.ops[0]) + 1)
        if i.kind == 'ds':
            if i.mn.startswith('ds_write'):
                return 28 if 'b128' in i.mn else (20 if 'b64' in i.mn else 16)
            return 12 if 'b128' in i.mn else 8
        if i.kind == 'vmem':
            if '_load' in i.mn:
                return 12
            return 48 if 'x4' in i.mn else 16
        return 4

    @staticmethod
    def lds_cost(i):
        if i.mn.startswith('ds_write'):
            return 52 if 'b128' in i.mn else (24 if 'b64' in i.mn else 16)
        return 16 if 'b128' in i.mn else 8

    @classmethod
    def latency(cls, p, c, raw):
        base = cls.issue_cost(p)
        ws = cls.required(p, c)
        lat = base + 4 * ws
        if raw:
            if p.kind == 'mfma':
                if c.kind == 'mfma' and p.W == c.srcC:
                    lat = max(lat, 16)
                else:
                    lat = max(lat, 36)
            elif p.kind == 'ds':
                lat = max(lat, 128)
            elif p.kind == 'vmem':
                lat = max(lat, 1500)
            elif p.kind == 'smem':
                lat = max(lat, 300)
        return lat

    def schedule_block(self, blk):
        n = len(blk)
        if n < 3:
            return blk
        preds = [dict() for _ in range(n)]
        lastw, readers = {}, {}
        last_salu = last_vmem = last_ldsw = None
        lds_since = []
        for j, c in enumerate(blk):
            def dep(i_, raw):
                if i_ is None or i_ == j:
                    return
                l = self.latency(blk[i_], c, raw)
                preds[j][i_] = max(preds[j].get(i_, 0), l)
            for r in c.R:
                dep(lastw.get(r), True)
            for r in c.W:
                dep(lastw.get(r), False)
                for i_ in readers.get(r, []):
                    dep(i_, False)
            if c.kind in ('salu', 'smem'):
                dep(last_salu, False)
                last_salu = j
            if c.kind == 'vmem':
                dep(last_vmem, False)
                last_vmem = j
            if c.kind == 'ds':
                if c.W and not c.mn.startswith('ds_write'):
                    dep(last_ldsw, False)
                    lds_since.append(j)
                else:
                    dep(last_ldsw, False)
                    for i_ in lds_since:
                        dep(i_, False)
                    last_ldsw = j
                    lds_since = []
            for r in c.R:
                readers.setdefault(r, []).append(j)
            for r in c.W:
                lastw[r] = j
                readers[r] = []
        succs = [[] for _ in range(n)]
        for j in range(n):
            for i_, l in preds[j].items():
                succs[i_].append((j, l))
        prio = [0] * n
        for i_ in range(n - 1, -1, -1):
            prio[i_] = max([l + prio[j] for j, l in succs[i_]] + [self.issue_cost(blk[i_])])
            if blk[i_].kind == 'vmem':
                prio[i_] += 100000
        left = [len(preds[j]) for j in range(n)]
        earliest = [0] * n
        ready = [j for j in range(n) if left[j] == 0]
        t = 0
        mfma_free = 0
        lds_free = 0
        vm_free = 0
        mfma_done = -100
        order = []
        while ready:
            best, bkey = None, None
            for j in ready:
                c = blk[j]
                st = max(t, earliest[j])
                if c.kind == 'mfma':
                    st = max(st, mfma_free)
                elif c.mn.startswith('v_pk_') or c.mn.startswith('v_dot2'):
                    st = max(st, mfma_done + 10)
                elif c.kind == 'ds':
                    st = max(st, lds_free - 64)
                elif c.kind == 'vmem':
                    st = max(st, vm_free)
                pr = prio[j]
                key = (st if st > t else t, -pr, j)
                if bkey is None or key < bkey:
                    best, bkey = j, key
            j = best
            c = blk[j]
            st = bkey[0]
            order.append(c)
            ready.remove(j)
            t = st + self.issue_cost(c)
            if c.kind == 'mfma':
                mfma_free = st + 16
                mfma_done = st + 16
            elif c.mn.startswith('v_pk_') or c.mn.startswith('v_dot2'):
                mfma_free = max(mfma_free, t)
            elif c.kind == 'ds':
                lds_free = max(lds_free, st) + self.lds_cost(c)
            elif c.kind == 'vmem':
                vm_free = st + (64 if 'x4' in c.mn else 24)
            for j2, l in succs[j]:
                earliest[j2] = max(earliest[j2], st + l)
                left[j2] -= 1
                if left[j2] == 0:
                    ready.append(j2)
        assert len(order) == n
        self.sched_cycles += t
        return order

    def schedule(self):
        out, blk = [], []
        self.sched_cycles = 0
        for i in self.ins:
            fence = (i.kind in ('label', 'dir') or i.is_branch or i.nosched or
                     i.mn in ('s_barrier', 's_waitcnt', 's_nop', 's_endpgm', 's_getpc_b64', 's_memrealtime', 's_sleep')
                     or 'saveexec' in i.mn or ('s', 126) in i.W or ('s', 124) in i.W)
            if fence:
                out += self.schedule_block(blk)
                blk = []
                out.append(i)
            else:
                blk.append(i)
        out += self.schedule_block(blk)
        self.ins = out

    def finish(self, sched=False):
        if sched:
            self.schedule()
        self.insert_waits()
        self.insert_nops()
        lines = []
        for i in self.ins:
            lines.append(i.text if i.kind in ('label', 'dir') else '    ' + i.text)
        return '\n'.join(lines) + '\n'

    def count(self):
        return sum(1 for i in self.ins if i.kind not in ('label', 'dir'))


class Regs:
    def __init__(self, prefix, first, limit):
        self.p, self.limit = prefix, limit
        self.used = set(range(first))
        self.hi = first

    def alloc(self, n=1, align=None):
        if align is None:
            align = 1 if n == 1 else (2 if self.p == 'v' else (2 if n == 2 else 4))
        b = 0
        while True:
            b = (b + align - 1) // align * align
            if all((b + k) not in self.used for k in range(n)):
                break
            b += 1
        if b + n > self.limit:
            raise RuntimeError('out of %s registers' % self.p)
        self.used |= set(range(b, b + n))
        self.hi = max(self.hi, b + n)
        return Reg(self.p, b, n)

    def free(self, *rs):
        for r in rs:
            self.used -= set(range(r.b, r.b + r.n))


class Reg:
    def __init__(self, p, b, n):
        self.p, self.b, self.n = p, b, n

    def __str__(self):
        return '%s%d' % (self.p, self.b) if self.n == 1 else '%s[%d:%d]' % (self.p, self.b, self.b + self.n - 1)

    def __getitem__(self, k):
        if isinstance(k, slice):
            st = k.start or 0
            en = self.n if k.stop is None else k.stop
            assert 0 <= st < en <= self.n, (st, en, self.n)
            return Reg(self.p, self.b + st, en - st)
        assert 0 <= k < self.n, (k, self.n)
        return Reg(self.p, self.b + k, 1)

    def __format__(self, spec):
        return str(self)
```

```python
import struct
import sys
from common import *
import gen
import tables
from gen import fhex, ROWLANE, pack4, op_CS, op_SC, op_CnS, op_nSC

X1_B, Z_B, U_B, Y_B = 0x0000000, 0x0400000, 0x0800000, 0x0C00000
IT_STRIDE = 0x200000
WT_B, WT_BLK = 0x1000000, 8256
FL_B = 0x1400000
WS_USED = 0x1500000
TS_OFF = 0x2000000
OOB = 0x7FFFFFF0
SPIN_MAX = 1 << 15

L_XL = 0
L_IMG = 8192
L_XCH = 16384
L_WIM = 32768
L_WST = L_WIM
L_QX = L_WIM - 64
L_K = 49152
KG_ROW = 528
KG_CH = 96 * KG_ROW
L_KX = L_K + 2 * KG_CH
L_KOP = L_K
LDS_BYTES = L_KX + 4096

OPT = dict(rfdirect=False, pk_rf=True, pk_ca=True, pk_ri=True, pk_cb=True, stamps=False, prefetch=True, sched=True, ackfirst=True, between=True, latefill=True, depth=1, sleep=0, presleep=0,
           windows={'rf0': ['TF', 'TG'], '1a': ['TTW', 'KP', 'KT0'], '1b': ['KT1'], 'ca0': ['T3'], '2p': ['TI', 'T4', 'KM'], '2': ['BAR', 'KE'], '3p': ['KX'], '3': []})


class PK(gen.K):
    def __init__(self, name):
        super().__init__(name, 256, vlimit=256)
        self.A = Regs('a', 0, 256)
        self.S = Regs('s', 4, 102)
        self.stamp_names = []

    def stamp(self, name='', wait=None):
        if not OPT['stamps']:
            return
        if OPT.get('only') and name not in OPT['only']:
            return
        if wait:
            self(wait)
        self.stamp_names.append(name)
        t = self.s_tmp2
        self(f"s_memrealtime {t}")
        self("s_waitcnt lgkmcnt(0)")
        self(f"v_writelane_b32 {self.v_ts}, {t[0]}, m0")
        self("s_add_u32 m0, m0, 1")


def build():
    k = PK(KN)
    ttext, toff = tables.emit()
    k("s_cmp_ge_u32 s2, 256")
    k("s_cbranch_scc1 L_end")
    ptr = {}
    big = k.s(16, 4)
    big2 = k.s(8, 4)
    tail = k.s(4, 4)
    k(f"s_load_dwordx16 {big}, s[0:1], 0")
    k(f"s_load_dwordx8 {big2}, s[0:1], 64")
    k(f"s_load_dwordx4 {tail}, s[0:1], 96")
    ptr['ws'] = k.s(2)
    k(f"s_load_dwordx2 {ptr['ws']}, s[0:1], 112")
    for i, nm in enumerate(['A_x', 'A_w_r', 'A_w_i', 'B_u', 'B_A_re', 'B_A_im', 'B_B_re', 'B_B_im']):
        ptr[nm] = big[2 * i:2 * i + 2]
    for i, nm in enumerate(['B_C_re', 'B_C_im', 'B_log_dt', 'B_Dskip']):
        ptr[nm] = big2[2 * i:2 * i + 2]
    ptr['out'], ptr['debug'] = tail[0:2], tail[2:4]
    lane, n, g = k.v(), k.v(), k.v()
    wv = k.s()
    tv = k.v()
    k(f"v_lshrrev_b32 {tv}, 6, v0")
    k(f"v_and_b32 {lane}, 63, v0")
    k(f"v_readfirstlane_b32 {wv}, {tv}")
    k(f"v_and_b32 {n}, 15, v0")
    k(f"v_lshrrev_b32 {g}, 4, {lane}")
    Lid, t0, t1, t2 = k.s(), k.s(), k.s(), k.s()
    k(f"s_and_b32 {Lid}, s2, 7")
    k(f"s_lshl_b32 {Lid}, {Lid}, 5")
    k(f"s_lshr_b32 {t0}, s2, 3")
    k(f"s_add_u32 {Lid}, {Lid}, {t0}")
    bs, a8 = k.s(), k.s()
    k(f"s_and_b32 {bs}, {Lid}, 31")
    k(f"s_lshr_b32 {a8}, {Lid}, 5")
    rg, kt, w16 = k.s(), k.s(), k.s()
    k(f"s_lshr_b32 {rg}, {wv}, 1")
    k(f"s_and_b32 {kt}, {wv}, 1")
    k(f"s_lshl_b32 {w16}, {wv}, 4")
    nonce = k.s()
    pc = k.s(2)
    k(f"s_getpc_b64 {pc}")
    k("L_pc_here:", manual=True)
    tb = k.s(2)
    k(f"s_add_u32 {tb[0]}, {pc[0]}, L_tables-L_pc_here")
    k(f"s_addc_u32 {tb[1]}, {pc[1]}, 0")
    vl16 = k.v()
    k(f"v_lshlrev_b32 {vl16}, 4, {lane}")
    if OPT['stamps']:
        k.s_tmp2, k.v_ts = k.s(2), k.v()
        k("s_mov_b32 m0, 0")
        k(f"v_mov_b32 {k.v_ts}, 0")
        k.stamp('entry')

    ACC = k.A.alloc(84 + 16 + 136, 4)
    cm, pk_, pw = ACC[0:84], ACC[84:100], ACC[100:236]
    RFA2, Gall, RIH, RIA2, RItw = cm[0:4], cm[4:44], cm[44:64], cm[64:68], cm[68:84]
    G = [[Gall[10 * (2 * t + q):10 * (2 * t + q) + 10] for q in range(2)] for t in range(2)]
    H = [RIH[0:10], RIH[10:20]]
    RFB1, RFtw = pk_[0:8], pk_[8:16]
    Fall, TW0a, FCSall, I2all, TW1a = pw[0:40], pw[40:72], pw[72:88], pw[88:104], pw[104:136]
    F = [Fall[10 * q:10 * q + 10] for q in range(4)]
    FC = [FCSall[8 * q:8 * q + 4] for q in range(2)]
    FS = [FCSall[8 * q + 4:8 * q + 8] for q in range(2)]
    I2 = [I2all[4 * q:4 * q + 4] for q in range(4)]
    WQa = k.A.alloc(16, 2)
    tbase = {'common': k.s(2), 'perkt': k.s(2), 'perw': k.s(2)}
    k(f"s_mov_b32 {tbase['common'][0]}, {tb[0]}")
    k(f"s_mov_b32 {tbase['common'][1]}, {tb[1]}")
    k(f"s_mul_i32 {t0}, {kt}, {toff['perkt_stride']}")
    k(f"s_add_u32 {t0}, {t0}, {toff['perkt']}")
    k(f"s_add_u32 {tbase['perkt'][0]}, {tb[0]}, {t0}")
    k(f"s_addc_u32 {tbase['perkt'][1]}, {tb[1]}, 0")
    k(f"s_mul_i32 {t0}, {wv}, {toff['perw_stride']}")
    k(f"s_add_u32 {t0}, {t0}, {toff['perw']}")
    k(f"s_add_u32 {tbase['perw'][0]}, {tb[0]}, {t0}")
    k(f"s_addc_u32 {tbase['perw'][1]}, {tb[1]}, 0")
    k.S.free(tb)

    HELD = []

    def release():
        k.V.free(*HELD)
        del HELD[:]

    def tload(sec, regs, first_reg):
        c0 = first_reg // 4
        vt_ = {}
        for i in range(regs.n // 4):
            byte = (c0 + i) * 1024
            hi, lo = byte // 4096 * 4096, byte % 4096
            if hi not in vt_:
                vt_[hi] = k.v()
                k(f"v_add_u32 {vt_[hi]}, {hi}, {vl16}")
            k(f"global_load_dwordx4 {regs[4 * i:4 * i + 4]}, {vt_[hi]}, {tbase[sec]} offset:{lo}")
        HELD.extend(vt_.values())

    tload('common', RFA2, 0)
    tload('perkt', pk_, 0)
    release()
    k("s_waitcnt lgkmcnt(0)")
    sws = k.srd(ptr['ws'], 0, WS_USED)
    scr = k.s(4)

    def scratch_srd(nm, size):
        k(f"s_mov_b32 {scr[0]}, {ptr[nm][0]}")
        k(f"s_mov_b32 {scr[1]}, {ptr[nm][1]}")
        k(f"s_mov_b32 {scr[2]}, {hex(size)}")
        k(f"s_mov_b32 {scr[3]}, 0x20000")
        return scr
    k.stamp('kernarg')

    XR = [k.v(4, 2) for _ in range(2)]
    va = k.v()
    sx = scratch_srd('A_x', 2048 * 512 * 2)
    k(f"s_lshl_b32 {t0}, {a8}, 8")
    k(f"s_add_u32 {t0}, {t0}, {bs}")
    k(f"s_lshl_b32 {t1}, {wv}, 5")
    k(f"s_add_u32 {t0}, {t0}, {t1}")
    k(f"s_lshl_b32 {t0}, {t0}, 10")
    k(f"s_add_u32 {t1}, {t0}, {4 * 32 * 1024}")
    k(f"buffer_load_dwordx4 {XR[0]}, {vl16}, {sx}, {t0} offen")
    k(f"buffer_load_dwordx4 {XR[1]}, {vl16}, {sx}, {t1} offen")
    sd = scratch_srd('debug', 256)
    k("s_cmp_lg_u32 s2, 0")
    k("s_cbranch_scc1 L_nonce_done", manual=True)
    k(f"s_cmp_lg_u32 {wv}, 0")
    k("s_cbranch_scc1 L_nonce_done", manual=True)
    tm = k.s(2)
    k(f"s_memrealtime {tm}")
    k("s_waitcnt lgkmcnt(0)")
    k(f"s_or_b32 {tm[0]}, {tm[0]}, 1")
    vz = k.v()
    k(f"v_mov_b32 {vz}, {tm[0]}")
    k(f"v_mov_b32 {va}, {hex(OOB)}")
    k(f"v_cmp_eq_u32 vcc, 0, {lane}")
    k(f"v_cndmask_b32 {va}, {va}, 0, vcc")
    k(f"buffer_store_dword {vz}, {va}, {sd}, 0 offen sc1")
    k("s_nop 1")
    k("L_nonce_done:", manual=True)
    k.S.free(tm)
    k.V.free(vz)
    Wraw = [[k.v() for _ in range(2)] for _ in range(8)]
    wb = k.s()
    k(f"s_lshr_b32 {t0}, {Lid}, 6")
    k(f"s_lshl_b32 {t0}, {t0}, 9")
    k(f"s_and_b32 {t1}, {Lid}, 63")
    k(f"s_add_u32 {wb}, {t0}, {t1}")
    k(f"s_mul_i32 {wb}, {wb}, 514")
    vin, vny, vnm = k.v(), k.v(), k.v()
    k(f"v_lshlrev_b32 {vin}, 1, v0")
    ksb = k.s()
    k(f"s_add_u32 {ksb}, {t0}, {t1}")
    k(f"v_lshlrev_b32 {vny}, 6, v0")
    k(f"v_add_u32 {vny}, {ksb}, {vny}")
    k(f"v_sub_u32 {vnm}, 2048, {vny}")
    k(f"v_and_b32 {vnm}, 2047, {vnm}")
    k(f"v_mul_u32_u24 {vny}, 514, {vny}")
    k(f"v_mul_u32_u24 {vnm}, 514, {vnm}")
    k(f"v_mov_b32 {tv}, {hex(OOB)}")
    k(f"v_cmp_gt_u32 vcc, 8, v0")
    k(f"v_cndmask_b32 {vny}, {tv}, {vny}, vcc")
    k(f"v_cndmask_b32 {vnm}, {tv}, {vnm}, vcc")
    k.S.free(ksb)
    wo = [k.s() for _ in range(8)]
    for rho in range(8):
        k(f"s_add_u32 {wo[rho]}, {wb}, {rho * 64 * 514}")
    WE = {}
    for c, nm in ((0, 'A_w_r'), (1, 'A_w_i')):
        sr = scratch_srd(nm, 2048 * 257 * 2)
        for rho in range(8):
            k(f"buffer_load_ushort {Wraw[rho][c]}, {vin}, {sr}, {wo[rho]} offen")
        for nm2, vv, off in (('a', vny, 0), ('b', vny, 512), ('ar', vnm, 0), ('br', vnm, 512)):
            WE[nm2, c] = k.v()
            k(f"buffer_load_ushort {WE[nm2, c]}, {vv}, {sr}, 0 offen offset:{off}")
    k.V.free(vin, vny, vnm)
    k.S.free(wb, *wo)
    par = {}
    k(f"s_lshl_b32 {t0}, {Lid}, 9")
    k(f"s_lshl_b32 {t1}, {rg}, 8")
    k(f"s_add_u32 {t0}, {t0}, {t1}")
    k(f"v_lshlrev_b32 {va}, 2, {lane}")
    for nm in ('B_A_re', 'B_A_im', 'B_B_re', 'B_B_im', 'B_C_re', 'B_C_im'):
        sr = scratch_srd(nm, 512 * 128 * 2)
        par[nm] = k.v()
        k(f"buffer_load_dword {par[nm]}, {va}, {sr}, {t0} offen")
    sr = scratch_srd('B_log_dt', 1024)
    ld = k.v()
    k(f"s_lshl_b32 {t1}, {Lid}, 2")
    k(f"s_lshl_b32 {t0}, {rg}, 1")
    k(f"s_add_u32 {t0}, {t0}, {t1}")
    k(f"v_mov_b32 {va}, 0")
    k(f"buffer_load_ushort {ld}, {va}, {sr}, {t0} offen")
    dsk = k.s()
    k(f"s_load_dword {dsk}, {ptr['B_Dskip']}, {t1}")
    PF = [k.v(4, 2), k.v(4, 2)]
    k(f"s_lshr_b32 {t0}, s2, 3")
    k(f"s_lshl_b32 {t0}, {t0}, 2")
    k(f"s_add_u32 {t0}, {t0}, {wv}")
    k(f"s_lshl_b32 {t0}, {t0}, 11")
    k(f"s_min_u32 {t0}, {t0}, L_tables_end-L_pc_here-2048")
    k(f"v_add_u32 {va}, {t0}, {vl16}")
    k(f"global_load_dwordx4 {PF[0]}, {va}, {pc}")
    k(f"global_load_dwordx4 {PF[1]}, {va}, {pc} offset:1024")
    k.S.free(pc)
    k.V.free(va)
    k.stamp('ldissue')

    TWV = k.v(32, 2)
    TW = [[TWV[8 * i + 4 * j:8 * i + 4 * j + 4] for j in range(2)] for i in range(4)]
    WP = [k.v(8, 2) for _ in range(2)]
    KF = [[k.v(8, 2) for _ in range(2)] for _ in range(2)]
    GL = PF
    O = [k.v(4, 2) for _ in range(2)]
    SENT = k.v(4, 2)
    for i in range(4):
        k(f"v_mov_b32 {SENT[i]}, -1")
    dcm, sgn = k.v(), k.v()
    k(f"s_lshl_b32 {t1}, {kt}, 4")
    k(f"v_add_u32 {dcm}, {t1}, {n}")
    k(f"v_lshl_add_u32 {dcm}, {dcm}, 2, {g}")
    k(f"v_cmp_eq_u32 vcc, 0, {dcm}")
    k(f"v_cndmask_b32 {dcm}, 0, 1.0, vcc")
    k(f"v_lshlrev_b32 {sgn}, 31, {n}")
    vUl, vG, vzo = k.v(), k.v(), k.v()
    k(f"v_lshlrev_b32 {vUl}, 4, v0")
    k(f"v_lshrrev_b32 {vG}, 1, v0")
    k(f"v_lshlrev_b32 {vG}, 13, {vG}")
    k(f"v_and_b32 {tv}, 1, v0")
    k(f"v_lshl_add_u32 {vG}, {tv}, 4, {vG}")
    g1, g2 = k.v(), k.v()
    k(f"v_and_b32 {g1}, 1, {g}")
    k(f"v_lshrrev_b32 {g2}, 1, {g}")
    k(f"v_lshlrev_b32 {vzo}, 10, {g2}")
    k(f"v_lshl_add_u32 {vzo}, {n}, 5, {vzo}")
    k(f"v_lshl_add_u32 {vzo}, {g1}, 4, {vzo}")
    vRFr, vRFs, vCAo, vXw, vRIz, vRIx, vCBi, vCBo, vCBe = [k.v() for _ in range(9)]
    k(f"v_lshlrev_b32 {vRFr}, 10, {g}")
    k(f"v_lshl_add_u32 {vRFr}, {n}, 4, {vRFr}")
    k(f"s_lshl_b32 {t0}, {rg}, 3")
    k(f"v_add_u32 {vRFr}, {t0}, {vRFr}")
    k(f"v_lshl_add_u32 {vRFs}, {g}, 6, {n}")
    k(f"s_lshl_b32 {t0}, {kt}, 4")
    k(f"v_add_u32 {vRFs}, {t0}, {vRFs}")
    k(f"v_lshlrev_b32 {vRFs}, 5, {vRFs}")
    k(f"s_lshl_b32 {t0}, {rg}, 4")
    k(f"v_add_u32 {vRFs}, {t0}, {vRFs}")
    k(f"v_lshl_add_u32 {vCAo}, {g2}, 5, {n}")
    k(f"v_lshlrev_b32 {vCAo}, 5, {vCAo}")
    k(f"v_lshl_add_u32 {vCAo}, {g1}, 4, {vCAo}")
    k(f"s_lshl_b32 {t0}, {wv}, 11")
    k(f"v_add_u32 {vXw}, {t0}, {vl16}")
    k(f"v_lshlrev_b32 {vRIz}, 11, {g}")
    k(f"v_lshl_add_u32 {vRIz}, {n}, 5, {vRIz}")
    k(f"s_lshl_b32 {t0}, {wv}, 3")
    k(f"v_add_u32 {vRIz}, {t0}, {vRIz}")
    k(f"v_lshlrev_b32 {vRIx}, 11, {g}")
    k(f"v_lshl_add_u32 {vRIx}, {n}, 4, {vRIx}")
    k(f"s_lshl_b32 {t0}, {wv}, 2")
    k(f"v_add_u32 {vRIx}, {t0}, {vRIx}")
    k(f"v_lshrrev_b32 {vCBi}, 1, v0")
    k(f"v_lshlrev_b32 {vCBi}, 4, {vCBi}")
    k(f"v_and_b32 {tv}, 1, v0")
    k(f"v_lshl_add_u32 {vCBi}, {tv}, 12, {vCBi}")
    k(f"v_lshlrev_b32 {vCBo}, 9, {g}")
    k(f"v_lshl_add_u32 {vCBo}, {n}, 4, {vCBo}")
    k(f"v_lshlrev_b32 {vCBe}, 9, {g2}")
    k(f"v_lshl_add_u32 {vCBe}, {n}, 4, {vCBe}")
    k(f"v_lshl_add_u32 {vCBe}, {g1}, 3, {vCBe}")
    k(f"s_lshl_b32 {t0}, {wv}, 10")
    k(f"v_add_u32 {vCBe}, {t0}, {vCBe}")
    k.V.free(g1, g2)
    slo, shi, smask, sones = k.s(), k.s(), k.s(), k.s()
    k(f"s_mov_b32 {slo}, 0x05040100")
    k(f"s_mov_b32 {shi}, 0x07060302")
    k(f"s_mov_b32 {smask}, 0xffff0000")
    k(f"s_mov_b32 {sones}, 0x3f803f80")
    sblk, sblkw, sslot = k.s(), k.s(), k.s()
    k(f"s_lshl_b32 {sblk}, {Lid}, 13")
    k(f"s_lshl_b32 {t0}, {wv}, 11")
    k(f"s_add_u32 {sblkw}, {sblk}, {t0}")
    k(f"s_lshl_b32 {sslot}, {Lid}, 5")
    ds2 = [k.s(2), k.s(2)]
    k(f"s_lshl_b32 {ds2[0][0]}, {dsk}, 16")
    k(f"s_and_b32 {ds2[1][0]}, {dsk}, 0xffff0000")
    k.S.free(dsk)
    sga, sgb, sfa, sfb, ssa, ssb = [k.s() for _ in range(6)]
    uid = [0]
    npoll = [0]

    def unpack2(pair, dw):
        k(f"v_lshlrev_b32 {pair[0]}, 16, {dw}")
        k(f"v_and_b32 {pair[1]}, {smask}, {dw}")

    def cmul4(tr, ti, ar, ai, c, s_, conj, pk):
        if not pk:
            for r in range(4):
                k.cmul(tr[r], ti[r], ar[r], ai[r], c[r], s_[r], conj)
            return
        neg = "neg_lo:[1,0,0] neg_hi:[1,0,0]"
        for h in range(2):
            sl = slice(2 * h, 2 * h + 2)
            k(f"v_pk_mul_f32 {tr[sl]}, {ar[sl]}, {c[sl]}")
            k(f"v_pk_mul_f32 {ti[sl]}, {ai[sl]}, {c[sl]}")
            k(f"v_pk_fma_f32 {tr[sl]}, {ai[sl]}, {s_[sl]}, {tr[sl]} {neg if conj else ''}")
            k(f"v_pk_fma_f32 {ti[sl]}, {ar[sl]}, {s_[sl]}, {ti[sl]} {'' if conj else neg}")

    def load_tw(acc):
        for i in range(acc.n):
            k(f"v_accvgpr_read_b32 {TWV[i]}, {acc[i]}")

    def set_offsets(gbase, fbase, sbase, wave_store):
        if gbase is not None:
            k(f"s_add_u32 {sga}, {sslot}, {gbase}")
            k(f"s_add_u32 {sgb}, {sga}, {128 * 8192}")
        if fbase is not None:
            k(f"s_add_u32 {sfa}, {sblk}, {fbase}")
            k(f"s_add_u32 {sfb}, {sfa}, 4096")
        if sbase is not None:
            k(f"s_add_u32 {ssa}, {sblkw if wave_store else sblk}, {sbase}")
            if not wave_store:
                k(f"s_add_u32 {ssb}, {ssa}, 4096")

    def fill(low=False):
        k(f"buffer_store_dwordx4 {SENT}, {vUl}, {sws}, {sfa} offen sc1", low=low)
        k(f"buffer_store_dwordx4 {SENT}, {vUl}, {sws}, {sfb} offen sc1", low=low)

    def gather_issue(first=False):
        if first and OPT['ackfirst']:
            k("s_waitcnt vmcnt(0)")
        if first and OPT['presleep']:
            k(f"s_sleep {OPT['presleep']}")
        k(f"buffer_load_dwordx4 {GL[0]}, {vG}, {sws}, {sga} offen sc1")
        k(f"buffer_load_dwordx4 {GL[1]}, {vG}, {sws}, {sgb} offen sc1")

    def gather_check():
        u = uid[0]
        uid[0] += 1
        x = k.v()
        depth = OPT['depth']
        k(f"s_mov_b32 {t2}, {SPIN_MAX}")
        for d in range(depth - 1):
            if OPT['sleep']:
                k(f"s_sleep {OPT['sleep']}")
            k(".forget_vm")
            gather_issue()
        k(f"L_chk{u}:", manual=True)
        k(f"s_waitcnt vmcnt({2 * (depth - 1)})")
        k(".forget_vm")
        k(f"v_max3_u32 {x}, {GL[0][0]}, {GL[0][1]}, {GL[0][2]}")
        k(f"v_max3_u32 {x}, {x}, {GL[0][3]}, {GL[1][0]}")
        k(f"v_max3_u32 {x}, {x}, {GL[1][1]}, {GL[1][2]}")
        k(f"v_max_u32 {x}, {x}, {GL[1][3]}")
        k(f"v_cmp_eq_u32 vcc, -1, {x}")
        k(f"s_cbranch_vccz L_ok{u}", manual=True)
        k(f"s_sub_u32 {t2}, {t2}, 1")
        k(f"s_cmp_eq_u32 {t2}, 0")
        k(f"s_cbranch_scc1 L_ok{u}", manual=True)
        gather_issue()
        k(".forget_vm")
        k(f"s_branch L_chk{u}", manual=True)
        k(f"L_ok{u}:", manual=True)
        k(".forget_vm")
        if OPT['stamps']:
            k(f"s_sub_u32 {t2}, {SPIN_MAX + 1}, {t2}")
            k(f"s_mov_b32 {t1}, {48 + npoll[0]}")
            k(f"s_mov_b32 {k.s_tmp2[1]}, m0")
            k(f"s_mov_b32 m0, {t1}")
            k(f"v_writelane_b32 {k.v_ts}, {t2}, m0")
            k(f"s_mov_b32 m0, {k.s_tmp2[1]}")
            npoll[0] += 1
        k.V.free(x)

    KS = {}

    def cstep(dst, z, e, t):
        k(f"v_pk_mul_f32 {t}, {z}, {e} op_sel:[0,0] op_sel_hi:[1,0]")
        k(f"v_pk_fma_f32 {dst}, {z}, {e}, {t} op_sel:[1,1,0] op_sel_hi:[0,1,1] neg_lo:[1,0,0]")

    def kg_params():
        k(f"v_lshlrev_b32 {ld}, 16, {ld}")
        L2E = 1.4426950408889634
        hi = struct.unpack('<f', struct.pack('<I', struct.unpack('<I', struct.pack('<f', L2E))[0] & 0xFFFFFF00))[0]
        lo = L2E - hi
        dt, ta, tb_ = k.v(), k.v(), k.v()
        k(f"v_mul_f32 {ta}, {fhex(hi)}, {ld}")
        k(f"v_mul_f32 {tb_}, {fhex(lo * 0.6931471805599453)}, {ld}")
        k(f"v_exp_f32 {ta}, {ta}")
        k(f"v_fma_f32 {dt}, {ta}, {tb_}, {ta}")
        k.round_bf16(dt, dt, ta)
        slc, slr, sl0 = k.s(), k.s(), k.s()
        k(f"s_cmp_eq_u32 {kt}, 0")
        k(f"s_cselect_b32 {slc}, 1.0, 4.0")
        k(f"s_mov_b32 {slr}, {fhex(32.0)}")
        k(f"s_cselect_b32 {slr}, {slr}, {fhex(128.0)}")
        k(f"s_cselect_b32 {sl0}, 0, {fhex(512.0)}")
        Ec, Er_, zc, zr, tmps = [], [], [], [], []
        for md in range(2):
            p_ = {}
            for nm in par:
                p_[nm] = k.v()
                if md == 0:
                    k(f"v_lshlrev_b32 {p_[nm]}, 16, {par[nm]}")
                else:
                    k(f"v_and_b32 {p_[nm]}, {smask}, {par[nm]}")
            ar, ai = p_['B_A_re'], p_['B_A_im']
            br, bi = p_['B_B_re'], p_['B_B_im']
            cr, ci = p_['B_C_re'], p_['B_C_im']
            for x in (ar, ai, br, bi):
                k(f"v_mul_f32 {x}, {dt}, {x}")
            cc = k.v(2, 2)
            k(f"v_mul_f32 {cc[0]}, {cr}, {br}")
            k(f"v_mul_f32 {cc[1]}, {cr}, {bi}")
            k(f"v_fma_f32 {cc[0]}, -{ci}, {bi}, {cc[0]}")
            k(f"v_fma_f32 {cc[1]}, {ci}, {br}, {cc[1]}")
            k(f"v_mul_f32 {ar}, {fhex(L2E)}, {ar}")
            k(f"v_mul_f32 {ai}, {fhex(1 / (2 * 3.141592653589793))}, {ai}")
            es = []
            for sl in (slc, slr, sl0):
                e, x, y = k.v(2, 2), k.v(), k.v()
                k(f"v_mul_f32 {x}, {sl}, {ar}")
                k(f"v_mul_f32 {y}, {sl}, {ai}")
                k(f"v_exp_f32 {x}, {x}")
                k(f"v_fract_f32 {y}, {y}")
                k(f"v_cos_f32 {e[0]}, {y}")
                k(f"v_sin_f32 {e[1]}, {y}")
                k(f"v_mul_f32 {e[0]}, {x}, {e[0]}")
                k(f"v_mul_f32 {e[1]}, {x}, {e[1]}")
                es.append(e)
                tmps += [x, y]
            z1, z2, tp = k.v(2, 2), k.v(2, 2), k.v(2, 2)
            k(f"v_mov_b32 {z1[0]}, 1.0")
            k(f"v_mov_b32 {z1[1]}, 0")
            cstep(z2, cc, es[2], tp)
            tmps += [tp, cc, es[2]] + list(p_.values())
            Ec.append(es[0])
            Er_.append(es[1])
            zc.append(z1)
            zr.append(z2)
        vw = k.v()
        k(f"s_mul_i32 {t0}, {rg}, {KG_CH}")
        k(f"s_mul_i32 {t1}, {kt}, {48 * KG_ROW}")
        k(f"s_add_u32 {t0}, {t0}, {t1}")
        k(f"s_add_u32 {t0}, {t0}, {L_K}")
        k(f"v_lshlrev_b32 {vw}, 3, {lane}")
        k(f"v_add_u32 {vw}, {t0}, {vw}")
        k.V.free(dt, ta, tb_, ld, *tmps, *par.values())
        k.S.free(slc, slr, sl0)
        KS.update(Ec=Ec, Er=Er_, zc=zc, zr=zr, w=vw)

    def kg_tables(part):
        Ec, Er_, zc, zr, vw = KS['Ec'], KS['Er'], KS['zc'], KS['zr'], KS['w']
        tp = [k.v(2, 2) for _ in range(4)]
        pkd = [k.v(2, 2) for _ in range(6)]
        for i in range(8 * part, 8 * part + 8):
            pp = pkd[3 * (i & 1):3 * (i & 1) + 3]
            for md in range(2):
                k.pk(pp[0][md], zr[md][0], f"-{zr[md][1]}")
                k.pk(pp[1][md], zc[md][0], zc[md][1])
            k(f"ds_write_b64 {vw}, {pp[0]} offset:{i * KG_ROW}")
            k(f"ds_write_b64 {vw}, {pp[1]} offset:{(16 + 2 * i) * KG_ROW}")
            for md in range(2):
                cstep(zc[md], zc[md], Ec[md], tp[md])
                if i < 15:
                    cstep(zr[md], zr[md], Er_[md], tp[2 + md])
            for md in range(2):
                k.pk(pp[2][md], zc[md][0], zc[md][1])
            k(f"ds_write_b64 {vw}, {pp[2]} offset:{(17 + 2 * i) * KG_ROW}")
            if i < 15:
                for md in range(2):
                    cstep(zc[md], zc[md], Ec[md], tp[md])
        k.V.free(*tp, *pkd)
        if part == 1:
            k.V.free(*Ec, *Er_, *zc, *zr, vw)

    def kg_index():
        IDX = k.v(8, 2)
        va_ = k.v()
        k(f"v_add_u32 {va_}, 4096, {vl16}")
        k(f"global_load_dwordx4 {IDX[0:4]}, {va_}, {tbase['perkt']} offset:0")
        k(f"global_load_dwordx4 {IDX[4:8]}, {va_}, {tbase['perkt']} offset:1024")
        HELD.append(va_)
        KS['idx'] = IDX

    def kg_matmul():
        ch, blkid = rg, kt
        k(f"s_mul_i32 {t0}, {ch}, {KG_CH}")
        k(f"s_mul_i32 {t1}, {blkid}, {48 * KG_ROW}")
        k(f"s_add_u32 {t0}, {t0}, {t1}")
        k(f"s_add_u32 {t0}, {t0}, {L_K}")
        vr = k.v()
        k(f"v_mul_u32_u24 {vr}, {KG_ROW}, {n}")
        k(f"v_lshl_add_u32 {vr}, {g}, 4, {vr}")
        k(f"v_add_u32 {vr}, {t0}, {vr}")
        D = [k.v(4, 2) for _ in range(2)]
        bufs = [[k.v(4, 2) for _ in range(3)] for _ in range(4)]
        for ks in range(8):
            Ar, B0, B1 = bufs[ks % 4]
            k(f"ds_read_b128 {Ar}, {vr} offset:{ks * 64}")
            k(f"ds_read_b128 {B0}, {vr} offset:{16 * KG_ROW + ks * 64}")
            k(f"ds_read_b128 {B1}, {vr} offset:{32 * KG_ROW + ks * 64}")
            k.mfma(D[0], Ar, B0, D[0] if ks else None)
            k.mfma(D[1], Ar, B1, D[1] if ks else None)
        vq = k.v()
        k(f"s_lshl_b32 {t0}, {wv}, 10")
        k(f"s_add_u32 {t0}, {t0}, {L_KX}")
        k(f"v_lshlrev_b32 {vq}, 8, {g}")
        k(f"v_lshl_add_u32 {vq}, {n}, 1, {vq}")
        k(f"v_add_u32 {vq}, {t0}, {vq}")
        tt = [k.v() for _ in range(8)]
        for nt in range(2):
            for r in range(4):
                k.pk(tt[4 * nt + r], D[nt][r], D[nt][r])
                k(f"ds_write_b16 {vq}, {tt[4 * nt + r]} offset:{r * 64 + nt * 32}")
        k.V.free(vr, vq, *tt, *D, *[x for b in bufs for x in b])

    def kg_expand():
        ch, q = rg, kt
        IDX = KS['idx']
        kxb = k.s()
        k(f"s_lshl_b32 {kxb}, {ch}, 11")
        k(f"s_add_u32 {kxb}, {kxb}, {L_KX}")
        OPS = [k.v(4, 2) for _ in range(2)]
        vals = [[k.v() for _ in range(8)] for _ in range(2)]
        slow16 = k.s()
        k(f"s_mov_b32 {slow16}, 0xffff")
        for mt in range(2):
            for j in range(8):
                x, src = vals[mt][j], IDX[4 * mt + (j >> 1)]
                if j & 1:
                    k(f"v_lshrrev_b32 {x}, 16, {src}")
                else:
                    k(f"v_and_b32 {x}, {slow16}, {src}")
                k(f"v_add_u32 {x}, {kxb}, {x}")
                k(f"ds_read_u16 {x}, {x}")
        for mt in range(2):
            for jp in range(4):
                k(f"v_lshl_or_b32 {OPS[mt][jp]}, {vals[mt][2 * jp + 1]}, 16, {vals[mt][2 * jp]}")
        vb = k.v()
        k(f"s_lshl_b32 {t0}, {ch}, 12")
        k(f"s_lshl_b32 {t1}, {q}, 10")
        k(f"s_add_u32 {t0}, {t0}, {t1}")
        k(f"s_add_u32 {t0}, {t0}, {L_KOP}")
        k(f"v_add_u32 {vb}, {t0}, {vl16}")
        for mt in range(2):
            k(f"ds_write_b128 {vb}, {OPS[mt]} offset:{mt * 2048}")
        k.V.free(*OPS, vb, IDX, *vals[0], *vals[1])
        k.S.free(kxb, slow16)

    class Chan:
        def __init__(self, pk=False):
            self.pk = pk
            self.D = [[k.v(4, 2) for _ in range(2)] for _ in range(2)]
            self.T = [[k.v(4, 2) for _ in range(2)] for _ in range(2)]
            self.E = self.D
            self.B = [k.v(4, 2) for _ in range(2)]

        def free(self):
            k.V.free(*self.D[0], *self.D[1], *self.T[0], *self.T[1], *self.B)

    def fwd_half(C):
        fc, fs = TW[0], TW[1]
        for mt in range(2):
            cmul4(C.T[0][mt], C.T[1][mt], C.D[0][mt], C.D[1][mt], fc[mt], fs[mt], False, C.pk)
            pack4(k, C.B[mt], C.T[0][mt], C.T[1][mt])
        for q in range(2):
            for m2 in range(2):
                k.mfma(C.E[0][m2], op_CS(G[m2][q]), C.B[q], C.E[0][m2] if q else None)
                k.mfma(C.E[1][m2], op_nSC(G[m2][q]), C.B[q], C.E[1][m2] if q else None)

    def inv_half(C, XO):
        ic, is_ = TW[2], TW[3]
        for m2 in range(2):
            pack4(k, C.B[m2], C.T[0][m2], C.T[1][m2])
        for nt in range(2):
            for q in range(2):
                k.mfma(C.D[0][nt], C.B[q], op_CnS(G[nt][q]), C.D[0][nt] if q else None)
                k.mfma(C.D[1][nt], C.B[q], op_SC(G[nt][q]), C.D[1][nt] if q else None)
        for nt in range(2):
            cmul4(C.T[0][nt], C.T[1][nt], C.D[0][nt], C.D[1][nt], ic[nt], is_[nt], True, C.pk)
            pack4(k, XO[nt], C.T[0][nt], C.T[1][nt])

    def kg_transform():
        vr = k.v()
        k(f"v_add_u32 {vr}, {L_KOP}, {vl16}")
        sc = fhex(1.0 / 2048)
        Cs = [Chan(), Chan()]
        U = [[[k.v(4, 2) for _ in range(2)] for _ in range(2)] for _ in range(2)]
        for c in range(2):
            for mt in range(2):
                for q in range(2):
                    k(f"ds_read_b128 {U[c][mt][q]}, {vr} offset:{c * 4096 + mt * 2048 + q * 1024}")
        for c in range(2):
            C = Cs[c]
            for mt in range(2):
                for q in range(2):
                    k.mfma(C.D[0][mt], U[c][mt][q], FC[q], C.D[0][mt] if q else None)
                    k.mfma(C.D[1][mt], U[c][mt][q], FS[q], C.D[1][mt] if q else None)
            fwd_half(C)
            for m2 in range(2):
                for r in range(4):
                    k(f"v_mul_f32 {KF[c][m2][r]}, {sc}, {C.E[0][m2][r]}")
                    k(f"v_mul_f32 {KF[c][m2][4 + r]}, {sc}, {C.E[1][m2][r]}")
        for c in range(2):
            Cs[c].free()
            k.V.free(*U[c][0], *U[c][1])
        k.V.free(vr)

    ITEMS = {'KP': kg_params, 'KT0': lambda: kg_tables(0), 'KT1': lambda: kg_tables(1), 'KM': kg_matmul,
             'KE': kg_expand, 'TI': kg_index, 'KX': kg_transform, 'BAR': lambda: k("s_barrier"),
             'T2': lambda: (tload('perw', pw[0:72], 0), tload('common', cm[4:44], 4)),
             'TF': lambda: tload('perw', pw[0:40], 0), 'TG': lambda: tload('common', cm[4:44], 4),
             'TTW': lambda: tload('perw', pw[40:72], 40),
             'T3': lambda: tload('common', cm[44:84], 44), 'T4': lambda: tload('perw', pw[72:136], 72)}

    def window(name, it):
        items = OPT['windows'].get(name, [])
        if not items or it != 0:
            return
        for nm in items:
            ITEMS[nm]()
            if OPT.get('fine') and not nm.startswith('T') and nm != 'BAR':
                k.stamp('i_' + nm)
        release()
        k.stamp('w' + name)

    k(f"s_lshl_b32 {t0}, {wv}, 10")
    k(f"s_add_u32 {t0}, {t0}, {L_WIM}")
    vt = k.v()
    k(f"v_add_u32 {vt}, {t0}, {vl16}")
    k(f"ds_write_b128 {vt}, {XR[0]}")
    k(f"ds_write_b128 {vt}, {XR[1]} offset:4096")
    k(f"v_lshrrev_b32 {tv}, 2, {n}")
    k(f"v_lshlrev_b32 {vt}, 10, {tv}")
    k(f"v_and_b32 {tv}, 3, {n}")
    k(f"v_lshl_add_u32 {vt}, {tv}, 3, {vt}")
    k(f"v_lshl_add_u32 {vt}, {g}, 5, {vt}")
    k(f"s_lshl_b32 {t0}, {wv}, 8")
    k(f"s_add_u32 {t0}, {t0}, {L_WIM}")
    k(f"v_add_u32 {vt}, {t0}, {vt}")
    k("s_barrier")
    for j in range(2):
        k(f"ds_read_b64_tr_b16 {XR[j][0:2]}, {vt} offset:{j * 128}")
        k(f"ds_read_b64_tr_b16 {XR[j][2:4]}, {vt} offset:{j * 128 + 4096}")
    for j in range(2):
        k(f"ds_write_b128 {vXw}, {XR[j]} offset:{L_XL + j * 1024}")
    k.V.free(vt, *XR)
    vtag, vzero = k.v(), k.v()
    sd = scratch_srd('debug', 256)
    k(f"v_mov_b32 {vzero}, 0")
    k(f"buffer_load_dword {vtag}, {vzero}, {sd}, 0 offen sc1")
    load_tw(RFtw)
    set_offsets(None, Z_B, X1_B, False)
    fill()
    k("s_barrier")
    k.stamp('p1a')

    def w_transpose():
        Wd = k.v(8, 2)
        for rho in range(0, 8, 2):
            for c in range(2):
                reg = Wd[(rho >> 2) * 4 + c * 2 + ((rho & 3) >> 1)]
                k(f"v_lshl_or_b32 {reg}, {Wraw[rho + 1][c]}, 16, {Wraw[rho][c]}")
        vt2, vt3 = k.v(), k.v()
        k(f"v_lshlrev_b32 {vt2}, 5, v0")
        k(f"ds_write_b128 {vt2}, {Wd[0:4]} offset:{L_WST}")
        k(f"ds_write_b128 {vt2}, {Wd[4:8]} offset:{L_WST + 16}")
        for key in WE:
            k(f"v_lshlrev_b32 {WE[key]}, 16, {WE[key]}")
        k(f"v_add_f32 {WE['a', 0]}, {WE['a', 0]}, {WE['ar', 0]}")
        k(f"v_sub_f32 {WE['a', 1]}, {WE['a', 1]}, {WE['ar', 1]}")
        k(f"v_add_f32 {WE['b', 0]}, {WE['b', 0]}, {WE['br', 0]}")
        k(f"v_sub_f32 {WE['b', 1]}, {WE['b', 1]}, {WE['br', 1]}")
        for c in range(2):
            k(f"v_add_f32 {WE['ar', c]}, {WE['a', c]}, {WE['b', c]}")
            k(f"v_sub_f32 {WE['br', c]}, {WE['a', c]}, {WE['b', c]}")
            k(f"v_mul_f32 {WE['ar', c]}, {fhex(0.125)}, {WE['ar', c]}")
            k(f"v_mul_f32 {WE['br', c]}, {fhex(0.125)}, {WE['br', c]}")
            k.pk(WE['ar', c], WE['ar', c], WE['ar', c])
            k.pk(WE['br', c], WE['br', c], WE['br', c])
        k(f"v_lshrrev_b32 {vt3}, 2, v0")
        k(f"v_lshlrev_b32 {vt3}, 4, {vt3}")
        k(f"v_and_b32 {tv}, 3, v0")
        k(f"v_lshl_add_u32 {vt3}, {tv}, 1, {vt3}")
        vt4 = k.v()
        k(f"v_add_u32 {vt4}, {8192 + 64}, {vt3}")
        k(f"v_cmp_gt_u32 vcc, 8, v0")
        k(f"v_cndmask_b32 {vt4}, {vt4}, {vt3}, vcc")
        k(f"v_add_u32 {vt3}, 8192, {vt3}")
        for c in range(2):
            k(f"ds_write_b16 {vt4}, {WE['ar', c]} offset:{L_WST + 8 * c}")
            k(f"ds_write_b16 {vt3}, {WE['br', c]} offset:{L_WST + 8 * c}")
        k.V.free(Wd, vt2, vt3, vt4, *WE.values(), *[x for r in Wraw for x in r])
        k("s_barrier")
        vt = k.v()
        WO = [k.v(4, 2) for _ in range(3)]
        k(f"ds_read_b128 {WO[0]}, {vUl} offset:{L_WST}")
        k(f"ds_read_b128 {WO[1]}, {vUl} offset:{L_WST + 4096}")
        k(f"ds_read_b128 {WO[2]}, {vUl} offset:{L_WST + 8192}")
        k(f"v_add_u32 {vt}, 8192, {vUl}")
        k(f"v_mov_b32 {tv}, {hex(OOB)}")
        k(f"v_cmp_gt_u32 vcc, 2, v0")
        k(f"v_cndmask_b32 {vt}, {tv}, {vt}, vcc")
        k(f"s_mul_i32 {t0}, {Lid}, {WT_BLK}")
        k(f"s_add_u32 {t0}, {t0}, {WT_B}")
        k(f"s_add_u32 {t1}, {t0}, 4096")
        k(f"buffer_store_dwordx4 {WO[0]}, {vUl}, {sws}, {t0} offen sc1")
        k(f"buffer_store_dwordx4 {WO[1]}, {vUl}, {sws}, {t1} offen sc1")
        k(f"buffer_store_dwordx4 {WO[2]}, {vt}, {sws}, {t0} offen sc1")
        k.V.free(vt, *WO)

    def layer(it):
        Lr = [k.v(2, 2) for _ in range(8)]
        for j in range(8):
            dh = j if j < 4 else 16 + j - 4
            k(f"ds_read_b64 {Lr[j]}, {vRFr} offset:{L_XL + dh * 256}")
        if it == 0:
            for nm in OPT['windows'].get('rf0', []):
                ITEMS[nm]()
        Aop = [k.v(4, 2) for _ in range(4)]
        for rho in range(4):
            for jp in range(4):
                k(f"v_perm_b32 {Aop[rho][jp]}, {Lr[2 * jp + 1][rho >> 1]}, {Lr[2 * jp][rho >> 1]}, {shi if rho & 1 else slo}")
        k.V.free(*Lr)
        Dr = [k.v(4, 2) for _ in range(4)]
        Di = [k.v(4, 2) for _ in range(4)]
        for rho in range(4):
            k.mfma(Dr[rho], Aop[rho], RFB1[0:4])
            k.mfma(Di[rho], Aop[rho], RFB1[4:8])
        Sx = [k.v() for _ in range(4)]
        Qx = [k.v() for _ in range(4)]
        for rho in range(4):
            k(f"v_dot2_f32_bf16 {Sx[rho]}, {Aop[rho][0]}, {sones}, 0")
            k(f"v_dot2_f32_bf16 {Qx[rho]}, {Aop[rho][0]}, {Aop[rho][0]}, 0")
        for jp in range(1, 4):
            for rho in range(4):
                k(f"v_dot2c_f32_bf16 {Sx[rho]}, {sones}, {Aop[rho][jp]}")
                k(f"v_dot2c_f32_bf16 {Qx[rho]}, {Aop[rho][jp]}, {Aop[rho][jp]}")
        Sr = k.reduce4(Sx)
        Qr = k.reduce4(Qx)
        oth, alt = Sx[1], Sx[2]
        k(f"v_mov_b32_dpp {oth}, {Sr} quad_perm:[1,0,3,2] row_mask:0xf bank_mask:0xf")
        k(f"v_add_f32_dpp {Qr}, {Qr}, {Qr} quad_perm:[1,0,3,2] row_mask:0xf bank_mask:0xf")
        k(f"v_sub_f32 {alt}, {Sr}, {oth}")
        k(f"v_add_f32 {Sr}, {Sr}, {oth}")
        mbf, rstd = k.ln_finish(Sr, Qr, Sx[3])
        k(f"v_mul_f32 {mbf}, {fhex(512.0)}, {mbf}")
        s_r = [k.s(2) for _ in range(4)]
        s_m = [k.s() for _ in range(4)]
        s_a = [k.s() for _ in range(4)]
        for rho in range(4):
            k(f"v_readlane_b32 {s_r[rho][0]}, {rstd}, {ROWLANE[rho]}")
            k(f"v_readlane_b32 {s_m[rho]}, {mbf}, {ROWLANE[rho]}")
            k(f"v_readlane_b32 {s_a[rho]}, {alt}, {ROWLANE[rho]}")
        D2 = Dr
        tr = [k.v(4, 2) for _ in range(4)]
        ti = [k.v(4, 2) for _ in range(4)]
        B2 = Aop
        for rho in range(4):
            cmul4(tr[rho], ti[rho], Dr[rho], Di[rho], TWV[0:4], TWV[4:8], False, OPT['pk_rf'])
            pack4(k, B2[rho], tr[rho], ti[rho])
            k.mfma(D2[rho], RFA2, B2[rho])
        k.V.free(*tr, *ti, *Di, *Sx, *Qx, *Aop)
        for rho in range(4):
            k(f"v_fma_f32 {D2[rho][0]}, -{dcm}, {s_m[rho]}, {D2[rho][0]}")
            k(f"v_fma_f32 {D2[rho][1]}, {dcm}, {s_a[rho]}, {D2[rho][1]}")
            for h in range(2):
                k(f"v_pk_mul_f32 {D2[rho][2 * h:2 * h + 2]}, {D2[rho][2 * h:2 * h + 2]}, {s_r[rho]} op_sel_hi:[1,0]")
        k.S.free(*s_r, *s_m, *s_a)
        for e in range(2):
            k.pk(O[e][0], D2[0][2 * e], D2[1][2 * e])
            k.pk(O[e][1], D2[2][2 * e], D2[3][2 * e])
            k.pk(O[e][2], D2[0][2 * e + 1], D2[1][2 * e + 1])
            k.pk(O[e][3], D2[2][2 * e + 1], D2[3][2 * e + 1])
            if OPT['rfdirect'] and it == 1:
                k(f"buffer_store_dwordx4 {O[e]}, {vRFs}, {sws}, {ssa} offen offset:{e * 1024} sc1")
            else:
                k(f"ds_write_b128 {vRFs}, {O[e]} offset:{L_XCH + e * 1024}")
        k.V.free(*D2)

        def store_block(lds_base, ack=True):
            if ack:
                k("s_waitcnt vmcnt(0)")
            k("s_barrier")
            k(f"ds_read_b128 {O[0]}, {vUl} offset:{lds_base}")
            k(f"ds_read_b128 {O[1]}, {vUl} offset:{lds_base + 4096}")
            k(f"buffer_store_dwordx4 {O[0]}, {vUl}, {sws}, {ssa} offen sc1")
            k(f"buffer_store_dwordx4 {O[1]}, {vUl}, {sws}, {ssb} offen sc1")
        if not (OPT['rfdirect'] and it == 1):
            store_block(L_XCH, ack=(it != 0))
        release()
        k.stamp('RF')
        if it == 0:
            w_transpose()
            if OPT.get('fine'):
                k.stamp('i_wt')
            sd = scratch_srd('debug', 256)
            x, y = k.v(), k.v()
            q = k.v(4, 2)
            k(f"s_cmp_lg_u32 {wv}, 0")
            k("s_cbranch_scc1 L_tag_done")
            k(f"s_mov_b32 {t2}, {SPIN_MAX}")
            k("L_tag_poll:")
            k(f"v_readfirstlane_b32 {nonce}, {vtag}")
            k(f"s_cmp_lg_u32 {nonce}, 0")
            k("s_cbranch_scc1 L_tag_done")
            k(f"s_sub_u32 {t2}, {t2}, 1")
            k(f"s_cmp_eq_u32 {t2}, 0")
            k("s_cbranch_scc1 L_tag_done")
            k(f"buffer_load_dword {vtag}, {vzero}, {sd}, 0 offen sc1")
            k("s_branch L_tag_poll")
            k("L_tag_done:")
            k("s_waitcnt vmcnt(0)")
            k("s_barrier")
            k(f"s_cmp_lg_u32 {wv}, 0")
            k("s_cbranch_scc1 L_arr_done")
            k(f"v_mov_b32 {y}, {nonce}")
            k(f"v_lshlrev_b32 {x}, 10, {lane}")
            k(f"v_mov_b32 {tv}, {hex(OOB)}")
            k(f"v_cmp_gt_u32 vcc, 8, {lane}")
            k(f"v_cndmask_b32 {x}, {tv}, {x}, vcc")
            k(f"s_lshl_b32 {t1}, {Lid}, 2")
            k(f"s_add_u32 {t0}, {t1}, {FL_B}")
            k(f"buffer_store_dword {y}, {x}, {sws}, {t0} offen sc1")
            k("L_arr_done:")
            k.stamp('arr')
            for nm in OPT['windows'].get('1a', []):
                ITEMS[nm]()
                if OPT.get('fine') and not nm.startswith('T'):
                    k.stamp('i_' + nm)
            release()
            k.stamp('w1a')
            k(f"s_cmp_lg_u32 {wv}, 0")
            k("s_cbranch_scc1 L_wt_done", manual=True)
            k(f"s_mov_b32 {t2}, {SPIN_MAX}")
            k(f"s_and_b32 {t1}, s2, 7")
            k(f"s_lshl_b32 {t1}, {t1}, 10")
            k(f"s_add_u32 {t0}, {t1}, {FL_B}")
            k("L_wtl:", manual=True)
            k(f"buffer_load_dwordx4 {q}, {vl16}, {sws}, {t0} offen sc1")
            k(f"s_sub_u32 {t2}, {t2}, 1")
            k(f"s_cmp_eq_u32 {t2}, 0")
            k("s_cbranch_scc1 L_wt_done", manual=True)
            k("s_waitcnt vmcnt(0)")
            for i in range(4):
                k(f"v_xor_b32 {q[i]}, {nonce}, {q[i]}")
            k(f"v_or3_b32 {q[0]}, {q[0]}, {q[1]}, {q[2]}")
            k(f"v_or_b32 {q[0]}, {q[0]}, {q[3]}")
            k(f"v_cmp_ne_u32 vcc, 0, {q[0]}")
            k("s_cbranch_vccnz L_wtl", manual=True)
            k("L_wt_done:", manual=True)
            k("s_barrier")
            k.V.free(x, y, q, vtag, vzero)
            k.stamp('wait')

        io = it * IT_STRIDE

        def offs(gb, fb, sbs, wave_store, between=None):
            k(f"s_add_u32 {sga}, {sslot}, {io + gb}")
            k(f"s_add_u32 {sgb}, {sslot}, {io + gb + 128 * 8192}")
            if OPT['ackfirst']:
                k("s_waitcnt vmcnt(0)")
            if between is not None and OPT['between']:
                between()
                k("s_nop 0")
            if OPT['presleep']:
                k(f"s_sleep {OPT['presleep']}")
            gather_issue()
            if between is not None and not OPT['between']:
                between()
            if fb is not None:
                k(f"s_add_u32 {sfa}, {sblk}, {io + fb}")
                k(f"s_add_u32 {sfb}, {sblk}, {io + fb + 4096}")
            if sbs is not None:
                k(f"s_add_u32 {ssa}, {sblkw if wave_store else sblk}, {io + sbs}")
                if not wave_store:
                    k(f"s_add_u32 {ssb}, {sblk}, {io + sbs + 4096}")
        offs(X1_B, U_B, Z_B, True, lambda: load_tw(TW0a))
        if it == 0:
            GW = [k.v(4, 2) for _ in range(4)]
            vGW = k.v()
            k(f"v_lshrrev_b32 {vGW}, 1, v0")
            k(f"v_mul_u32_u24 {vGW}, {WT_BLK}, {vGW}")
            k(f"v_and_b32 {tv}, 1, v0")
            k(f"v_lshl_add_u32 {vGW}, {tv}, 4, {vGW}")
            k(f"s_add_u32 {t0}, {sslot}, {WT_B}")
            k(f"s_add_u32 {t1}, {t0}, {128 * WT_BLK}")
            k(f"buffer_load_dwordx4 {GW[0]}, {vGW}, {sws}, {t0} offen sc1")
            k(f"buffer_load_dwordx4 {GW[1]}, {vGW}, {sws}, {t1} offen sc1")
            k(f"s_cmp_lg_u32 {Lid}, 0")
            k("s_cbranch_scc1 L_no256", manual=True)
            k(f"s_mov_b32 {t0}, {WT_B + 256 * 32}")
            k(f"s_mov_b32 {t1}, {WT_B + 256 * 32 + 128 * WT_BLK}")
            k(f"buffer_load_dwordx4 {GW[2]}, {vGW}, {sws}, {t0} offen sc1")
            k(f"buffer_load_dwordx4 {GW[3]}, {vGW}, {sws}, {t1} offen sc1")
            k("s_nop 0")
            k("L_no256:", manual=True)
            for nm in OPT['windows'].get('1b', []):
                ITEMS[nm]()
            release()
            k.stamp('w1b')
        gather_check()
        k(f"ds_write_b128 {vUl}, {GL[0]} offset:{L_IMG}")
        k(f"ds_write_b128 {vUl}, {GL[1]} offset:{L_IMG + 4096}")
        if it == 0:
            for i in range(2):
                k(f"ds_write_b128 {vUl}, {GW[i]} offset:{L_WIM + i * 4096}")
            k(f"s_cmp_lg_u32 {Lid}, 0")
            k("s_cbranch_scc1 L_no256w", manual=True)
            for i in range(2, 4):
                k(f"ds_write_b128 {vUl}, {GW[i]} offset:{L_WIM + i * 4096}")
            k("L_no256w:", manual=True)
            k.V.free(vGW, *GW)
        k("s_barrier")
        k.stamp('CAld')
        fill(low=True)
        if it == 0:
            for nm in OPT['windows'].get('ca0', []):
                ITEMS[nm]()
        if it == 0:
            vw = k.v()
            k(f"v_lshrrev_b32 {vw}, 1, {g}")
            k(f"v_lshlrev_b32 {vw}, 6, {vw}")
            k(f"v_add_u32 {vw}, {vw}, {n}")
            k(f"v_add_u32 {vw}, {w16}, {vw}")
            k(f"v_lshlrev_b32 {vw}, 5, {vw}")
            k(f"v_and_b32 {tv}, 1, {g}")
            k(f"v_lshl_add_u32 {vw}, {tv}, 4, {vw}")
            Wr = [k.v(4, 2) for _ in range(2)]
            for m2 in range(2):
                k(f"ds_read_b128 {Wr[m2]}, {vw} offset:{L_WIM + m2 * 4096}")
            sc = k.s()
            k(f"s_mov_b32 {sc}, {fhex(2.0 / (2048 * 512))}")
            for m2 in range(2):
                for r in range(4):
                    for c in range(2):
                        dst, src = WP[m2][4 * c + r], Wr[m2][2 * c + (r >> 1)]
                        if r & 1:
                            k(f"v_and_b32 {dst}, {smask}, {src}")
                        else:
                            k(f"v_lshlrev_b32 {dst}, 16, {src}")
                        k(f"v_mul_f32 {dst}, {sc}, {dst}")
        X = [[k.v(4, 2) for _ in range(4)] for _ in range(2)]
        for mt in range(2):
            for q in range(4):
                k(f"ds_read_b128 {X[mt][q]}, {vCAo} offset:{L_IMG + q * 2048 + mt * 512}")
        C = Chan(OPT['pk_ca'])
        for mt in range(2):
            for q in range(4):
                k.mfma(C.D[0][mt], X[mt][q], op_CS(F[q]), C.D[0][mt] if q else None)
                k.mfma(C.D[1][mt], X[mt][q], op_nSC(F[q]), C.D[1][mt] if q else None)
        fwd_half(C)
        release()
        k(f"s_cmp_lg_u32 {Lid}, 0")
        k(f"s_cbranch_scc1 L_q_mid{it}", manual=True)
        if it == 0:
            qt = [k.v() for _ in range(16)]
            for m2 in range(2):
                k(f"ds_read_b128 {Wr[m2]}, {vw} offset:{L_WIM + 8192 + m2 * 4096}")
            for m2 in range(2):
                for r in range(4):
                    for c in range(2):
                        dst, src = qt[8 * m2 + 4 * c + r], Wr[m2][2 * c + (r >> 1)]
                        if r & 1:
                            k(f"v_and_b32 {dst}, {smask}, {src}")
                        else:
                            k(f"v_lshlrev_b32 {dst}, 16, {src}")
                        k(f"v_mul_f32 {dst}, {sc}, {dst}")
            for i in range(16):
                k(f"v_accvgpr_write_b32 {WQa[i]}, {qt[i]}")
            k.V.free(*qt)
            k("s_barrier")
        vb0, vbw, vbr, vb2 = k.v(), k.v(), k.v(), k.v()
        k(f"v_lshlrev_b32 {vb0}, 8, {g}")
        k(f"v_add_u32 {vb0}, {vb0}, {n}")
        k(f"v_add_u32 {vb0}, {w16}, {vb0}")
        k(f"v_lshlrev_b32 {vbw}, 3, {vb0}")
        k(f"v_sub_u32 {vbr}, {(2048 - 64 * 19) * 8}, {vbw}")
        k(f"v_cmp_eq_u32 vcc, 0, {vb0}")
        k(f"v_mov_b32 {vb2}, {2050 * 8}")
        k(f"v_mov_b32 {tv}, {2048 * 8}")
        k(f"v_cndmask_b32 {vb2}, {vb2}, {tv}, vcc")
        prs = [X[1][i >> 1][2 * (i & 1):2 * (i & 1) + 2] for i in range(8)]
        qq = [X[0][i >> 1][2 * (i & 1):2 * (i & 1) + 2] for i in range(8)]
        for m2 in range(2):
            for r in range(4):
                pr = prs[4 * m2 + r]
                k(f"v_mov_b32 {pr[0]}, {C.E[0][m2][r]}")
                k(f"v_mov_b32 {pr[1]}, {C.E[1][m2][r]}")
                k(f"ds_write_b64 {vbw}, {pr} offset:{L_QX + 512 * (16 * m2 + r)}")
                k(f"v_accvgpr_read_b32 {qq[4 * m2 + r][0]}, {WQa[8 * m2 + r]}")
                k(f"v_accvgpr_read_b32 {qq[4 * m2 + r][1]}, {WQa[8 * m2 + 4 + r]}")
        k(f"ds_write_b64 {vb2}, {prs[0]} offset:{L_QX}")
        k(f"L_q_mid{it}:", manual=True)
        for m2 in range(2):
            cmul4(C.T[0][m2], C.T[1][m2], C.E[0][m2], C.E[1][m2], WP[m2][0:4], WP[m2][4:8], True, C.pk)
        k(f"s_cmp_lg_u32 {Lid}, 0")
        k(f"s_cbranch_scc1 L_q_done{it}", manual=True)
        k("s_barrier")
        for m2 in range(2):
            for r in range(4):
                k(f"ds_read_b64 {prs[4 * m2 + r]}, {vbr} offset:{L_QX + 512 * (19 - (16 * m2 + r))}")
        for m2 in range(2):
            for r in range(4):
                pr, q_ = prs[4 * m2 + r], qq[4 * m2 + r]
                k(f"v_fmac_f32 {C.T[0][m2][r]}, {pr[0]}, {q_[0]}")
                k(f"v_fmac_f32 {C.T[1][m2][r]}, {pr[0]}, {q_[1]}")
                k(f"v_fmac_f32 {C.T[0][m2][r]}, {pr[1]}, {q_[1]}")
                k(f"v_fma_f32 {C.T[1][m2][r]}, -{pr[1]}, {q_[0]}, {C.T[1][m2][r]}")
        k("s_waitcnt lgkmcnt(0)")
        k.V.free(vb0, vbw, vbr, vb2)
        k(f"L_q_done{it}:", manual=True)
        if it == 0:
            k.V.free(vw, *Wr)
            k.S.free(sc)
        XO = [X[0][0], X[0][1]]
        inv_half(C, XO)
        for nt in range(2):
            k(f"ds_write_b128 {vXw}, {XO[nt]} offset:{L_XCH + nt * 1024}")
        k("s_waitcnt vmcnt(0)")
        k("s_barrier")
        for nt in range(2):
            for kq in range(4):
                k(f"ds_read_b128 {X[nt][kq]}, {vl16} offset:{L_XCH + kq * 2048 + nt * 1024}")
        for nt in range(2):
            for kq in range(4):
                k.mfma(C.D[0][nt], op_CnS(F[kq]), X[nt][kq], C.D[0][nt] if kq else None)
                k.mfma(C.D[1][nt], op_SC(F[kq]), X[nt][kq], C.D[1][nt] if kq else None)
        for nt in range(2):
            k.pk(O[nt][0], C.D[0][nt][0], C.D[0][nt][1])
            k.pk(O[nt][1], C.D[1][nt][0], C.D[1][nt][1])
            k.pk(O[nt][2], C.D[0][nt][2], C.D[0][nt][3])
            k.pk(O[nt][3], C.D[1][nt][2], C.D[1][nt][3])
            k(f"buffer_store_dwordx4 {O[nt]}, {vzo}, {sws}, {ssa} offen offset:{nt * 512} sc1")
        C.free()
        k.V.free(*X[0], *X[1])
        k.stamp('CA')

        window('2p', it)
        X = [k.v(4, 2) for _ in range(2)]
        XP = [[k.v(2, 2) for _ in range(4)] for _ in range(2)]

        def ri_prep():
            load_tw(RItw)
            for nt in range(2):
                for r in range(4):
                    k(f"ds_read_b32 {X[nt][r]}, {vRIx} offset:{L_XL + nt * 256 + r * 512}")
            for nt in range(2):
                for r in range(4):
                    unpack2(XP[nt][r], X[nt][r])
        offs(Z_B, Y_B, U_B, False, ri_prep)
        window('2', it)
        gather_check()
        k(f"ds_write_b128 {vUl}, {GL[0]} offset:{L_IMG}")
        k(f"ds_write_b128 {vUl}, {GL[1]} offset:{L_IMG + 4096}")
        k("s_barrier")
        k.stamp('RIld')
        fill(low=True)
        Lz = [k.v(2, 2) for _ in range(4)]
        for e_ in range(4):
            k(f"ds_read_b64 {Lz[e_]}, {vRIz} offset:{L_IMG + e_ * 512}")
        Aop = [k.v(4, 2) for _ in range(2)]
        for e_ in range(2):
            sel = shi if e_ else slo
            k(f"v_perm_b32 {Aop[e_][0]}, {Lz[1][0]}, {Lz[0][0]}, {sel}")
            k(f"v_perm_b32 {Aop[e_][1]}, {Lz[3][0]}, {Lz[2][0]}, {sel}")
            k(f"v_perm_b32 {Aop[e_][2]}, {Lz[1][1]}, {Lz[0][1]}, {sel}")
            k(f"v_perm_b32 {Aop[e_][3]}, {Lz[3][1]}, {Lz[2][1]}, {sel}")
        szn = k.s()
        k(f"v_readlane_b32 {szn}, {Lz[0][1]}, 0")
        Vr = [[k.v(4, 2) for _ in range(2)] for _ in range(2)]
        Vi = [[k.v(4, 2) for _ in range(2)] for _ in range(2)]
        for e_ in range(2):
            for nt in range(2):
                k.mfma(Vr[e_][nt], Aop[e_], op_CnS(H[nt]))
                k.mfma(Vi[e_][nt], Aop[e_], op_SC(H[nt]))
        Ci = [k.v(4, 2) for _ in range(2)]
        k(f"s_lshl_b32 {t0}, {szn}, 16")
        k(f"s_and_b32 {t1}, {szn}, 0xffff0000")
        for e_ in range(2):
            k(f"v_xor_b32 {Ci[e_][0]}, {t1 if e_ else t0}, {sgn}")
            for r in range(1, 4):
                k(f"v_mov_b32 {Ci[e_][r]}, {Ci[e_][0]}")
        k.S.free(szn)
        D = Vr
        tr = [[k.v(4, 2) for _ in range(2)] for _ in range(2)]
        ti = [[k.v(4, 2) for _ in range(2)] for _ in range(2)]
        B = Vi
        for e_ in range(2):
            for nt in range(2):
                cmul4(tr[e_][nt], ti[e_][nt], Vr[e_][nt], Vi[e_][nt], TWV[8 * nt:8 * nt + 4], TWV[8 * nt + 4:8 * nt + 8], True, OPT['pk_ri'])
                pack4(k, B[e_][nt], tr[e_][nt], ti[e_][nt])
                k.mfma(D[e_][nt], RIA2, B[e_][nt], Ci[e_])
        k.V.free(*tr[0], *tr[1], *ti[0], *ti[1], *Ci, *Aop, *Vi[0], *Vi[1], *Lz)
        Sp = [k.v(2, 2) for _ in range(2)]
        Qp = [k.v(2, 2) for _ in range(2)]
        for nt in range(2):
            for r in range(4):
                k(f"v_add_f32 {XP[nt][r][0]}, {XP[nt][r][0]}, {D[0][nt][r]}")
                k(f"v_add_f32 {XP[nt][r][1]}, {XP[nt][r][1]}, {D[1][nt][r]}")
                k.pk(X[nt][r], XP[nt][r][0], XP[nt][r][1])
                k(f"ds_write_b32 {vRIx}, {X[nt][r]} offset:{L_XL + nt * 256 + r * 512}")
                unpack2(XP[nt][r], X[nt][r])
            k(f"v_pk_add_f32 {Sp[nt]}, {XP[nt][0]}, {XP[nt][1]}")
            k(f"v_pk_mul_f32 {Qp[nt]}, {XP[nt][0]}, {XP[nt][0]}")
            k(f"v_pk_add_f32 {Sp[nt]}, {Sp[nt]}, {XP[nt][2]}")
            k(f"v_pk_fma_f32 {Qp[nt]}, {XP[nt][1]}, {XP[nt][1]}, {Qp[nt]}")
            k(f"v_pk_add_f32 {Sp[nt]}, {Sp[nt]}, {XP[nt][3]}")
            k(f"v_pk_fma_f32 {Qp[nt]}, {XP[nt][2]}, {XP[nt][2]}, {Qp[nt]}")
            k(f"v_pk_fma_f32 {Qp[nt]}, {XP[nt][3]}, {XP[nt][3]}, {Qp[nt]}")
        k(f"v_pk_add_f32 {Sp[0]}, {Sp[0]}, {Sp[1]}")
        k(f"v_pk_add_f32 {Qp[0]}, {Qp[0]}, {Qp[1]}")
        k.V.free(*D[0], *D[1])
        R = k.reduce4([Sp[0][0], Sp[0][1], Qp[0][0], Qp[0][1]])
        k(f"v_add_f32_dpp {R}, {R}, {R} quad_perm:[1,0,3,2] row_mask:0xf bank_mask:0xf")
        R2 = Qp[0][1]
        k(f"v_mov_b32 {R2}, {R}")
        k(f"v_permlane16_swap_b32 {R}, {R2}")
        mbf, rstd = k.ln_finish(R, R2, tv)
        k(f"v_mul_f32 {mbf}, {mbf}, {rstd}")
        sm, sr = k.s(2), k.s(2)
        for e_ in range(2):
            k(f"v_readlane_b32 {sm[e_]}, {mbf}, {32 * e_}")
            k(f"v_readlane_b32 {sr[e_]}, {rstd}, {32 * e_}")
        mr = Sp[1]
        k(f"v_mov_b32 {mr[0]}, {sm[0]}")
        k(f"v_mov_b32 {mr[1]}, {sm[1]}")
        for nt in range(2):
            for r in range(4):
                k(f"v_pk_fma_f32 {XP[nt][r]}, {XP[nt][r]}, {sr}, {mr} neg_lo:[0,0,1] neg_hi:[0,0,1]")
                k.pk(X[nt][r], XP[nt][r][0], XP[nt][r][1])
                k(f"ds_write_b32 {vRIx}, {X[nt][r]} offset:{L_XCH + nt * 256 + r * 512}")
        k.S.free(sm, sr)
        k.V.free(*Sp, *Qp, *XP[0], *XP[1], *X)
        store_block(L_XCH)
        k.stamp('RI')

        if it == 0:
            load_tw(TW1a)
        window('3p', it)
        offs(U_B, X1_B + IT_STRIDE if it == 0 else None, Y_B, True, (lambda: load_tw(TW1a)) if it else None)
        window('3', it)
        gather_check()
        k(f"ds_write_b128 {vCBi}, {GL[0]} offset:{L_IMG}")
        k(f"ds_write_b128 {vCBi}, {GL[1]} offset:{L_IMG + 2048}")
        k("s_barrier")
        k.stamp('CBld')
        if OPT.get('pad') and it == 1:
            k("s_nop 0")
            for i_ in range(OPT['pad']):
                k(f"v_mul_f32 {tv}, {tv}, {tv}")
            k("s_nop 0")
        if it == 0:
            fill(low=True)
            if OPT['rfdirect']:
                sf2 = [k.s(), k.s()]
                k(f"s_add_u32 {sf2[0]}, {sblk}, {Z_B + IT_STRIDE}")
                k(f"s_add_u32 {sf2[1]}, {sblk}, {Z_B + IT_STRIDE + 4096}")
                k(f"buffer_store_dwordx4 {SENT}, {vUl}, {sws}, {sf2[0]} offen sc1", low=True)
                k(f"buffer_store_dwordx4 {SENT}, {vUl}, {sws}, {sf2[1]} offen sc1", low=True)
                k.S.free(*sf2)
        U = [[[k.v(4, 2) for _ in range(2)] for _ in range(2)] for _ in range(2)]
        for c in range(2):
            for mt in range(2):
                for q in range(2):
                    k(f"ds_read_b128 {U[c][mt][q]}, {vCBo} offset:{L_IMG + c * 4096 + q * 2048 + mt * 256}")
        EU = [[k.v(2, 2) for _ in range(2)] for _ in range(2)]
        for c in range(2):
            for nt in range(2):
                k(f"ds_read_b64 {EU[c][nt]}, {vCBe} offset:{L_IMG + c * 4096 + nt * 256}")
        Cs = [Chan(OPT['pk_cb']), Chan(OPT['pk_cb'])]
        for c in range(2):
            C = Cs[c]
            for mt in range(2):
                for q in range(2):
                    k.mfma(C.D[0][mt], U[c][mt][q], FC[q], C.D[0][mt] if q else None)
                    k.mfma(C.D[1][mt], U[c][mt][q], FS[q], C.D[1][mt] if q else None)
            fwd_half(C)
            for m2 in range(2):
                cmul4(C.T[0][m2], C.T[1][m2], C.E[0][m2], C.E[1][m2], KF[c][m2][0:4], KF[c][m2][4:8], True, C.pk)
            XO = [U[c][0][0], U[c][0][1]]
            inv_half(C, XO)
            for nt in range(2):
                k(f"ds_write_b128 {vXw}, {XO[nt]} offset:{L_XCH + c * 8192 + nt * 1024}")
            for nt in range(2):
                for h in range(2):
                    unpack2(U[c][1][nt][2 * h:2 * h + 2], EU[c][nt][h])
        k("s_waitcnt vmcnt(0)")
        k("s_barrier")
        Yc = [[[Cs[c].T[0][0], Cs[c].T[0][1], Cs[c].T[1][0], Cs[c].T[1][1]],
               [Cs[c].D[1][0], Cs[c].D[1][1], Cs[c].B[0], Cs[c].B[1]]] for c in range(2)]
        for c in range(2):
            for nt in range(2):
                for kq in range(4):
                    k(f"ds_read_b128 {Yc[c][nt][kq]}, {vl16} offset:{L_XCH + c * 8192 + kq * 2048 + nt * 1024}")
        UP = [[[U[c][1][0][0:2], U[c][1][0][2:4]], [U[c][1][1][0:2], U[c][1][1][2:4]]] for c in range(2)]
        for c in range(2):
            D = Cs[c].D[0]
            for nt in range(2):
                for kq in range(4):
                    k.mfma(D[nt], I2[kq], Yc[c][nt][kq], D[nt] if kq else None)
        for c in range(2):
            D = Cs[c].D[0]
            for nt in range(2):
                for h in range(2):
                    for e_ in range(2):
                        k(f"v_fmac_f32 {D[nt][2 * h + e_]}, {ds2[c][0]}, {UP[c][nt][h][e_]}")
                    k.pk(O[nt][2 * c + h], D[nt][2 * h], D[nt][2 * h + 1])
        for nt in range(2):
            k(f"v_permlane16_swap_b32 {O[nt][0]}, {O[nt][2]}")
            k(f"v_permlane16_swap_b32 {O[nt][1]}, {O[nt][3]}")
            k(f"buffer_store_dwordx4 {O[nt]}, {vzo}, {sws}, {ssa} offen offset:{nt * 512} sc1")
        for c in range(2):
            Cs[c].free()
            k.V.free(*U[c][0], *U[c][1], *EU[c])
        k.stamp('CB')

        XV = [k.v(4, 2) for _ in range(2)]
        xps = [[k.v(2, 2) for _ in range(4)] for _ in range(2)]
        yps = [[k.v(2, 2) for _ in range(4)] for _ in range(2)]

        def res_prep():
            if it == 0:
                load_tw(RFtw)
            k(f"ds_read_b128 {XV[0]}, {vUl} offset:{L_XL}")
            k(f"ds_read_b128 {XV[1]}, {vUl} offset:{L_XL + 4096}")
            for i in range(2):
                for j in range(4):
                    unpack2(xps[i][j], XV[i][j])
        offs(Y_B, Z_B + IT_STRIDE if it == 0 else None, X1_B + IT_STRIDE if it == 0 else None, False, res_prep)
        gather_check()
        for i in range(2):
            for j in range(4):
                unpack2(yps[i][j], GL[i][j])
                k(f"v_pk_add_f32 {yps[i][j]}, {yps[i][j]}, {xps[i][j]}")
                k.pk(XV[i][j], yps[i][j][0], yps[i][j][1])
            k(f"ds_write_b128 {vUl}, {XV[i]} offset:{L_XL + i * 4096}")
        k.V.free(*yps[0], *yps[1], *xps[0], *xps[1], *XV)
        k("s_barrier")
        k.stamp('resid')
        if it == 0 and not OPT['rfdirect']:
            fill(low=True)


    layer(0)
    layer(1)

    vt = k.v()
    k(f"v_lshrrev_b32 {tv}, 2, {n}")
    k(f"v_lshlrev_b32 {vt}, 4, {tv}")
    k(f"v_and_b32 {tv}, 1, {n}")
    k(f"v_lshl_add_u32 {vt}, {tv}, 3, {vt}")
    k(f"v_bfe_u32 {tv}, {n}, 1, 1")
    k(f"v_lshl_add_u32 {vt}, {tv}, 7, {vt}")
    k(f"v_lshl_add_u32 {vt}, {g}, 8, {vt}")
    k(f"s_lshl_b32 {t0}, {wv}, 11")
    k(f"v_add_u32 {vt}, {t0}, {vt}")
    OT = [k.v(4, 2) for _ in range(2)]
    for j in range(2):
        for h in range(2):
            k(f"ds_read_b64_tr_b16 {OT[j][2 * h:2 * h + 2]}, {vt} offset:{L_XL + j * 1024 + h * 64}")
    so = scratch_srd('out', 2048 * 512 * 2)
    vo = k.v()
    k(f"v_and_b32 {vo}, 7, {n}")
    k(f"v_lshlrev_b32 {vo}, 15, {vo}")
    k(f"v_lshrrev_b32 {tv}, 3, {n}")
    k(f"v_lshl_add_u32 {vo}, {tv}, 4, {vo}")
    k(f"v_lshl_add_u32 {vo}, {g}, 5, {vo}")
    k(f"s_lshl_b32 {t0}, {a8}, 8")
    k(f"s_add_u32 {t0}, {t0}, {bs}")
    k(f"s_lshl_b32 {t0}, {t0}, 10")
    k(f"s_lshl_b32 {t1}, {wv}, 8")
    k(f"s_add_u32 {t0}, {t0}, {t1}")
    for j in range(2):
        k(f"buffer_store_dwordx4 {OT[j]}, {vo}, {so}, {t0} offen offset:{j * 128}{OPT.get('outflag', ' sc1')}")
    if OPT['stamps']:
        k.stamp('final')
        k.stamp('drain', "s_waitcnt vmcnt(0)")
        k(f"v_lshlrev_b32 {vt}, 2, {lane}")
        k(f"s_lshl_b32 {t0}, s2, 8")
        k(f"s_add_u32 {t0}, {t0}, {TS_OFF}")
        k(f"s_mov_b32 {sws[2]}, {hex(TS_OFF + 0x100000)}")
        k(f"s_cmp_lg_u32 {wv}, 0")
        k("s_cbranch_scc1 L_end")
        k(f"buffer_store_dword {k.v_ts}, {vt}, {sws}, {t0} offen")
        if OPT.get('todebug'):
            sd = scratch_srd('debug', 64)
            k("s_cmp_lg_u32 s2, 0")
            k("s_cbranch_scc1 L_end")
            k(f"v_add_u32 {vt}, 4, {vt}")
            k(f"buffer_store_dword {k.v_ts}, {vt}, {sd}, 0 offen")
    k("L_end:")
    k("s_endpgm")
    k("L_code_end:", manual=True)
    body = k.a.finish(sched=OPT['sched'])
    body += ".p2align 8\n.type L_tables,@object\nL_tables:\n" + ttext + f".size L_tables, {toff['total']}\nL_tables_end:\n"
    print(f"vgpr={k.V.hi} agpr={k.A.hi} sgpr={k.S.hi} lds={LDS_BYTES} instrs={k.a.count()}")
    return k, body


def write(path):
    k, body = build()
    hdr = list(HDR)
    hdr.append(f"; @launch grid=(256,1,1) block=(256,1,1) lds={LDS_BYTES}")
    hdr.append('.amdgcn_target "amdgcn-amd-amdhsa--gfx950"')
    hdr.append('.text')
    txt = '\n'.join(hdr) + '\n' + kernel_text(KN, body)
    txt += '.section .rodata,"a"\n' + descriptor(KN, 256 + max(k.A.hi, 8), max(k.S.hi, 16), accum=256)
    open(path, 'w').write(txt)
    return k


def stamp_sequence(names):
    return names
    i0 = names.index('RF')
    i1 = names.index('resid') + 1
    body = names[i0:i1]
    second = [x for x in body if x not in ('w1b', 'arr', 'w1a', 'wait') and not x.startswith('i_')]
    return names[:i1] + second + names[i1:]


if __name__ == '__main__':
    for a_ in sys.argv[2:]:
        kk_, vv_ = a_.split('=')
        OPT[kk_] = eval(vv_)
    if len(sys.argv) > 1 and sys.argv[1] not in ('stamps', 'plain'):
        kk = write(sys.argv[1])
        if OPT['stamps']:
            print(stamp_sequence(kk.stamp_names))
    elif len(sys.argv) > 1 and sys.argv[1] == 'stamps':
        OPT['stamps'] = True
        OPT['fine'] = OPT.get('fine', True)
        kk = write('p6_ts.s')
        open('p6_ts.names', 'w').write(','.join(stamp_sequence(kk.stamp_names)))
    else:
        write('p6.s')
```
